```python
import torch

def _softmax(x, axis=-1):
    return torch.softmax(x, dim=axis)

def _gelu(x):
    return torch.nn.functional.gelu(x, approximate='tanh')

def _silu(x):
    return torch.nn.functional.silu(x)

def _sigmoid(x):
    return torch.sigmoid(x)

def _layernorm(x, axis=-1, eps=1e-05):
    m = x.mean(dim=axis, keepdim=True)
    v = x.var(dim=axis, keepdim=True, unbiased=False)
    return (x - m) / torch.sqrt(v + eps)

def _scatter_add(tgt, idx, src, axis=0):
    return tgt.clone().index_add_(axis, idx, src)

def _segment_sum(src, seg, n):
    out = torch.zeros((n,) + src.shape[1:], dtype=src.dtype)
    return out.index_add_(0, seg, src)

def _pad(x, pw):
    flat = tuple((v for pair in reversed(pw) for v in pair))
    return torch.nn.functional.pad(x, flat)
kernel_name = 'interleave_layers__memory_aug_recurrent_mem_tr__linear_attn_block__prompt'

def setup_inputs():

    _w = lambda a: (lambda t: t.to(torch.bfloat16) if t.is_floating_point() else t)(torch.as_tensor(a))

    def _A_setup():
        B, S, Dm = (1, 2048, 512)
        H, Dh = (32, 128)
        M, seg = (8, 32)
        seg = min(seg, S)
        S = S // seg * seg
        return {'x': _w((lambda *s: torch.randn(*s, dtype=torch.bfloat16) * 0.05)(B, S, Dm)), 'mem0': _w((lambda *s: torch.randn(*s, dtype=torch.bfloat16) * 0.2)(B, M, Dm)), 'Wq': _w((lambda *s: torch.randn(*s, dtype=torch.bfloat16) * 1.6)(Dm, H, Dh) * Dm ** (-0.5)), 'Wk': _w((lambda *s: torch.randn(*s, dtype=torch.bfloat16) * 1.6)(Dm, H, Dh) * Dm ** (-0.5)), 'Wv': _w((lambda *s: torch.randn(*s, dtype=torch.bfloat16) * 0.2)(Dm, H, Dh) * Dm ** (-0.5)), 'Wo': _w((lambda *s: torch.randn(*s, dtype=torch.bfloat16) * 0.2)(H, Dh, Dm) * (H * Dh) ** (-0.5)), 'seg_len': seg}
    _A_in = _A_setup()

    def _B_setup():
        B, S, D = (1, 2048, 512)
        return {'x': _w((lambda *s: torch.randn(*s, dtype=torch.bfloat16) * 0.05)(B, S, D)), 'wqkv': _w((lambda *s: torch.randn(*s, dtype=torch.bfloat16) * 0.1)(D, 3 * D)), 'wo': _w((lambda *s: torch.randn(*s, dtype=torch.bfloat16) * 0.05)(D, D))}
    _B_in = _B_setup()
    return {'A_x': _A_in['x'], 'A_mem0': _A_in['mem0'], 'A_Wq': _A_in['Wq'], 'A_Wk': _A_in['Wk'], 'A_Wv': _A_in['Wv'], 'A_Wo': _A_in['Wo'], 'A_seg_len': _A_in['seg_len'], 'B_x': _B_in['x'], 'B_wqkv': _B_in['wqkv'], 'B_wo': _B_in['wo']}

def reference(A_x, A_mem0, A_Wq, A_Wk, A_Wv, A_Wo, A_seg_len, B_x, B_wqkv, B_wo):

    def _A_ref(x, mem0, Wq, Wk, Wv, Wo, seg_len):
        B, S, Dm = x.shape
        H, Dh = (Wq.shape[1], Wq.shape[2])
        M = mem0.shape[1]
        scale = Dh ** (-0.5)
        n_seg = S // seg_len
        L = M + seg_len
        idx = torch.arange(L)
        mask = (idx[:, None] < M) | (idx[:, None] >= idx[None, :])
        mem = mem0
        outs = []
        for s in range(n_seg):
            xs = x[:, s * seg_len:(s + 1) * seg_len, :].clone()
            h = torch.concatenate([mem, xs], axis=1)
            q = torch.einsum('btd,dhe->bhte', h, Wq)
            k = torch.einsum('btd,dhe->bhte', h, Wk)
            v = torch.einsum('btd,dhe->bhte', h, Wv)
            scores = torch.einsum('bhqe,bhke->bhqk', q, k) * scale
            scores = torch.where(mask[None, None], scores, -1000000000.0)
            p = _softmax(scores, axis=-1)
            o = torch.einsum('bhqk,bhke->bhqe', p, v)
            o = torch.einsum('bhte,hed->btd', o, Wo)
            mem = o[:, :M, :].clone()
            outs.append(o[:, M:, :])
        return torch.concatenate(outs, axis=1)

    def _B_ref(x, wqkv, wo):
        B, S, D = x.shape
        H = 32
        Dh = D // H
        qkv = (lambda x, *d: x.permute(*d))((x @ wqkv).reshape(B, S, 3, H, Dh), 2, 0, 3, 1, 4)
        q, k, v = (qkv[0], qkv[1], qkv[2])
        phi = lambda t: torch.where(t > 0, t + 1, torch.exp(t)) + 1e-06
        pq, pk = (phi(q), phi(k))
        kv = torch.einsum('bhsd,bhse->bhde', pk, v)
        z = torch.einsum('bhsd->bhd', pk)
        num = torch.einsum('bhqd,bhde->bhqe', pq, kv)
        den = torch.einsum('bhqd,bhd->bhq', pq, z)[..., None] + 1e-06
        o = num / den
        return (lambda x, *d: x.permute(*d))(o, 0, 2, 1, 3).reshape(B, S, D) @ wo
    x = A_x
    x = x + _A_ref(_layernorm(x, axis=-1), A_mem0, A_Wq, A_Wk, A_Wv, A_Wo, A_seg_len)
    x = x + _B_ref(_layernorm(x, axis=-1), B_wqkv, B_wo)
    x = x + _A_ref(_layernorm(x, axis=-1), A_mem0, A_Wq, A_Wk, A_Wv, A_Wo, A_seg_len)
    x = x + _B_ref(_layernorm(x, axis=-1), B_wqkv, B_wo)
    return x
```

```python
import re

REG_RE = re.compile(r'(?<![\w.])([vas])(\d+|\[(\d+):(\d+)\])(?![\w])')

def regs_of(opnd):
    out = set()
    o = opnd.strip()
    if o in ('vcc', 'vcc_lo', 'vcc_hi'):
        return {('vcc', 0)}
    if o in ('exec', 'exec_lo', 'exec_hi'):
        return {('exec', 0)}
    if o == 'm0':
        return {('m0', 0)}
    if o == 'scc':
        return set()
    for m in REG_RE.finditer(o):
        k = m.group(1)
        if m.group(3) is not None:
            for i in range(int(m.group(3)), int(m.group(4)) + 1):
                out.add((k, i))
        else:
            out.add((k, int(m.group(2))))
    return out

TRANS = ('v_exp_f32', 'v_log_f32', 'v_rcp_f32', 'v_rsq_f32', 'v_sqrt_f32', 'v_sin_f32', 'v_cos_f32', 'v_rcp_iflag_f32')

class Ins:
    __slots__ = ('text', 'op', 'dst', 'src', 'kind', 'passes', 'srcC', 'srcAB', 'nstates', 'label', 'target', 'dpp', 'wide_store')
    def __init__(self, text):
        self.text = text
        self.label = None
        self.target = None
        self.dst = set(); self.src = set(); self.srcC = set(); self.srcAB = set()
        self.passes = 0
        self.nstates = 1
        self.dpp = False
        self.wide_store = False
        t = text.split(';')[0].strip()
        if t.endswith(':'):
            self.kind = 'label'; self.label = t[:-1]; self.op = ''; self.nstates = 0
            return
        if not t or t.startswith('.'):
            self.kind = 'dir'; self.op = ''; self.nstates = 0
            return
        parts = t.split(None, 1)
        op = parts[0]
        self.op = op
        rest = parts[1] if len(parts) > 1 else ''
        ops = [x.strip() for x in re.split(r',(?![^\[]*\])', rest)] if rest else []
        clean = []
        for x in ops:
            clean.append(x)
        ops = clean
        base = op.replace('_e32', '').replace('_e64', '').replace('_dpp', '').replace('_sdwa', '')
        if 'row_' in rest or 'quad_perm' in rest or 'wave_' in rest or op.endswith('_dpp'):
            self.dpp = True
        if op.startswith('v_mfma') or op.startswith('v_smfma'):
            self.kind = 'mfma'
            self.dst = regs_of(ops[0]); self.srcAB = regs_of(ops[1]) | regs_of(ops[2])
            self.srcC = regs_of(ops[3].split()[0])
            self.src = self.srcAB | self.srcC
            self.passes = 8 if '32x32' in op else 4
            if '4x4x4' in op: self.passes = 2
        elif op.startswith('v_'):
            self.kind = 'valu'
            first = lambda x: x.split()[0] if x else x
            if base.startswith('v_cmp'):
                self.dst = regs_of(first(ops[0]))
                if base.startswith('v_cmpx'): self.dst |= {('exec', 0)}
                for x in ops[1:]: self.src |= regs_of(first(x))
            elif base in ('v_permlane32_swap_b32', 'v_permlane16_swap_b32', 'v_swap_b32'):
                self.dst = regs_of(ops[0]) | regs_of(first(ops[1]))
                self.src = set(self.dst)
            elif base in ('v_add_co_u32', 'v_sub_co_u32', 'v_subrev_co_u32'):
                self.dst = regs_of(ops[0]) | regs_of(ops[1])
                for x in ops[2:]: self.src |= regs_of(first(x))
            elif base in ('v_addc_co_u32', 'v_subb_co_u32'):
                self.dst = regs_of(ops[0]) | regs_of(ops[1])
                for x in ops[2:]: self.src |= regs_of(first(x))
            else:
                self.dst = regs_of(ops[0])
                for x in ops[1:]: self.src |= regs_of(first(x))
                if base in ('v_fmac_f32', 'v_mac_f32', 'v_pk_fmac_f16', 'v_dot2c_f32_bf16'):
                    self.src |= self.dst
                if base == 'v_cndmask_b32' and len(ops) == 3:
                    self.src |= {('vcc', 0)}
                if self.dpp:
                    self.src |= self.dst
        elif op.startswith('buffer_') or op.startswith('global_') or op.startswith('flat_'):
            self.kind = 'vmem'
            if op.startswith('buffer_load') :
                if ' lds' in rest:
                    for x in ops: self.src |= regs_of(x.split()[0] if x else x)
                else:
                    self.dst = regs_of(ops[0])
                    for x in ops[1:]: self.src |= regs_of(x.split()[0])
                    if 'd16' in op: self.src |= self.dst
            elif op.startswith('buffer_store') or op.startswith('buffer_atomic'):
                for x in ops: self.src |= regs_of(x.split()[0])
                if op.startswith('buffer_atomic') and 'sc0' in rest: self.dst = regs_of(ops[0])
                if 'x3' in op or 'x4' in op: self.wide_store = True; self.srcC = regs_of(ops[0])
            elif op.startswith('global_load'):
                self.dst = regs_of(ops[0])
                for x in ops[1:]: self.src |= regs_of(x.split()[0])
            else:
                for x in ops: self.src |= regs_of(x.split()[0])
                if op.startswith('global_store') and ('x3' in op or 'x4' in op):
                    self.wide_store = True; self.srcC = regs_of(ops[1])
            if op in ('buffer_inv', 'buffer_wbl2'): self.src = set()
        elif op.startswith('ds_'):
            self.kind = 'ds'
            if op.startswith('ds_read') or op.startswith('ds_bpermute') or op.startswith('ds_permute') or op.startswith('ds_swizzle'):
                self.dst = regs_of(ops[0])
                for x in ops[1:]: self.src |= regs_of(x.split()[0])
                if 'd16' in op: self.src |= self.dst
            else:
                for x in ops: self.src |= regs_of(x.split()[0])
        elif op.startswith('s_'):
            self.kind = 'salu'
            if op == 's_nop':
                self.nstates = int(ops[0], 0) + 1
            elif op.startswith('s_cbranch') or op == 's_branch':
                self.kind = 'branch'; self.target = ops[0]
            elif op.startswith('s_cmp') or op in ('s_waitcnt', 's_barrier', 's_endpgm', 's_sleep', 's_setprio', 's_sethalt'):
                for x in ops: self.src |= regs_of(x)
            else:
                if ops:
                    self.dst = regs_of(ops[0])
                    for x in ops[1:]: self.src |= regs_of(x)
                if 'saveexec' in op: self.dst |= {('exec', 0)}
        else:
            raise ValueError('unknown instruction: ' + text)

def need_states(prod, cons):
    n = 0
    pk, ck = prod.kind, cons.kind
    if pk == 'valu':
        vd = {r for r in prod.dst if r[0] in 'va'}
        sd = {r for r in prod.dst if r[0] in ('s', 'vcc')}
        ed = ('exec', 0) in prod.dst
        if ck == 'mfma':
            if vd & cons.src: n = max(n, 2)
            if ed: n = max(n, 4)
        if ck == 'valu':
            if sd & cons.src:
                n = max(n, 4 if cons.op.startswith(('v_readlane', 'v_writelane')) else 2)
            if vd & cons.src:
                if cons.op.startswith(('v_readlane', 'v_readfirstlane')): n = max(n, 1)
                if cons.op.startswith('v_permlane') or cons.dpp: n = max(n, 2)
                if prod.op.replace('_e32', '').replace('_e64', '') in TRANS: n = max(n, 1)
            if ed:
                if cons.dpp: n = max(n, 5)
                if cons.op.startswith(('v_readlane', 'v_readfirstlane', 'v_writelane', 'v_permlane')): n = max(n, 4)
        if ck == 'vmem' and (sd & cons.src): n = max(n, 5)
        if ck == 'branch' and 'vcc' in cons.op and ('vcc', 0) in sd: n = max(n, 1)
    elif pk == 'mfma':
        p = prod.passes
        tbl_rw = {2: 5, 4: 8, 8: 12, 16: 20}[p]
        tbl_c = {2: 4, 4: 6, 8: 10, 16: 18}[p]
        tbl_war = {2: 1, 4: 3, 8: 7, 16: 15}[p]
        if ck == 'mfma':
            if prod.dst & cons.srcAB: n = max(n, tbl_rw)
            if prod.dst & cons.srcC:
                if prod.dst == cons.srcC and cons.passes == p:
                    n = max(n, 2 if p == 2 else 0)
                else:
                    n = max(n, tbl_c)
            elif prod.dst & cons.dst:
                n = max(n, tbl_c)
        elif ck in ('valu', 'vmem', 'ds'):
            if prod.dst & (cons.src | cons.dst): n = max(n, tbl_rw)
            if ck == 'valu' and (prod.srcC & cons.dst): n = max(n, tbl_war)
    elif pk == 'vmem':
        if prod.wide_store and (prod.srcC & cons.dst):
            n = max(n, 2 if ck == 'valu' else 1)
    elif pk == 'salu':
        if ('m0', 0) in prod.dst and ck in ('vmem', 'ds'): n = max(n, 1)
    return n

class Asm:
    _uid = 0
    def __init__(self):
        self.ins = []
    def __call__(self, text):
        for line in text.split('\n'):
            line = line.strip()
            if not line or line.startswith(';'): continue
            self.ins.append(Ins(line))
    def uid(self, p='L'):
        Asm._uid += 1
        return f'{p}_{Asm._uid}'
    def label(self, name):
        self.ins.append(Ins(name + ':'))
    def fix_hazards(self, window=24):
        out = []
        def required(hist, cons):
            need = 0; dist = 0
            for p in reversed(hist):
                if p.kind in ('label', 'dir'): continue
                r = need_states(p, cons)
                if r > dist: need = max(need, r - dist)
                dist += p.nstates
                if dist >= window: break
            return need
        for i in self.ins:
            if i.kind not in ('label', 'dir'):
                k = required(out, i)
                while k > 0:
                    c = min(k, 16)
                    out.append(Ins(f's_nop {c-1}')); k -= c
            out.append(i)
        labels = {x.label: n for n, x in enumerate(out) if x.kind == 'label'}
        inserts = {}
        for n, x in enumerate(out):
            if x.kind == 'branch' and x.target in labels:
                hist = out[max(0, n - 40):n + 1]
                q = labels[x.target]
                extra = 0
                seq = list(hist)
                cnt = 0
                for y in out[q:q + 40]:
                    if y.kind in ('label', 'dir'): continue
                    k = required(seq, y)
                    extra = max(extra, k)
                    seq.append(y); cnt += y.nstates
                    if cnt >= window: break
                if extra: inserts[n] = extra
        if inserts:
            out2 = []
            for n, x in enumerate(out):
                if n in inserts:
                    k = inserts[n]
                    while k > 0:
                        c = min(k, 16)
                        out2.append(Ins(f's_nop {c-1}')); k -= c
                out2.append(x)
            out = out2
        self.ins = out
    def text(self):
        o = []
        for i in self.ins:
            if i.kind == 'label': o.append(i.text)
            else: o.append('    ' + i.text)
        return '\n'.join(o) + '\n'

def kd(name, vgpr=512, accum=256, sgpr=102):
    return f""".amdhsa_kernel {name}
  .amdhsa_next_free_vgpr {vgpr}
  .amdhsa_next_free_sgpr {sgpr}
  .amdhsa_accum_offset {accum}
  .amdhsa_group_segment_fixed_size 0
  .amdhsa_kernarg_size 104
  .amdhsa_user_sgpr_count 2
  .amdhsa_user_sgpr_kernarg_segment_ptr 1
  .amdhsa_system_sgpr_workgroup_id_x 1
.end_amdhsa_kernel
"""
```

```python
import sys, os
sys.path.insert(0, os.path.dirname(__file__))
from asmlib import Asm, kd

NAME = 'interleave_layers__memory_aug_recurrent_mem_tr__linear_attn_block__prompt'
WT   = 0x0000000
WOT  = 0x0C00000
BQKV = 0x1000000
BWO  = 0x1180000
XN   = 0x1200000
X1   = 0x1400000
X2   = 0x1600000
X3   = 0x1800000
KF   = 0x2000000
VF   = 0x3000000
KMF  = 0x4000000
VMF  = 0x4400000
OF   = 0x5000000
MEMB = 0x6000000
PART = 0x6200000
KVB  = 0x6400000
FLG  = 0x6420000
WS_SIZE = 0x10000000

def srd(a, d, koff, size):
    a(f's_load_dwordx2 s[{d}:{d+1}], s[0:1], {koff}')
def srd_fin(a, d, size):
    a(f's_and_b32 s{d+1}, s{d+1}, 0xffff')
    a(f's_mov_b32 s{d+2}, {size}')
    a(f's_mov_b32 s{d+3}, 0x20000')

def bf16_round(a, v, t):
    a(f'v_cvt_pk_bf16_f32 v{t}, v{v}, v{v}')
    a(f'v_lshlrev_b32 v{v}, 16, v{t}')
def bf16_round2(a, v0, v1, t):
    a(f'v_cvt_pk_bf16_f32 v{t}, v{v0}, v{v1}')
    a(f'v_lshlrev_b32 v{v0}, 16, v{t}')
    a(f'v_and_b32 v{v1}, 0xffff0000, v{t}')

def wave_allreduce(a, v, t, op):
    a(f'{op}_dpp v{v}, v{v}, v{v} quad_perm:[1,0,3,2] row_mask:0xf bank_mask:0xf')
    a(f'{op}_dpp v{v}, v{v}, v{v} quad_perm:[2,3,0,1] row_mask:0xf bank_mask:0xf')
    a(f'{op}_dpp v{v}, v{v}, v{v} row_half_mirror row_mask:0xf bank_mask:0xf')
    a(f'{op}_dpp v{v}, v{v}, v{v} row_mirror row_mask:0xf bank_mask:0xf')
    g_allreduce(a, v, t, op)
def g_allreduce(a, v, t, op):
    a(f'v_mov_b32 v{t}, v{v}')
    a(f'v_permlane16_swap_b32 v{v}, v{t}')
    a(f'{op} v{v}, v{v}, v{t}')
    a(f'v_mov_b32 v{t}, v{v}')
    a(f'v_permlane32_swap_b32 v{v}, v{t}')
    a(f'{op} v{v}, v{v}, v{t}')

kernels = []
launches = []
def finish(label, a, vgpr=512, accum=256):
    a('s_endpgm')
    a.fix_hazards()
    txt = f'.globl {label}\n.p2align 8\n.type {label},@function\n{label}:\n' + a.text()
    kernels.append((label, txt, kd(label, vgpr, accum)))

N_TR = 2304
N_PREP = N_TR + 2 + 32 + 32 + 64 + 12
def gen_prep():
    L = 'prep_kernel'
    a = Asm()
    a('s_cmp_ge_u32 s2, %d' % N_PREP)
    a('s_cbranch_scc1 prep_end')
    srd(a, 4, 96, 0)
    a('s_load_dwordx2 s[20:21], s[0:1], 8')
    a('s_load_dwordx4 s[24:27], s[0:1], 16')
    a('s_load_dwordx4 s[28:31], s[0:1], 32')
    a('s_load_dwordx4 s[32:35], s[0:1], 64')
    a('s_waitcnt lgkmcnt(0)')
    srd_fin(a, 4, WS_SIZE)
    a('v_and_b32 v1, 63, v0')
    a('v_lshrrev_b32 v2, 6, v0')
    a('s_cmp_ge_u32 s2, %d' % N_TR)
    a('s_cbranch_scc1 prep_init')
    a('s_mov_b32 s11, 0x20000')
    a('s_cmp_ge_u32 s2, 1536')
    a('s_cbranch_scc1 prep_t_wo')
    a('s_lshr_b32 s16, s2, 9')
    a('s_and_b32 s17, s2, 511')
    a('s_and_b32 s18, s17, 7')
    a('s_lshr_b32 s19, s17, 3')
    a('s_mov_b32 s8, s24'); a('s_mov_b32 s9, s25')
    a('s_cmp_eq_u32 s16, 1'); a('s_cselect_b32 s8, s26, s8'); a('s_cselect_b32 s9, s27, s9')
    a('s_cmp_eq_u32 s16, 2'); a('s_cselect_b32 s8, s28, s8'); a('s_cselect_b32 s9, s29, s9')
    a('s_and_b32 s9, s9, 0xffff')
    a('s_mov_b32 s10, 0x400000')
    a('s_mov_b32 s12, 8192')
    a('s_lshl_b32 s13, s18, 19')
    a('s_lshl_b32 s36, s19, 7')
    a('s_add_u32 s13, s13, s36')
    a('s_lshl_b32 s14, s16, 22')
    a('s_lshl_b32 s36, s19, 16')
    a('s_add_u32 s14, s14, s36')
    a('s_lshl_b32 s36, s18, 7')
    a('s_add_u32 s14, s14, s36')
    a('s_add_u32 s14, s14, %d' % WT)
    a('s_mov_b32 s15, 1024')
    a('s_branch prep_tr_plain')
    a.label('prep_t_wo')
    a('s_cmp_ge_u32 s2, 2048')
    a('s_cbranch_scc1 prep_t_bqkv')
    a('s_sub_u32 s17, s2, 1536')
    a('s_and_b32 s18, s17, 63')
    a('s_lshr_b32 s19, s17, 6')
    a('s_mov_b32 s8, s30'); a('s_and_b32 s9, s31, 0xffff'); a('s_mov_b32 s10, 0x400000')
    a('s_mov_b32 s12, 1024')
    a('s_lshl_b32 s13, s18, 16')
    a('s_lshl_b32 s36, s19, 7')
    a('s_add_u32 s13, s13, s36')
    a('s_lshl_b32 s14, s19, 19')
    a('s_lshl_b32 s36, s18, 7')
    a('s_add_u32 s14, s14, s36')
    a('s_add_u32 s14, s14, %d' % WOT)
    a('s_mov_b32 s15, 8192')
    a('s_branch prep_tr_perm')
    a.label('prep_t_bqkv')
    a('s_cmp_ge_u32 s2, 2240')
    a('s_cbranch_scc1 prep_t_bwo')
    a('s_sub_u32 s17, s2, 2048')
    a('s_and_b32 s18, s17, 7')
    a('s_lshr_b32 s19, s17, 3')
    a('s_mov_b32 s8, s32'); a('s_and_b32 s9, s33, 0xffff'); a('s_mov_b32 s10, 0x180000')
    a('s_mov_b32 s12, 3072')
    a('s_mul_i32 s13, s18, %d' % (64*3072))
    a('s_lshl_b32 s36, s19, 7')
    a('s_add_u32 s13, s13, s36')
    a('s_lshl_b32 s14, s19, 16')
    a('s_lshl_b32 s36, s18, 7')
    a('s_add_u32 s14, s14, s36')
    a('s_add_u32 s14, s14, %d' % BQKV)
    a('s_mov_b32 s15, 1024')
    a('s_branch prep_tr_plain')
    a.label('prep_t_bwo')
    a('s_sub_u32 s17, s2, 2240')
    a('s_and_b32 s18, s17, 7')
    a('s_lshr_b32 s19, s17, 3')
    a('s_mov_b32 s8, s34'); a('s_and_b32 s9, s35, 0xffff'); a('s_mov_b32 s10, 0x80000')
    a('s_mov_b32 s12, 1024')
    a('s_lshl_b32 s13, s18, 16')
    a('s_lshl_b32 s36, s19, 7')
    a('s_add_u32 s13, s13, s36')
    a('s_lshl_b32 s14, s19, 16')
    a('s_lshl_b32 s36, s18, 7')
    a('s_add_u32 s14, s14, s36')
    a('s_add_u32 s14, s14, %d' % BWO)
    a('s_mov_b32 s15, 1024')
    a('s_branch prep_tr_perm')
    for perm in (0, 1):
        a.label('prep_tr_perm' if perm else 'prep_tr_plain')
        a('v_lshrrev_b32 v3, 3, v0')
        a('v_and_b32 v4, 7, v0')
        a('v_mul_lo_u32 v5, v3, s12')
        a('v_lshl_add_u32 v5, v4, 4, v5')
        a('s_lshl_b32 s36, s12, 5')
        a('s_add_u32 s36, s36, s13')
        a('buffer_load_dwordx4 v[8:11], v5, s[8:11], s13 offen')
        a('buffer_load_dwordx4 v[12:15], v5, s[8:11], s36 offen')
        a('v_mul_u32_u24 v6, 144, v3')
        a('v_lshl_add_u32 v6, v4, 4, v6')
        a('s_waitcnt vmcnt(1)')
        a('ds_write_b128 v6, v[8:11]')
        a('s_waitcnt vmcnt(0)')
        a('ds_write_b128 v6, v[12:15] offset:%d' % (32*144))
        a('s_waitcnt lgkmcnt(0)')
        a('s_barrier')
        for i in range(2):
            a('v_add_u32 v16, %d, v2' % (4*i))
            if perm:
                a('v_lshrrev_b32 v17, 2, v16')
                a('v_and_b32 v18, 3, v16')
                a('v_lshlrev_b32 v17, 5, v17')
                a('v_lshl_add_u32 v17, v18, 2, v17')
                hi = 16
            else:
                a('v_lshlrev_b32 v17, 3, v16')
                hi = 4
            a('v_mul_u32_u24 v17, 144, v17')
            a('v_lshl_add_u32 v17, v1, 1, v17')
            for j in range(8):
                row = j if j < 4 else hi + j - 4
                a('ds_read_u16 v%d, v17 offset:%d' % (24 + j, row*144))
            a('v_mul_lo_u32 v19, v1, s15')
            a('v_lshl_add_u32 v19, v16, 4, v19')
            a('s_waitcnt lgkmcnt(0)')
            for j in range(4):
                a('v_lshl_or_b32 v%d, v%d, 16, v%d' % (20 + j, 25 + 2*j, 24 + 2*j))
            a('buffer_store_dwordx4 v[20:23], v19, s[4:7], s14 offen')
            a('s_nop 1')
        a('s_branch prep_end')
    a.label('prep_init')
    a('s_sub_u32 s17, s2, %d' % N_TR)
    a('s_cmp_ge_u32 s17, 2')
    a('s_cbranch_scc1 prep_fill')
    a('s_mov_b32 s8, s20'); a('s_and_b32 s9, s21, 0xffff'); a('s_mov_b32 s10, 8192'); a('s_mov_b32 s11, 0x20000')
    a('s_lshl_b32 s14, s17, 20')
    a('s_add_u32 s14, s14, %d' % MEMB)
    for i in range(2):
        a('v_add_u32 v3, %d, v0' % (256*i))
        a('v_lshrrev_b32 v4, 5, v3')
        a('v_bfe_u32 v5, v3, 3, 2')
        a('v_and_b32 v6, 7, v3')
        a('v_lshlrev_b32 v7, 10, v6')
        a('v_lshl_add_u32 v7, v4, 6, v7')
        a('v_lshl_add_u32 v7, v5, 4, v7')
        a('buffer_load_dwordx4 v[8:11], v7, s[8:11], 0 offen')
        a('v_lshlrev_b32 v12, 4, v3')
        a('s_waitcnt vmcnt(0)')
        a('buffer_store_dwordx4 v[8:11], v12, s[4:7], s14 offen')
        a('s_nop 1')
    a('s_branch prep_end')
    a.label('prep_fill')
    a('s_sub_u32 s17, s17, 2')
    a('s_mov_b32 s18, -1')
    a('s_mov_b32 s14, %d' % (MEMB + 8192))
    a('s_cmp_ge_u32 s17, 32')
    a('s_cselect_b32 s14, %d, s14' % (MEMB + 0x100000 + 8192 - 32*16384))
    a('s_cmp_ge_u32 s17, 64')
    a('s_cselect_b32 s14, %d, s14' % (PART - 64*16384))
    a('s_cmp_ge_u32 s17, 128')
    a('s_cselect_b32 s14, %d, s14' % (KVB - 128*16384))
    a('s_cselect_b32 s18, 0, s18')
    a('s_lshl_b32 s19, s17, 14')
    a('s_add_u32 s14, s14, s19')
    a('v_mov_b32 v8, s18'); a('v_mov_b32 v9, s18'); a('v_mov_b32 v10, s18'); a('v_mov_b32 v11, s18')
    a('v_lshlrev_b32 v3, 4, v0')
    for i in range(4):
        a('buffer_store_dwordx4 v[8:11], v3, s[4:7], s14 offen offset:%d' % 0 if i == 0 else
          'buffer_store_dwordx4 v[8:11], v3, s[4:7], s14 offen')
        if i < 3: a('s_add_u32 s14, s14, 4096')
    a.label('prep_end')
    finish(L, a, vgpr=32, accum=32)
    launches.append((L, N_PREP, 256, 64*144))

def gen_ln(L, src_off):
    a = Asm()
    a('s_cmp_ge_u32 s2, 512')
    a(f's_cbranch_scc1 {L}_end')
    srd(a, 4, 96, 0)
    a('s_load_dwordx2 s[8:9], s[0:1], 0')
    a('s_waitcnt lgkmcnt(0)')
    srd_fin(a, 4, WS_SIZE)
    srd_fin(a, 8, 0x200000)
    a('s_lshl_b32 s12, s2, 12')
    a('v_lshlrev_b32 v1, 4, v0')
    if src_off is None:
        a('buffer_load_dwordx4 v[4:7], v1, s[8:11], s12 offen')
    else:
        a(f's_add_u32 s13, s12, {src_off}')
        a('buffer_load_dwordx4 v[4:7], v1, s[4:7], s13 offen')
    a('s_waitcnt vmcnt(0)')
    for i in range(4):
        a(f'v_lshlrev_b32 v{8+2*i}, 16, v{4+i}')
        a(f'v_and_b32 v{9+2*i}, 0xffff0000, v{4+i}')
    a('v_add_f32 v16, v8, v9')
    for i in range(2, 8): a(f'v_add_f32 v16, v16, v{8+i}')
    wave_allreduce(a, 16, 17, 'v_add_f32')
    a('v_mul_f32 v16, 0x3b000000, v16')
    a('v_mov_b32 v18, 0')
    for i in range(8):
        a(f'v_sub_f32 v17, v{8+i}, v16')
        a('v_fmac_f32 v18, v17, v17')
    wave_allreduce(a, 18, 17, 'v_add_f32')
    a('v_mul_f32 v18, 0x3b000000, v18')
    bf16_round(a, 18, 17)
    a('v_add_f32 v18, 0x3727c5ac, v18')
    bf16_round(a, 18, 17)
    a('v_sqrt_f32 v18, v18')
    bf16_round(a, 18, 17)
    bf16_round(a, 16, 17)
    a('v_rcp_f32 v19, v18')
    for i in range(0, 8, 2):
        a(f'v_sub_f32 v{8+i}, v{8+i}, v16')
        a(f'v_sub_f32 v{9+i}, v{9+i}, v16')
        bf16_round2(a, 8+i, 9+i, 17)
        for k in (8+i, 9+i):
            a(f'v_mul_f32 v20, v{k}, v19')
            a(f'v_fma_f32 v21, -v20, v18, v{k}')
            a(f'v_fma_f32 v{k}, v21, v19, v20')
        a(f'v_cvt_pk_bf16_f32 v{4+i//2}, v{8+i}, v{9+i}')
    a(f's_add_u32 s13, s12, {XN}')
    a('buffer_store_dwordx4 v[4:7], v1, s[4:7], s13 offen')
    a.label(f'{L}_end')
    finish(L, a, vgpr=32, accum=32)
    launches.append((L, 512, 256, 0))

def body_t1(a, sfx):
    a('s_lshr_b32 s41, s40, 5')
    a('s_and_b32 s42, s40, 31')
    a('v_and_b32 v1, 63, v0')
    a('v_lshrrev_b32 v2, 6, v0')
    a('v_readfirstlane_b32 s43, v2')
    a('s_lshr_b32 s44, s43, 1')
    a('s_and_b32 s45, s43, 1')
    a('v_and_b32 v3, 15, v1')
    a('v_lshrrev_b32 v4, 4, v1')
    a('v_lshlrev_b32 v5, 10, v3')
    a('v_lshl_add_u32 v5, v4, 4, v5')
    a('s_lshl_b32 s46, s41, 17')
    a('s_lshl_b32 s47, s44, 16')
    a('s_add_u32 s46, s46, s47')
    a(f's_add_u32 s48, s46, {XN}')
    for t in range(1, 4): a(f's_add_u32 s{48+t}, s48, {t*16*1024}')
    a('s_lshl_b32 s46, s42, 17')
    a('s_lshl_b32 s47, s45, 16')
    a('s_add_u32 s46, s46, s47')
    a(f's_add_u32 s52, s46, {WT + 4096*1024}')
    for t in range(1, 4): a(f's_add_u32 s{52+t}, s52, {t*16*1024}')
    a(f's_add_u32 s56, s46, {WT + 8192*1024}')
    for t in range(1, 4): a(f's_add_u32 s{56+t}, s56, {t*16*1024}')
    ACK = 128; ACV = 192
    FR = [16, 64]
    for r in range(128, 256): a(f'v_mov_b32 v{r}, 0')
    def loads(ks, b):
        f = FR[b]
        for t in range(4): a(f'buffer_load_dwordx4 v[{f+4*t}:{f+4*t+3}], v5, s[4:7], s{48+t} offen offset:{ks*64}')
        for t in range(4): a(f'buffer_load_dwordx4 v[{f+16+4*t}:{f+16+4*t+3}], v5, s[4:7], s{52+t} offen offset:{ks*64}')
        for t in range(4): a(f'buffer_load_dwordx4 v[{f+32+4*t}:{f+32+4*t+3}], v5, s[4:7], s{56+t} offen offset:{ks*64}')
    loads(0, 0)
    for ks in range(16):
        b = ks & 1
        if ks < 15:
            loads(ks+1, b ^ 1)
            a('s_waitcnt vmcnt(12)')
        else:
            a('s_waitcnt vmcnt(0)')
        f = FR[b]
        for et in range(4):
            for tt in range(4):
                d = ACK + (et*4+tt)*4
                a(f'v_mfma_f32_16x16x32_bf16 v[{d}:{d+3}], v[{f+16+4*et}:{f+16+4*et+3}], v[{f+4*tt}:{f+4*tt+3}], v[{d}:{d+3}]')
        for tt in range(4):
            for et in range(4):
                d = ACV + (tt*4+et)*4
                a(f'v_mfma_f32_16x16x32_bf16 v[{d}:{d+3}], v[{f+4*tt}:{f+4*tt+3}], v[{f+32+4*et}:{f+32+4*et+3}], v[{d}:{d+3}]')
    a('v_lshlrev_b32 v6, 8, v3')
    a('v_lshl_add_u32 v6, v4, 4, v6')
    a('s_lshl_b32 s46, s42, 19')
    a('s_lshl_b32 s47, s41, 15')
    a('s_add_u32 s46, s46, s47')
    a('s_lshl_b32 s47, s44, 14')
    a('s_add_u32 s46, s46, s47')
    a('s_lshl_b32 s47, s45, 7')
    a('s_add_u32 s46, s46, s47')
    a(f's_add_u32 s46, s46, {KF}')
    k = 0
    for tt in range(4):
        if tt: a('s_add_u32 s46, s46, 4096')
        for mm in range(2):
            o = 16 + 4*(k % 8); k += 1
            d0 = ACK + ((2*mm)*4+tt)*4; d1 = ACK + ((2*mm+1)*4+tt)*4
            a(f'v_cvt_pk_bf16_f32 v{o}, v{d0}, v{d0+1}')
            a(f'v_cvt_pk_bf16_f32 v{o+1}, v{d0+2}, v{d0+3}')
            a(f'v_cvt_pk_bf16_f32 v{o+2}, v{d1}, v{d1+1}')
            a(f'v_cvt_pk_bf16_f32 v{o+3}, v{d1+2}, v{d1+3}')
            a(f'buffer_store_dwordx4 v[{o}:{o+3}], v6, s[4:7], s46 offen offset:{mm*64} {sfx}')
    a('v_lshlrev_b32 v7, 6, v3')
    a('v_lshl_add_u32 v7, v4, 4, v7')
    a('s_lshl_b32 s46, s42, 19')
    a('s_lshl_b32 s47, s41, 15')
    a('s_add_u32 s46, s46, s47')
    a('s_lshl_b32 s47, s44, 14')
    a('s_add_u32 s46, s46, s47')
    a('s_lshl_b32 s47, s45, 12')
    a('s_add_u32 s46, s46, s47')
    a(f's_add_u32 s46, s46, {VF}')
    for sg in range(2):
        if sg: a('s_add_u32 s46, s46, 8192')
        for et in range(4):
            o = 48 + 4*(k % 8); k += 1
            d0 = ACV + ((2*sg)*4+et)*4; d1 = ACV + ((2*sg+1)*4+et)*4
            a(f'v_cvt_pk_bf16_f32 v{o}, v{d0}, v{d0+1}')
            a(f'v_cvt_pk_bf16_f32 v{o+1}, v{d0+2}, v{d0+3}')
            a(f'v_cvt_pk_bf16_f32 v{o+2}, v{d1}, v{d1+1}')
            a(f'v_cvt_pk_bf16_f32 v{o+3}, v{d1+2}, v{d1+3}')
            a(f'buffer_store_dwordx4 v[{o}:{o+3}], v7, s[4:7], s46 offen offset:{et*1024} {sfx}')

def gen_t1(L):
    a = Asm()
    a('s_cmp_ge_u32 s2, 512')
    a(f's_cbranch_scc1 {L}_end')
    srd(a, 4, 96, 0)
    a('s_waitcnt lgkmcnt(0)')
    srd_fin(a, 4, WS_SIZE)
    a('s_mov_b32 s40, s2')
    body_t1(a, '')
    a.label(f'{L}_end')
    finish(L, a, vgpr=256, accum=256)
    launches.append((L, 512, 256, 0))


LDS_SC = 131072
LDS_OB = LDS_SC + 12288
LDS_ROLE = LDS_OB + 4096
LDS_REC = LDS_ROLE + 256
SPIN_MAX = 1 << 20

def interleave(a, mf, va, per=3):
    i = 0
    for m in mf:
        a(m)
        for _ in range(per):
            if i < len(va): a(va[i]); i += 1
    while i < len(va): a(va[i]); i += 1

def role_select(a, L):
    a('v_lshrrev_b32 v1, 6, v0')
    a('v_readfirstlane_b32 s14, v1')
    a('s_cmp_lg_u32 s14, 0')
    a(f's_cbranch_scc1 {L}_role_wait')
    a('s_getreg_b32 s26, hwreg(HW_REG_XCC_ID)')
    a('s_and_b32 s26, s26, 7')
    a('s_mov_b64 s[28:29], exec')
    a('s_mov_b64 exec, 1')
    a('s_lshl_b32 s27, s26, 2')
    a('v_mov_b32 v2, s27')
    a('v_mov_b32 v3, 1')
    a('buffer_atomic_add v3, v2, s[8:11], 0 offen sc0')
    a('s_waitcnt vmcnt(0)')
    a('v_readfirstlane_b32 s27, v3')
    a('s_mov_b32 s12, -1')
    a('s_cmp_ge_u32 s27, 32')
    a(f's_cbranch_scc1 {L}_role_done')
    a('v_mov_b32 v2, 32')
    a('s_add_u32 s26, s26, 1')
    a('s_cmp_lg_u32 s27, 31')
    a(f's_cbranch_scc1 {L}_role_poll0')
    a('v_mov_b32 v4, s26')
    a('v_mov_b32 v5, 0')
    a('buffer_atomic_cmpswap v[4:5], v2, s[8:11], 0 offen sc0')
    a('s_waitcnt vmcnt(0)')
    a.label(f'{L}_role_poll0')
    a('s_mov_b32 s36, 0')
    a.label(f'{L}_role_poll')
    a('buffer_load_dword v3, v2, s[8:11], 0 offen sc1')
    a('s_waitcnt vmcnt(0)')
    a('v_readfirstlane_b32 s37, v3')
    a('s_cmp_lg_u32 s37, 0')
    a(f's_cbranch_scc1 {L}_role_dec')
    a('s_sleep 4')
    a('s_add_u32 s36, s36, 1')
    a('s_cmp_lt_u32 s36, 4000')
    a(f's_cbranch_scc1 {L}_role_poll')
    a('v_mov_b32 v4, 100')
    a('v_mov_b32 v5, 0')
    a('buffer_atomic_cmpswap v[4:5], v2, s[8:11], 0 offen sc0')
    a('s_waitcnt vmcnt(0)')
    a(f's_branch {L}_role_poll0')
    a.label(f'{L}_role_dec')
    a('s_cmp_eq_u32 s37, s26')
    a('s_cselect_b32 s12, s27, s12')
    a('s_cmp_lg_u32 s37, 100')
    a(f's_cbranch_scc1 {L}_role_done')
    a('v_mov_b32 v2, 36')
    a('v_mov_b32 v3, 1')
    a('buffer_atomic_add v3, v2, s[8:11], 0 offen sc0')
    a('s_waitcnt vmcnt(0)')
    a('v_readfirstlane_b32 s27, v3')
    a('s_or_b32 s26, s27, 256')
    a('s_cmp_lt_u32 s27, 32')
    a('s_cselect_b32 s12, s26, s12')
    a.label(f'{L}_role_done')
    a('v_mov_b32 v2, %d' % LDS_ROLE)
    a('v_mov_b32 v3, s12')
    a('ds_write_b32 v2, v3')
    a('s_waitcnt lgkmcnt(0)')
    a('s_mov_b64 exec, s[28:29]')
    a.label(f'{L}_role_wait')
    a('s_barrier')
    a('v_mov_b32 v2, %d' % LDS_ROLE)
    a('ds_read_b32 v3, v2')
    a('s_waitcnt lgkmcnt(0)')
    a('v_readfirstlane_b32 s12, v3')

def body_rec(a, L, layer, xs):
    a('s_lshr_b32 s13, s12, 8')
    a('s_and_b32 s12, s12, 31')
    a('v_and_b32 v0, 63, v0')
    a('v_and_b32 v12, 15, v0')
    a('v_lshrrev_b32 v13, 4, v0')
    a('v_and_b32 v14, 7, v0')
    a('v_cmp_gt_u32 s[30:31], 8, v12')
    a('v_cmp_gt_u32 s[32:33], 8, v0')
    a('v_cmp_gt_u32 s[34:35], 32, v0')
    a('v_lshlrev_b32 v1, 7, v13')
    a('v_lshl_add_u32 v1, v14, 4, v1')
    a('s_lshl_b32 s26, s14, 6')
    a('v_lshlrev_b32 v2, 8, v12')
    a('v_lshl_add_u32 v2, v13, 4, v2')
    a('v_add_u32 v2, s26, v2')
    a('s_lshl_b32 s26, s14, 11')
    a('v_lshlrev_b32 v3, 6, v12')
    a('v_lshl_add_u32 v3, v13, 4, v3')
    a('v_add_u32 v3, s26, v3')
    a('v_lshlrev_b32 v4, 6, v12')
    a('v_lshl_add_u32 v4, v13, 4, v4')
    a('s_lshl_b32 s26, s14, 7')
    a('v_lshrrev_b32 v5, 3, v0')
    a('v_lshlrev_b32 v5, 9, v5')
    a('v_lshl_add_u32 v5, v14, 4, v5')
    a('v_add_u32 v5, s26, v5')
    a('v_bfe_u32 v15, v0, 1, 1')
    a('v_lshlrev_b32 v6, 7, v15')
    a('v_bfe_u32 v15, v0, 2, 1')
    a('v_lshl_add_u32 v6, v15, 4, v6')
    a('v_and_b32 v15, 1, v0')
    a('v_lshl_add_u32 v6, v15, 3, v6')
    a('s_lshl_b32 s26, s14, 5')
    a('v_add_u32 v6, s26, v6')
    a('v_mov_b32 v7, v2')
    a('s_lshl_b32 s26, s14, 9')
    a('v_lshlrev_b32 v8, 4, v12')
    a('v_lshl_add_u32 v8, v13, 3, v8')
    a('v_add_u32 v8, s26, v8')
    a('v_lshlrev_b32 v9, 4, v0')
    a('s_lshl_b32 s26, s14, 15')
    a('v_add_u32 v10, s26, v9')
    a('v_lshlrev_b32 v11, 10, v12')
    a('v_lshl_add_u32 v11, v13, 4, v11')
    a('s_lshl_b32 s26, s12, 17')
    a('s_lshl_b32 s27, s14, 15')
    a('s_add_u32 s26, s26, s27')
    a(f's_add_u32 s26, s26, {WT}')
    def wreg(which, et, ks):
        i = (et*16 + ks)*4
        if which == 0: return f'a[{i}:{i+3}]'
        if which == 1: return f'a[{128+i}:{128+i+3}]'
        return f'v[{128+i}:{128+i+3}]'
    for which in range(3):
        for et in range(2):
            a(f's_add_u32 s27, s26, {which*4096*1024 + et*16*1024}')
            for ks in range(16):
                a(f'buffer_load_dwordx4 {wreg(which, et, ks)}, v11, s[4:7], s27 offen offset:{ks*64}')
    a('v_lshlrev_b32 v15, 13, v12')
    a('v_lshl_add_u32 v15, v13, 4, v15')
    a('s_lshl_b32 s26, s14, 20')
    a('s_lshl_b32 s27, s12, 8')
    a('s_add_u32 s26, s26, s27')
    a(f's_add_u32 s26, s26, {WOT}')
    for dt in range(8):
        for m in range(4):
            r = 64 + ((dt % 4)*4 + m)*4
            a(f'buffer_load_dwordx4 v[{r}:{r+3}], v15, s[4:7], s26 offen offset:{m*64}')
        a('s_add_u32 s26, s26, %d' % (16*8192))
        if dt % 4 == 3:
            a('s_waitcnt vmcnt(0)')
            for d2 in range(dt-3, dt+1):
                for m in range(4):
                    r = 64 + ((d2 % 4)*4 + m)*4
                    a(f'ds_write_b128 v10, v[{r}:{r+3}] offset:{(d2*4+m)*1024}')
            a('s_waitcnt lgkmcnt(0)')
    a(f's_mov_b32 s16, {MEMB + layer*0x100000}')
    a('s_add_u32 s17, s16, 4096')
    a('s_lshr_b32 s26, s12, 1')
    a('s_lshl_b32 s26, s26, 9')
    a('s_and_b32 s27, s12, 1')
    a('s_lshl_b32 s27, s27, 8')
    a('s_add_u32 s18, s26, s27')
    a(f's_add_u32 s18, s18, {MEMB + layer*0x100000 + 8192}')
    a('s_lshl_b32 s26, s12, 19')
    a(f's_add_u32 s19, s26, {KF}')
    a('s_add_u32 s20, s19, 4096')
    a(f's_add_u32 s21, s26, {VF}')
    a('s_lshl_b32 s26, s12, 9')
    a('s_lshl_b32 s27, s14, 17')
    a('s_add_u32 s22, s26, s27')
    a(f's_add_u32 s22, s22, {PART}')
    a('s_lshl_b32 s26, s12, 14')
    a(f's_add_u32 s23, s26, {PART}')
    a('s_lshl_b32 s26, s12, 17')
    a(f's_add_u32 s24, s26, {KMF}')
    a(f's_add_u32 s25, s26, {VMF}')
    a('s_mov_b32 s15, 0')
    a('s_lshl_b32 s26, s14, 10')
    a('s_mul_i32 s27, s14, 3072')
    a(f'v_add_u32 v12, {LDS_SC}, v9')
    a('v_add_u32 v13, s27, v12')
    a(f'v_add_u32 v14, {LDS_OB}, v9')
    a('v_add_u32 v15, s26, v14')
    def prefetch():
        a(f'buffer_load_dwordx4 v[16:19], v2, s[4:7], s19 offen {xs}')
        a(f'buffer_load_dwordx4 v[20:23], v2, s[4:7], s20 offen {xs}')
        a(f'buffer_load_dwordx4 v[24:27], v3, s[4:7], s21 offen {xs}')
        a(f'buffer_load_dwordx4 v[28:31], v3, s[4:7], s21 offen offset:1024 {xs}')
    prefetch()
    a('s_waitcnt vmcnt(0)')
    a('s_barrier')
    a.label(f'{L}_step')
    def memload(k):
        a(f'buffer_load_dwordx4 v[{64+4*k}:{64+4*k+3}], v1, s[4:7], s{16 + k//8} offen offset:{(k%8)*512} sc1')
    for k in range(16): memload(k)
    for r in range(32, 56): a(f'v_mov_b32 v{r}, 0')
    for b in range(4):
        a(f's_waitcnt vmcnt({12-4*b})')
        a('s_mov_b32 s36, 0')
        a.label(f'{L}_gchk{b}')
        base = 64 + 16*b
        a(f'v_max3_u32 v56, v{base}, v{base+1}, v{base+2}')
        for i in range(3, 15, 2): a(f'v_max3_u32 v56, v56, v{base+i}, v{base+i+1}')
        a(f'v_max_u32 v56, v56, v{base+15}')
        a('v_cmp_eq_u32 vcc, -1, v56')
        a(f's_cbranch_vccz {L}_gok{b}')
        a('s_add_u32 s36, s36, 1')
        a(f's_cmp_gt_u32 s36, {SPIN_MAX}')
        a(f's_cbranch_scc1 {L}_gok{b}')
        for k in range(4*b, 4*b+4): memload(k)
        a('s_waitcnt vmcnt(0)')
        a(f's_branch {L}_gchk{b}')
        a.label(f'{L}_gok{b}')
        for ks in range(4*b, 4*b+4):
            mf = f'v[{64+4*ks}:{64+4*ks+3}]'
            for which in range(2):
                for et in range(2):
                    d = 32 + which*8 + et*4
                    a(f'v_mfma_f32_16x16x32_bf16 v[{d}:{d+3}], {wreg(which, et, ks)}, {mf}, v[{d}:{d+3}]')
    for i in range(4): a(f'v_cvt_pk_bf16_f32 v{56+i}, v{32+2*i}, v{33+2*i}')
    for i in range(4): a(f'v_cvt_pk_bf16_f32 v{60+i}, v{40+2*i}, v{41+2*i}')
    a('v_mfma_f32_16x16x32_bf16 v[32:35], v[16:19], v[56:59], 0')
    a('v_mfma_f32_16x16x32_bf16 v[36:39], v[20:23], v[56:59], 0')
    a('v_mfma_f32_16x16x32_bf16 v[40:43], v[60:63], v[56:59], 0')
    a('s_mov_b64 exec, s[30:31]')
    a(f'buffer_store_dwordx4 v[60:63], v7, s[4:7], s24 offen {xs}')
    a('s_mov_b64 exec, -1')
    vm = []
    for ks in range(16):
        for et in range(2):
            d = 48 + et*4
            vm.append(f'v_mfma_f32_16x16x32_bf16 v[{d}:{d+3}], v[{64+4*ks}:{64+4*ks+3}], {wreg(2, et, ks)}, v[{d}:{d+3}]')
    for m in vm[:4]: a(m)
    for t in range(3): a(f'ds_write_b128 v13, v[{32+4*t}:{32+4*t+3}] offset:{t*1024}')
    for m in vm[4:8]: a(m)
    a('s_waitcnt lgkmcnt(0)')
    a('s_barrier')
    T = [16, 17, 18, 19, 20, 21, 22, 23, 44, 45, 46, 47]
    TQ = [16, 20, 44]
    va = []
    for w2 in range(4):
        for t in range(3):
            dq = (32 + 4*t) if w2 == 0 else TQ[t]
            va.append(f'ds_read_b128 v[{dq}:{dq+3}], v12 offset:{w2*3072 + t*1024}')
        if w2 > 0:
            va.append('s_waitcnt lgkmcnt(0)')
            for t in range(3):
                for i in range(4): va.append(f'v_add_f32 v{32+4*t+i}, v{32+4*t+i}, v{TQ[t]+i}')
    S = list(range(32, 44))
    for i in range(0, 12, 2):
        va += [f'v_cvt_pk_bf16_f32 v16, v{S[i]}, v{S[i+1]}', f'v_lshlrev_b32 v{S[i]}, 16, v16', f'v_and_b32 v{S[i+1]}, 0xffff0000, v16']
    for i in range(12): va.append(f'v_mul_f32 v{S[i]}, 0x3db504f3, v{S[i]}')
    for i in range(0, 12, 2):
        va += [f'v_cvt_pk_bf16_f32 v16, v{S[i]}, v{S[i+1]}', f'v_lshlrev_b32 v{S[i]}, 16, v16', f'v_and_b32 v{S[i+1]}, 0xffff0000, v16']
    va.append('v_mov_b32 v17, 0xf149f2ca')
    for i in range(8, 12): va.append(f'v_cndmask_b32 v{S[i]}, v17, v{S[i]}, s[34:35]')
    va.append(f'v_max3_f32 v18, v{S[0]}, v{S[1]}, v{S[2]}')
    for i in range(3, 11, 2): va.append(f'v_max3_f32 v18, v18, v{S[i]}, v{S[i+1]}')
    va.append(f'v_max_f32 v18, v18, v{S[11]}')
    for sw in ('v_permlane16_swap_b32', 'v_permlane32_swap_b32'):
        va += ['v_mov_b32 v19, v18', f'{sw} v18, v19', 'v_max_f32 v18, v18, v19']
    va.append('v_mul_f32 v18, 0xbfb8aa3b, v18')
    va.append('v_mov_b32 v17, 0x3fb8aa3b')
    for i in range(12):
        va.append(f'v_fma_f32 v{S[i]}, v{S[i]}, v17, v18')
        va.append(f'v_exp_f32 v{S[i]}, v{S[i]}')
    va.append(f'v_add_f32 v18, v{S[0]}, v{S[1]}')
    for i in range(2, 12): va.append(f'v_add_f32 v18, v18, v{S[i]}')
    for sw in ('v_permlane16_swap_b32', 'v_permlane32_swap_b32'):
        va += ['v_mov_b32 v19, v18', f'{sw} v18, v19', 'v_add_f32 v18, v18, v19']
    va.append('v_rcp_f32 v18, v18')
    for i in range(12): va.append(f'v_mul_f32 v{S[i]}, v{S[i]}, v18')
    for i in range(4): va.append(f'v_cvt_pk_bf16_f32 v{16+i}, v{32+2*i}, v{33+2*i}')
    va += ['v_cvt_pk_bf16_f32 v20, v40, v41', 'v_cvt_pk_bf16_f32 v21, v42, v43', 'v_mov_b32 v22, 0', 'v_mov_b32 v23, 0']
    interleave(a, vm[8:], va, per=5)
    for dt in range(4):
        for m in range(4):
            r = 64 + (dt*4+m)*4
            a(f'ds_read_b128 v[{r}:{r+3}], v10 offset:{(dt*4+m)*1024}')
    a('v_cvt_pk_bf16_f32 v56, v48, v49'); a('v_cvt_pk_bf16_f32 v57, v50, v51'); a('v_mov_b32 v58, 0'); a('v_mov_b32 v59, 0')
    a('v_cvt_pk_bf16_f32 v60, v52, v53'); a('v_cvt_pk_bf16_f32 v61, v54, v55'); a('v_mov_b32 v62, 0'); a('v_mov_b32 v63, 0')
    a('v_mfma_f32_16x16x32_bf16 v[32:35], v[24:27], v[16:19], 0')
    a('v_mfma_f32_16x16x32_bf16 v[36:39], v[28:31], v[16:19], 0')
    a('v_mfma_f32_16x16x32_bf16 v[32:35], v[56:59], v[20:23], v[32:35]')
    a('v_mfma_f32_16x16x32_bf16 v[36:39], v[60:63], v[20:23], v[36:39]')
    a('s_mov_b64 exec, s[34:35]')
    a(f'buffer_store_dwordx2 v[56:57], v8, s[4:7], s25 offen {xs}')
    a(f'buffer_store_dwordx2 v[60:61], v8, s[4:7], s25 offen offset:256 {xs}')
    a('s_mov_b64 exec, -1')
    for i in range(4): a(f'v_cvt_pk_bf16_f32 v{40+i}, v{32+2*i}, v{33+2*i}')
    a('ds_write_b128 v15, v[40:43]')
    a('s_waitcnt lgkmcnt(0)')
    a('s_barrier')
    for m in range(4): a(f'ds_read_b128 v[{44+4*m}:{44+4*m+3}], v14 offset:{m*1024}')
    a('s_waitcnt lgkmcnt(0)')
    def wacc(dt): return 16 + 4*dt if dt < 7 else 60
    a('s_mov_b32 s26, s22')
    def pstore(dt):
        d = wacc(dt)
        a('s_mov_b64 exec, s[30:31]')
        a('s_cmp_lg_u32 s13, 0')
        a(f's_cbranch_scc1 {L}_ps{dt}')
        a(f'buffer_store_dwordx4 v[{d}:{d+3}], v4, s[4:7], s26 offen')
        a(f's_branch {L}_pe{dt}')
        a.label(f'{L}_ps{dt}')
        a(f'buffer_store_dwordx4 v[{d}:{d+3}], v4, s[4:7], s26 offen sc1')
        a.label(f'{L}_pe{dt}')
        a('s_mov_b64 exec, -1')
        a('s_add_u32 s26, s26, 16384')
    for dt in range(8):
        d = wacc(dt)
        if dt == 4: a('s_waitcnt lgkmcnt(0)')
        for m in range(4):
            r = 64 + ((dt % 4)*4+m)*4
            c = '0' if m == 0 else f'v[{d}:{d+3}]'
            a(f'v_mfma_f32_16x16x32_bf16 v[{d}:{d+3}], v[{r}:{r+3}], v[{44+4*m}:{44+4*m+3}], {c}')
        if dt < 4:
            for m in range(4):
                r = 64 + (dt*4+m)*4
                a(f'ds_read_b128 v[{r}:{r+3}], v10 offset:{((dt+4)*4+m)*1024}')
        if dt >= 2: pstore(dt-2)
    pstore(6); pstore(7)
    a('s_add_u32 s19, s19, 8192'); a('s_add_u32 s20, s20, 8192'); a('s_add_u32 s21, s21, 8192')
    a('s_add_u32 s24, s24, 2048'); a('s_add_u32 s25, s25, 2048')
    a('s_add_u32 s26, s23, 4096'); a('s_add_u32 s27, s23, 8192'); a('s_add_u32 s28, s23, 12288')
    RS = ['s23', 's26', 's27', 's28']
    a('s_mov_b32 s36, 0')
    a.label(f'{L}_rpoll')
    for i in range(4): a(f'buffer_load_dwordx4 v[{64+4*i}:{64+4*i+3}], v5, s[4:7], {RS[i]} offen sc1')
    a('s_waitcnt vmcnt(0)')
    a('v_max3_u32 v80, v64, v65, v66')
    for i in range(3, 15, 2): a(f'v_max3_u32 v80, v80, v{64+i}, v{64+i+1}')
    a('v_max_u32 v80, v80, v79')
    a('v_cmp_eq_u32 vcc, -1, v80')
    a(f's_cbranch_vccz {L}_rok')
    a('s_add_u32 s36, s36, 1')
    a(f's_cmp_le_u32 s36, {SPIN_MAX}')
    a(f's_cbranch_scc1 {L}_rpoll')
    a.label(f'{L}_rok')
    for i in range(4):
        a(f'v_add_f32 v{80+i}, v{64+i}, v{68+i}')
        a(f'v_add_f32 v{84+i}, v{72+i}, v{76+i}')
    for i in range(4): a(f'v_add_f32 v{80+i}, v{80+i}, v{84+i}')
    for i in range(4): a(f'v_add_f32_dpp v{80+i}, v{80+i}, v{80+i} row_ror:8 row_mask:0xf bank_mask:0xf')
    for sw in ('v_permlane16_swap_b32', 'v_permlane32_swap_b32'):
        for i in range(4): a(f'v_mov_b32 v{84+i}, v{80+i}')
        for i in range(4): a(f'{sw} v{80+i}, v{84+i}')
        for i in range(4): a(f'v_add_f32 v{80+i}, v{80+i}, v{84+i}')
    a('v_cvt_pk_bf16_f32 v88, v80, v81'); a('v_cvt_pk_bf16_f32 v89, v82, v83')
    for i in range(4): a(f'v_mov_b32 v{92+i}, -1')
    a('s_cmp_lg_u32 s13, 0')
    a(f's_cbranch_scc1 {L}_ms')
    a('s_mov_b64 exec, s[32:33]')
    a('buffer_store_dwordx2 v[88:89], v6, s[4:7], s18 offen')
    a('s_mov_b64 exec, -1')
    for i in range(4): a(f'buffer_store_dwordx4 v[92:95], v5, s[4:7], {RS[i]} offen')
    a(f's_branch {L}_me')
    a.label(f'{L}_ms')
    a('s_mov_b64 exec, s[32:33]')
    a('buffer_store_dwordx2 v[88:89], v6, s[4:7], s18 offen sc1')
    a('s_mov_b64 exec, -1')
    for i in range(4): a(f'buffer_store_dwordx4 v[92:95], v5, s[4:7], {RS[i]} offen sc1')
    a.label(f'{L}_me')
    prefetch()
    a('s_add_u32 s16, s16, 8192'); a('s_add_u32 s17, s17, 8192'); a('s_add_u32 s18, s18, 8192')
    a('s_xor_b32 s22, s22, 0x80000'); a('s_xor_b32 s23, s23, 0x80000')
    a('s_add_u32 s15, s15, 1')
    a('s_cmp_lt_u32 s15, 64')
    a(f's_cbranch_scc1 {L}_step')

def gen_rec(L, layer):
    a = Asm()
    a('s_cmp_ge_u32 s2, 256')
    a(f's_cbranch_scc1 {L}_end')
    srd(a, 4, 96, 0)
    srd(a, 8, 88, 0)
    a('s_waitcnt lgkmcnt(0)')
    srd_fin(a, 4, WS_SIZE)
    srd_fin(a, 8, 256)
    role_select(a, L)
    a('s_cmp_eq_u32 s12, -1')
    a(f's_cbranch_scc1 {L}_end')
    body_rec(a, L, layer, '')
    a.label(f'{L}_end')
    finish(L, a, vgpr=512, accum=256)
    launches.append((L, 256, 256, LDS_REC))


def softmax_block(a, S, valid_fix, t0, t1, t2):
    n = len(S)
    for rnd in range(2):
        for i in range(0, n, 2):
            a(f'v_cvt_pk_bf16_f32 v{t0}, v{S[i]}, v{S[i+1]}'); a(f'v_lshlrev_b32 v{S[i]}, 16, v{t0}'); a(f'v_and_b32 v{S[i+1]}, 0xffff0000, v{t0}')
        if rnd == 0:
            for i in range(n): a(f'v_mul_f32 v{S[i]}, 0x3db504f3, v{S[i]}')
    valid_fix(a)
    a(f'v_max_f32 v{t1}, v{S[0]}, v{S[1]}')
    for i in range(2, n, 2): a(f'v_max3_f32 v{t1}, v{t1}, v{S[i]}, v{S[i+1]}')
    g_allreduce(a, t1, t2, 'v_max_f32')
    a(f'v_mul_f32 v{t1}, 0xbfb8aa3b, v{t1}')
    a(f'v_mov_b32 v{t0}, 0x3fb8aa3b')
    for i in range(n):
        a(f'v_fma_f32 v{S[i]}, v{S[i]}, v{t0}, v{t1}')
        a(f'v_exp_f32 v{S[i]}, v{S[i]}')
    a(f'v_add_f32 v{t1}, v{S[0]}, v{S[1]}')
    for i in range(2, n): a(f'v_add_f32 v{t1}, v{t1}, v{S[i]}')
    g_allreduce(a, t1, t2, 'v_add_f32')
    a(f'v_rcp_f32 v{t1}, v{t1}')
    for i in range(n): a(f'v_mul_f32 v{S[i]}, v{S[i]}, v{t1}')

def body_t2(a, ld, st, wait_fn=None):
    a('s_lshr_b32 s41, s40, 5')
    a('s_and_b32 s42, s40, 31')
    a('v_and_b32 v1, 63, v0')
    a('v_lshrrev_b32 v2, 6, v0')
    a('v_readfirstlane_b32 s43, v2')
    a('s_lshl_b32 s44, s41, 2')
    a('s_add_u32 s44, s44, s43')
    a('v_and_b32 v3, 15, v1')
    a('v_lshrrev_b32 v4, 4, v1')
    a('v_lshlrev_b32 v5, 10, v3')
    a('v_lshl_add_u32 v5, v4, 4, v5')
    a('s_lshl_b32 s46, s44, 15')
    a(f's_add_u32 s48, s46, {XN}')
    a('s_add_u32 s49, s48, 16384')
    a('s_lshl_b32 s46, s42, 17')
    a(f's_add_u32 s52, s46, {WT}')
    for t in range(1, 8): a(f's_add_u32 s{52+t}, s52, {t*16*1024}')
    for r in range(128, 192): a(f'v_mov_b32 v{r}, 0')
    FR = [16, 56]
    def loads(ks, b):
        f = FR[b]
        for t in range(2): a(f'buffer_load_dwordx4 v[{f+4*t}:{f+4*t+3}], v5, s[4:7], s{48+t} offen offset:{ks*64}')
        for t in range(8): a(f'buffer_load_dwordx4 v[{f+8+4*t}:{f+8+4*t+3}], v5, s[4:7], s{52+t} offen offset:{ks*64}')
    loads(0, 0)
    for ks in range(16):
        b = ks & 1
        if ks < 15:
            loads(ks+1, b ^ 1); a('s_waitcnt vmcnt(10)')
        else:
            a('s_waitcnt vmcnt(0)')
        f = FR[b]
        for et in range(8):
            for tt in range(2):
                d = 128 + (et*2+tt)*4
                a(f'v_mfma_f32_16x16x32_bf16 v[{d}:{d+3}], v[{f+8+4*et}:{f+8+4*et+3}], v[{f+4*tt}:{f+4*tt+3}], v[{d}:{d+3}]')
    if wait_fn: wait_fn(a)
    a('v_lshlrev_b32 v6, 8, v3')
    a('v_lshl_add_u32 v6, v4, 4, v6')
    a('v_and_b32 v7, 7, v1')
    a('v_lshlrev_b32 v7, 8, v7')
    a('v_lshl_add_u32 v7, v4, 4, v7')
    a('v_lshlrev_b32 v8, 6, v3')
    a('v_lshl_add_u32 v8, v4, 4, v8')
    a('v_and_b32 v9, 1, v4')
    a('v_lshlrev_b32 v9, 3, v9')
    a('v_lshl_add_u32 v9, v3, 4, v9')
    a('s_lshl_b32 s46, s42, 19')
    a('s_lshl_b32 s47, s44, 13')
    a('s_add_u32 s46, s46, s47')
    a(f's_add_u32 s60, s46, {KF}')
    a('s_add_u32 s61, s60, 4096')
    a(f's_add_u32 s62, s46, {VF}')
    a('s_add_u32 s63, s62, 4096')
    a('s_lshl_b32 s46, s42, 17')
    a('s_lshl_b32 s47, s44, 11')
    a('s_add_u32 s46, s46, s47')
    a(f's_add_u32 s64, s46, {KMF}')
    a(f's_add_u32 s65, s46, {VMF}')
    for kt in range(2):
        for m in range(4):
            r = 16 + (kt*4+m)*4
            a(f'buffer_load_dwordx4 v[{r}:{r+3}], v6, s[4:7], s{60+kt} offen offset:{m*64} {ld}')
    for m in range(4):
        r = 48 + m*4
        a(f'buffer_load_dwordx4 v[{r}:{r+3}], v7, s[4:7], s64 offen offset:{m*64} {ld}')
    for et in range(8):
        r = 192 + et*4
        a(f'buffer_load_dwordx4 v[{r}:{r+3}], v8, s[4:7], s{62+et//4} offen offset:{(et%4)*1024} {ld}')
    for et in range(8):
        r = 224 + et*4
        a(f'buffer_load_dwordx2 v[{r}:{r+1}], v9, s[4:7], s65 offen offset:{et*256} {ld}')
        a(f'v_mov_b32 v{r+2}, 0'); a(f'v_mov_b32 v{r+3}, 0')
    for m in range(4):
        for tt in range(2):
            o = 96 + (m*2+tt)*4
            d0 = 128 + ((2*m)*2+tt)*4; d1 = 128 + ((2*m+1)*2+tt)*4
            a(f'v_cvt_pk_bf16_f32 v{o}, v{d0}, v{d0+1}'); a(f'v_cvt_pk_bf16_f32 v{o+1}, v{d0+2}, v{d0+3}')
            a(f'v_cvt_pk_bf16_f32 v{o+2}, v{d1}, v{d1+1}'); a(f'v_cvt_pk_bf16_f32 v{o+3}, v{d1+2}, v{d1+3}')
    a('v_lshlrev_b32 v10, 2, v4')
    for i in range(4):
        a(f'v_add_u32 v11, {i}, v10')
        a(f'v_cmp_le_u32 s[{66+2*i}:{67+2*i}], v11, v3')
    a('v_cmp_gt_u32 s[74:75], 2, v4')
    a('s_waitcnt vmcnt(16)')
    tiles = [(16, 0, 128), (16, 1, 132), (32, 1, 136), (48, 0, 140), (48, 1, 144)]
    for (kb, tt, d) in tiles:
        for m in range(4):
            c = '0' if m == 0 else f'v[{d}:{d+3}]'
            a(f'v_mfma_f32_16x16x32_bf16 v[{d}:{d+3}], v[{kb+4*m}:{kb+4*m+3}], v[{96+(m*2+tt)*4}:{96+(m*2+tt)*4+3}], {c}')
    a('v_mov_b32 v12, 0xf149f2ca')
    def fix0(a):
        for i in range(4): a(f'v_cndmask_b32 v{128+i}, v12, v{128+i}, s[{66+2*i}:{67+2*i}]')
        for i in range(4): a(f'v_cndmask_b32 v{140+i}, v12, v{140+i}, s[74:75]')
    def fix1(a):
        for i in range(4): a(f'v_cndmask_b32 v{136+i}, v12, v{136+i}, s[{66+2*i}:{67+2*i}]')
        for i in range(4): a(f'v_cndmask_b32 v{144+i}, v12, v{144+i}, s[74:75]')
    softmax_block(a, [128,129,130,131,140,141,142,143], fix0, 13, 14, 15)
    softmax_block(a, [132,133,134,135,136,137,138,139,144,145,146,147], fix1, 13, 14, 15)
    a('v_cvt_pk_bf16_f32 v80, v128, v129'); a('v_cvt_pk_bf16_f32 v81, v130, v131'); a('v_mov_b32 v82, 0'); a('v_mov_b32 v83, 0')
    a('v_cvt_pk_bf16_f32 v84, v140, v141'); a('v_cvt_pk_bf16_f32 v85, v142, v143'); a('v_mov_b32 v86, 0'); a('v_mov_b32 v87, 0')
    a('v_cvt_pk_bf16_f32 v88, v132, v133'); a('v_cvt_pk_bf16_f32 v89, v134, v135'); a('v_cvt_pk_bf16_f32 v90, v136, v137'); a('v_cvt_pk_bf16_f32 v91, v138, v139')
    a('v_cvt_pk_bf16_f32 v92, v144, v145'); a('v_cvt_pk_bf16_f32 v93, v146, v147'); a('v_mov_b32 v94, 0'); a('v_mov_b32 v95, 0')
    a('s_waitcnt vmcnt(0)')
    for et in range(8):
        for tt in range(2):
            d = 16 + (et*2+tt)*4
            a(f'v_mfma_f32_16x16x32_bf16 v[{d}:{d+3}], v[{192+4*et}:{192+4*et+3}], v[{80+8*tt}:{80+8*tt+3}], 0')
    for et in range(8):
        for tt in range(2):
            d = 16 + (et*2+tt)*4
            a(f'v_mfma_f32_16x16x32_bf16 v[{d}:{d+3}], v[{224+4*et}:{224+4*et+3}], v[{84+8*tt}:{84+8*tt+3}], v[{d}:{d+3}]')
    a('v_lshlrev_b32 v6, 13, v3')
    a('v_lshl_add_u32 v6, v4, 4, v6')
    a('s_lshl_b32 s46, s44, 18')
    a('s_lshl_b32 s47, s42, 8')
    a('s_add_u32 s46, s46, s47')
    a(f's_add_u32 s46, s46, {OF}')
    a('s_add_u32 s47, s46, %d' % (16*8192))
    for m in range(4):
        for tt in range(2):
            o = 96 + (m*2+tt)*4
            d0 = 16 + ((2*m)*2+tt)*4; d1 = 16 + ((2*m+1)*2+tt)*4
            a(f'v_cvt_pk_bf16_f32 v{o}, v{d0}, v{d0+1}'); a(f'v_cvt_pk_bf16_f32 v{o+1}, v{d0+2}, v{d0+3}')
            a(f'v_cvt_pk_bf16_f32 v{o+2}, v{d1}, v{d1+1}'); a(f'v_cvt_pk_bf16_f32 v{o+3}, v{d1+2}, v{d1+3}')
            a(f'buffer_store_dwordx4 v[{o}:{o+3}], v6, s[4:7], s{46+tt} offen offset:{m*64} {st}')

def gen_t2(L):
    a = Asm()
    a('s_cmp_ge_u32 s2, 512')
    a(f's_cbranch_scc1 {L}_end')
    srd(a, 4, 96, 0)
    a('s_waitcnt lgkmcnt(0)')
    srd_fin(a, 4, WS_SIZE)
    a('s_mov_b32 s40, s2')
    body_t2(a, '', '')
    a.label(f'{L}_end')
    finish(L, a, vgpr=256, accum=256)
    launches.append((L, 512, 256, 0))

def resid_store(a, acc, xr, t, voff, srd_x, sx, srd_o, so, off, ldx):
    a(f'v_cvt_pk_bf16_f32 v{t}, v{acc}, v{acc+1}'); a(f'v_lshlrev_b32 v{acc}, 16, v{t}'); a(f'v_and_b32 v{acc+1}, 0xffff0000, v{t}')
    a(f'v_cvt_pk_bf16_f32 v{t}, v{acc+2}, v{acc+3}'); a(f'v_lshlrev_b32 v{acc+2}, 16, v{t}'); a(f'v_and_b32 v{acc+3}, 0xffff0000, v{t}')
    a(f'v_lshlrev_b32 v{t}, 16, v{xr}'); a(f'v_add_f32 v{acc}, v{acc}, v{t}')
    a(f'v_and_b32 v{t}, 0xffff0000, v{xr}'); a(f'v_add_f32 v{acc+1}, v{acc+1}, v{t}')
    a(f'v_lshlrev_b32 v{t}, 16, v{xr+1}'); a(f'v_add_f32 v{acc+2}, v{acc+2}, v{t}')
    a(f'v_and_b32 v{t}, 0xffff0000, v{xr+1}'); a(f'v_add_f32 v{acc+3}, v{acc+3}, v{t}')
    a(f'v_cvt_pk_bf16_f32 v{xr}, v{acc}, v{acc+1}'); a(f'v_cvt_pk_bf16_f32 v{xr+1}, v{acc+2}, v{acc+3}')
    a(f'buffer_store_dwordx2 v[{xr}:{xr+1}], v{voff}, {srd_o}, {so} offen offset:{off}')

def body_t3(a, xsrd, xoff, dst, ld):
    a('s_lshr_b32 s41, s40, 3')
    a('s_and_b32 s42, s40, 7')
    a('v_and_b32 v1, 63, v0')
    a('v_lshrrev_b32 v2, 6, v0')
    a('v_readfirstlane_b32 s43, v2')
    a('v_and_b32 v3, 15, v1')
    a('v_lshrrev_b32 v4, 4, v1')
    a('v_lshlrev_b32 v5, 13, v3')
    a('v_lshl_add_u32 v5, v4, 4, v5')
    a('s_lshl_b32 s46, s42, 19')
    a('s_lshl_b32 s47, s43, 11')
    a('s_add_u32 s46, s46, s47')
    a(f's_add_u32 s48, s46, {WOT}')
    for t in range(1, 4): a(f's_add_u32 s{48+t}, s48, {t*16*8192}')
    a('s_lshl_b32 s46, s41, 19')
    a('s_add_u32 s46, s46, s47')
    a(f's_add_u32 s52, s46, {OF}')
    for t in range(1, 4): a(f's_add_u32 s{52+t}, s52, {t*16*8192}')
    for r in range(128, 192): a(f'v_mov_b32 v{r}, 0')
    FR = [16, 48]
    def loads(ks, b):
        f = FR[b]
        for t in range(4): a(f'buffer_load_dwordx4 v[{f+4*t}:{f+4*t+3}], v5, s[4:7], s{48+t} offen offset:{ks*64}')
        for t in range(4): a(f'buffer_load_dwordx4 v[{f+16+4*t}:{f+16+4*t+3}], v5, s[4:7], s{52+t} offen offset:{ks*64} {ld}')
    loads(0, 0)
    for ks in range(32):
        b = ks & 1
        if ks < 31:
            loads(ks+1, b ^ 1); a('s_waitcnt vmcnt(8)')
        else:
            a('s_waitcnt vmcnt(0)')
        f = FR[b]
        for dt in range(4):
            for tt in range(4):
                d = 128 + (dt*4+tt)*4
                a(f'v_mfma_f32_16x16x32_bf16 v[{d}:{d+3}], v[{f+4*dt}:{f+4*dt+3}], v[{f+16+4*tt}:{f+16+4*tt+3}], v[{d}:{d+3}]')
    a('v_lshlrev_b32 v6, 10, v3')
    a('v_lshl_add_u32 v6, v4, 3, v6')
    a('s_lshl_b32 s46, s41, 16')
    a('s_lshl_b32 s47, s43, 14')
    a('s_add_u32 s46, s46, s47')
    a('s_lshl_b32 s47, s42, 7')
    a('s_add_u32 s46, s46, s47')
    a(f's_add_u32 s47, s46, {dst}')
    if xoff: a(f's_add_u32 s46, s46, {xoff}')
    for dt in range(4): a(f'buffer_load_dwordx2 v[{96+2*dt}:{97+2*dt}], v6, {xsrd}, s46 offen offset:{dt*32}')
    a('v_lshlrev_b32 v7, 4, v1')
    a('s_lshl_b32 s44, s43, 14')
    a('v_add_u32 v8, s44, v7')
    for i in range(16): a(f'ds_write_b128 v8, v[{128+4*i}:{128+4*i+3}] offset:{i*1024}')
    a('s_waitcnt lgkmcnt(0)')
    a('s_barrier')
    a('s_lshl_b32 s44, s43, 10')
    a('v_add_u32 v8, s44, v7')
    for dt in range(4):
        for w2 in range(4):
            r = 16 + (dt*4+w2)*4
            a(f'ds_read_b128 v[{r}:{r+3}], v8 offset:{w2*16384 + dt*4096}')
    a('s_waitcnt lgkmcnt(0)')
    a('s_waitcnt vmcnt(0)')
    for dt in range(4):
        r = 16 + dt*16
        for i in range(4):
            a(f'v_add_f32 v{r+i}, v{r+i}, v{r+4+i}')
            a(f'v_add_f32 v{r+8+i}, v{r+8+i}, v{r+12+i}')
            a(f'v_add_f32 v{r+i}, v{r+i}, v{r+8+i}')
        resid_store(a, r, 96+2*dt, 9, 6, xsrd, 's46', 's[4:7]', 's47', dt*32, '')
    a('s_barrier')

def gen_t3(L, xoff, dst):
    a = Asm()
    a('s_cmp_ge_u32 s2, 256')
    a(f's_cbranch_scc1 {L}_end')
    srd(a, 4, 96, 0)
    srd(a, 76, 0, 0)
    a('s_waitcnt lgkmcnt(0)')
    srd_fin(a, 4, WS_SIZE)
    srd_fin(a, 76, 0x200000)
    a('s_mov_b32 s40, s2')
    if xoff is None: body_t3(a, 's[76:79]', 0, dst, '')
    else: body_t3(a, 's[4:7]', xoff, dst, '')
    a.label(f'{L}_end')
    finish(L, a, vgpr=256, accum=256)
    launches.append((L, 256, 256, 65536))

def phi(a, r, t, t2):
    a(f'v_add_f32 v{t}, 1.0, v{r}')
    a(f'v_mul_f32 v{t2}, 0x3fb8aa3b, v{r}')
    a(f'v_exp_f32 v{t2}, v{t2}')
    a(f'v_cmp_lt_f32 vcc, 0, v{r}')
    a(f'v_cndmask_b32 v{r}, v{t2}, v{t}, vcc')
    bf16_round(a, r, t)
    a(f'v_add_f32 v{r}, 0x358637bd, v{r}')
    bf16_round(a, r, t)

def gen_b1(L, layer):
    a = Asm()
    a('s_cmp_ge_u32 s2, 128')
    a(f's_cbranch_scc1 {L}_end')
    srd(a, 4, 96, 0)
    a('s_waitcnt lgkmcnt(0)')
    srd_fin(a, 4, WS_SIZE)
    a('s_lshr_b32 s41, s2, 1')
    a('s_and_b32 s42, s2, 1')
    a('v_and_b32 v1, 63, v0')
    a('v_lshrrev_b32 v2, 6, v0')
    a('v_readfirstlane_b32 s43, v2')
    a('v_and_b32 v3, 15, v1')
    a('v_lshrrev_b32 v4, 4, v1')
    a('v_lshlrev_b32 v5, 10, v3')
    a('v_lshl_add_u32 v5, v4, 4, v5')
    a('s_lshl_b32 s44, s42, 4')
    a('s_lshl_b32 s45, s43, 2')
    a('s_add_u32 s44, s44, s45')
    a('s_lshl_b32 s46, s41, 15')
    a(f's_add_u32 s48, s46, {XN}')
    a('s_add_u32 s49, s48, 16384')
    a('s_lshl_b32 s46, s44, 14')
    a(f's_add_u32 s52, s46, {BQKV + 512*1024}')
    for t in range(1, 4): a(f's_add_u32 s{52+t}, s52, {t*16*1024}')
    for t in range(4): a(f's_add_u32 s{56+t}, s{52+t}, {512*1024}')
    for r in range(128, 192): a(f'v_mov_b32 v{r}, 0')
    FR = [16, 56]
    def loads(ks, b):
        f = FR[b]
        for t in range(2): a(f'buffer_load_dwordx4 v[{f+4*t}:{f+4*t+3}], v5, s[4:7], s{48+t} offen offset:{ks*64}')
        for t in range(8): a(f'buffer_load_dwordx4 v[{f+8+4*t}:{f+8+4*t+3}], v5, s[4:7], s{52+t} offen offset:{ks*64}')
    loads(0, 0)
    for ks in range(16):
        b = ks & 1
        if ks < 15:
            loads(ks+1, b ^ 1); a('s_waitcnt vmcnt(10)')
        else:
            a('s_waitcnt vmcnt(0)')
        f = FR[b]
        for n in range(8):
            for tt in range(2):
                d = 128 + (n*2+tt)*4
                a(f'v_mfma_f32_16x16x32_bf16 v[{d}:{d+3}], v[{f+4*tt}:{f+4*tt+3}], v[{f+8+4*n}:{f+8+4*n+3}], v[{d}:{d+3}]')
    for n in range(4):
        for r in range(128 + n*8, 128 + n*8 + 8):
            bf16_round(a, r, 10)
            phi(a, r, 10, 11)
    for n in range(8):
        o = 16 + 4*n; d = 128 + n*8
        for i in range(4): a(f'v_cvt_pk_bf16_f32 v{o+i}, v{d+2*i}, v{d+2*i+1}')
    for i in range(4): a(f'v_mov_b32 v{48+i}, 0x3f803f80')
    for n in range(4):
        a(f'v_mfma_f32_16x16x32_bf16 v[{64+8*n}:{64+8*n+3}], v[{16+4*n}:{16+4*n+3}], v[{32+4*n}:{32+4*n+3}], 0')
        a(f'v_mfma_f32_16x16x32_bf16 v[{68+8*n}:{68+8*n+3}], v[{16+4*n}:{16+4*n+3}], v[48:51], 0')
    a('v_mul_u32_u24 v6, 272, v4')
    a('v_lshl_add_u32 v6, v3, 2, v6')
    a('s_mul_i32 s46, s44, 1088')
    a(f's_add_u32 s46, s46, {KVB + layer*0x10000}')
    a('v_cmp_eq_u32 s[60:61], 0, v3')
    for n in range(4):
        for i in range(4):
            a(f'buffer_atomic_add_f32 v{64+8*n+i}, v6, s[4:7], s46 offen offset:{n*1088 + i*68}')
    a('s_mov_b64 exec, s[60:61]')
    for n in range(4):
        for i in range(4):
            a(f'buffer_atomic_add_f32 v{68+8*n+i}, v6, s[4:7], s46 offen offset:{n*1088 + i*68 + 64}')
    a('s_mov_b64 exec, -1')
    a.label(f'{L}_end')
    finish(L, a, vgpr=256, accum=256)
    launches.append((L, 128, 256, 0))

def gen_b2(L, layer, xoff, dst):
    a = Asm()
    a('s_cmp_ge_u32 s2, 64')
    a(f's_cbranch_scc1 {L}_end')
    srd(a, 4, 96, 0)
    srd(a, 76, 80, 0)
    a('s_waitcnt lgkmcnt(0)')
    srd_fin(a, 4, WS_SIZE)
    srd_fin(a, 76, 0x200000)
    a('s_mov_b32 s41, s2')
    a('v_and_b32 v1, 63, v0')
    a('v_lshrrev_b32 v2, 6, v0')
    a('v_readfirstlane_b32 s43, v2')
    a('v_and_b32 v3, 15, v1')
    a('v_lshrrev_b32 v4, 4, v1')
    a('v_lshlrev_b32 v5, 10, v3')
    a('v_lshl_add_u32 v5, v4, 4, v5')
    a('s_lshl_b32 s46, s41, 15')
    a(f's_add_u32 s48, s46, {XN}')
    a('s_add_u32 s49, s48, 16384')
    a('s_lshl_b32 s46, s43, 17')
    a(f's_add_u32 s52, s46, {BQKV}')
    for t in range(1, 8): a(f's_add_u32 s{52+t}, s52, {t*16*1024}')
    a('v_mul_u32_u24 v6, 272, v4')
    a('v_lshl_add_u32 v7, v3, 2, v6')
    a('s_mul_i32 s46, s43, %d' % (8*1088))
    a(f's_add_u32 s46, s46, {KVB + layer*0x10000}')
    for hh in range(8):
        if hh == 3 or hh == 6: a('s_add_u32 s46, s46, %d' % (3*1088))
        ho = (hh % 3)*1088
        for j in range(4):
            a(f'buffer_load_dword v{192+8*hh+j}, v7, s[4:7], s46 offen offset:{ho + j*68}')
            a(f'buffer_load_dword v{196+8*hh+j}, v6, s[4:7], s46 offen offset:{ho + j*68 + 64}')
    for r in range(128, 192): a(f'v_mov_b32 v{r}, 0')
    FR = [16, 56]
    def loads(ks, b):
        f = FR[b]
        for t in range(2): a(f'buffer_load_dwordx4 v[{f+4*t}:{f+4*t+3}], v5, s[4:7], s{48+t} offen offset:{ks*64}')
        for t in range(8): a(f'buffer_load_dwordx4 v[{f+8+4*t}:{f+8+4*t+3}], v5, s[4:7], s{52+t} offen offset:{ks*64}')
    loads(0, 0)
    for ks in range(16):
        b = ks & 1
        if ks < 15:
            loads(ks+1, b ^ 1); a('s_waitcnt vmcnt(10)')
        else:
            a('s_waitcnt vmcnt(0)')
        f = FR[b]
        for n in range(8):
            for tt in range(2):
                d = 128 + (n*2+tt)*4
                a(f'v_mfma_f32_16x16x32_bf16 v[{d}:{d+3}], v[{f+8+4*n}:{f+8+4*n+3}], v[{f+4*tt}:{f+4*tt+3}], v[{d}:{d+3}]')
    for hh in range(8):
        b = 192 + 8*hh; o = 96 + 4*hh
        a(f'v_cvt_pk_bf16_f32 v{o}, v{b}, v{b+1}'); a(f'v_cvt_pk_bf16_f32 v{o+1}, v{b+2}, v{b+3}')
        a(f'v_cvt_pk_bf16_f32 v{o+2}, v{b+4}, v{b+5}'); a(f'v_cvt_pk_bf16_f32 v{o+3}, v{b+6}, v{b+7}')
    for r in range(128, 192):
        bf16_round(a, r, 10)
        phi(a, r, 10, 11)
    for i in range(16):
        d = 128 + 4*i
        a(f'v_cvt_pk_bf16_f32 v{16+2*i}, v{d}, v{d+1}'); a(f'v_cvt_pk_bf16_f32 v{17+2*i}, v{d+2}, v{d+3}')
    for hh in range(8):
        for tt in range(2):
            i = hh*2+tt
            a(f'v_mfma_f32_16x16x16_bf16 v[{192+4*i}:{192+4*i+3}], v[{96+4*hh}:{97+4*hh}], v[{16+2*i}:{17+2*i}], 0')
            a(f'v_mfma_f32_16x16x16_bf16 v[{128+4*i}:{128+4*i+3}], v[{98+4*hh}:{99+4*hh}], v[{16+2*i}:{17+2*i}], 0')
    for i in range(16):
        dn = 128 + 4*i; nm = 192 + 4*i
        bf16_round(a, dn, 10)
        a(f'v_add_f32 v{dn}, 0x358637bd, v{dn}')
        bf16_round(a, dn, 10)
        a(f'v_rcp_f32 v11, v{dn}')
        bf16_round2(a, nm, nm+1, 10); bf16_round2(a, nm+2, nm+3, 10)
        for k in range(4):
            a(f'v_mul_f32 v12, v{nm+k}, v11')
            a(f'v_fma_f32 v13, -v12, v{dn}, v{nm+k}')
            a(f'v_fma_f32 v{nm+k}, v13, v11, v12')
    a('v_lshlrev_b32 v8, 4, v1')
    a('s_lshl_b32 s44, s43, 13')
    a('v_add_u32 v9, s44, v8')
    for bb in range(4):
        for tt in range(2):
            o = 16 + (bb*2+tt)*4
            d0 = 192 + ((2*bb)*2+tt)*4; d1 = 192 + ((2*bb+1)*2+tt)*4
            a(f'v_cvt_pk_bf16_f32 v{o}, v{d0}, v{d0+1}'); a(f'v_cvt_pk_bf16_f32 v{o+1}, v{d0+2}, v{d0+3}')
            a(f'v_cvt_pk_bf16_f32 v{o+2}, v{d1}, v{d1+1}'); a(f'v_cvt_pk_bf16_f32 v{o+3}, v{d1+2}, v{d1+3}')
            a(f'ds_write_b128 v9, v[{o}:{o+3}] offset:{(bb*2+tt)*1024}')
    a('s_waitcnt lgkmcnt(0)')
    a('s_barrier')
    for i in range(32): a(f'ds_read_b128 v[{128+4*i}:{128+4*i+3}], v8 offset:{i*1024}')
    a('s_lshl_b32 s46, s43, 17')
    a(f's_add_u32 s52, s46, {BWO}')
    for t in range(1, 8): a(f's_add_u32 s{52+t}, s52, {t*16*1024}')
    FR2 = [0, 32]
    a('v_mov_b32 v63, v5')
    def loads2(ks, b):
        f = 16 + 0*b
        for t in range(8): a(f'buffer_load_dwordx4 v[{f+4*t}:{f+4*t+3}], v5, s[4:7], s{52+t} offen offset:{ks*64}')
    for r in range(64, 128): a(f'v_mov_b32 v{r}, 0')
    a('s_waitcnt lgkmcnt(0)')
    for ks in range(16):
        loads2(ks, 0)
        a('s_waitcnt vmcnt(0)')
        for dt in range(8):
            for tt in range(2):
                d = 64 + (dt*2+tt)*4
                a(f'v_mfma_f32_16x16x32_bf16 v[{d}:{d+3}], v[{16+4*dt}:{16+4*dt+3}], v[{128+(ks*2+tt)*4}:{128+(ks*2+tt)*4+3}], v[{d}:{d+3}]')
    a('v_lshlrev_b32 v6, 10, v3')
    a('v_lshl_add_u32 v6, v4, 3, v6')
    a('s_lshl_b32 s46, s41, 15')
    a('s_lshl_b32 s47, s43, 8')
    a('s_add_u32 s46, s46, s47')
    a(f's_add_u32 s60, s46, {xoff}')
    a('s_add_u32 s61, s60, 16384')
    if dst is None:
        a('s_mov_b32 s62, s46'); osrd = 's[76:79]'
    else:
        a(f's_add_u32 s62, s46, {dst}'); osrd = 's[4:7]'
    a('s_add_u32 s63, s62, 16384')
    for dt in range(8):
        for tt in range(2):
            i = dt*2+tt
            a(f'buffer_load_dwordx2 v[{16+2*i}:{17+2*i}], v6, s[4:7], s{60+tt} offen offset:{dt*32}')
    a('s_waitcnt vmcnt(0)')
    for dt in range(8):
        for tt in range(2):
            i = dt*2+tt
            resid_store(a, 64+4*i, 16+2*i, 9, 6, None, None, osrd, f's{62+tt}', dt*32, '')
    a.label(f'{L}_end')
    finish(L, a, vgpr=256, accum=256)
    launches.append((L, 64, 256, 32768))

def emit(path):
    hdr = open(os.path.join(os.path.dirname(__file__), '..', 'cdna_kernels', NAME + '.s.ref')).read().split('; Override')[0]
    s = hdr
    for (L, g, b, lds) in launches:
        s += f'; @launch kernel={L} grid=({g},1,1) block=({b},1,1) lds={lds}\n'
    s += '.amdgcn_target "amdgcn-amd-amdhsa--gfx950"\n.text\n'
    seen = set()
    for (L, t, k) in kernels:
        s += t
    s += '.section .rodata,"a"\n'
    for (L, t, k) in kernels:
        s += '.p2align 6\n' + k
    open(path, 'w').write(s)

if __name__ == '__main__':
    gen_prep()
    gen_ln('lna0_kernel', None)
    gen_t1('t1a_kernel')
    gen_rec('rec0_kernel', 0)
    gen_t2('t2a_kernel')
    gen_t3('t3a_kernel', None, X1)
    gen_ln('lnb0_kernel', X1)
    gen_b1('b1a_kernel', 0)
    gen_b2('b2a_kernel', 0, X1, X2)
    gen_ln('lna1_kernel', X2)
    launches.append(('t1a_kernel', 512, 256, 0))
    gen_rec('rec1_kernel', 1)
    launches.append(('t2a_kernel', 512, 256, 0))
    gen_t3('t3b_kernel', X2, X3)
    gen_ln('lnb1_kernel', X3)
    gen_b1('b1b_kernel', 1)
    gen_b2('b2b_kernel', 1, X3, None)
    emit(os.path.join(os.path.dirname(__file__), '..', 'cdna_kernels', NAME + '.s'))
```

```python
import sys, os
sys.path.insert(0, os.path.dirname(__file__))
from asmlib import Asm, kd

NAME = 'interleave_layers__memory_aug_recurrent_mem_tr__linear_attn_block__prompt'
WT   = 0x0000000
WOT  = 0x0C00000
BQKV = 0x1000000
BWO  = 0x1180000
XN   = 0x1200000
X1   = 0x1400000
X2   = 0x1600000
X3   = 0x1800000
KF   = 0x2000000
VF   = 0x3000000
KMF  = 0x4000000
VMF  = 0x4400000
OF   = 0x5000000
MEMB = 0x6000000
PART = 0x6200000
KVB  = 0x6400000
FLG  = 0x6420000
WS_SIZE = 0x10000000

def srd(a, d, koff, size):
    a(f's_load_dwordx2 s[{d}:{d+1}], s[0:1], {koff}')
def srd_fin(a, d, size):
    a(f's_and_b32 s{d+1}, s{d+1}, 0xffff')
    a(f's_mov_b32 s{d+2}, {size}')
    a(f's_mov_b32 s{d+3}, 0x20000')

def bf16_round(a, v, t):
    a(f'v_cvt_pk_bf16_f32 v{t}, v{v}, v{v}')
    a(f'v_lshlrev_b32 v{v}, 16, v{t}')
def bf16_round2(a, v0, v1, t):
    a(f'v_cvt_pk_bf16_f32 v{t}, v{v0}, v{v1}')
    a(f'v_lshlrev_b32 v{v0}, 16, v{t}')
    a(f'v_and_b32 v{v1}, 0xffff0000, v{t}')

def wave_allreduce(a, v, t, op):
    a(f'{op}_dpp v{v}, v{v}, v{v} quad_perm:[1,0,3,2] row_mask:0xf bank_mask:0xf')
    a(f'{op}_dpp v{v}, v{v}, v{v} quad_perm:[2,3,0,1] row_mask:0xf bank_mask:0xf')
    a(f'{op}_dpp v{v}, v{v}, v{v} row_half_mirror row_mask:0xf bank_mask:0xf')
    a(f'{op}_dpp v{v}, v{v}, v{v} row_mirror row_mask:0xf bank_mask:0xf')
    g_allreduce(a, v, t, op)
def g_allreduce(a, v, t, op):
    a(f'v_mov_b32 v{t}, v{v}')
    a(f'v_permlane16_swap_b32 v{v}, v{t}')
    a(f'{op} v{v}, v{v}, v{t}')
    a(f'v_mov_b32 v{t}, v{v}')
    a(f'v_permlane32_swap_b32 v{v}, v{t}')
    a(f'{op} v{v}, v{v}, v{t}')

kernels = []
launches = []
def finish(label, a, vgpr=512, accum=256):
    a('s_endpgm')
    a.fix_hazards()
    txt = f'.globl {label}\n.p2align 8\n.type {label},@function\n{label}:\n' + a.text()
    kernels.append((label, txt, kd(label, vgpr, accum)))

N_TR = 2304
N_PREP = N_TR + 2 + 32 + 32 + 64 + 12
def gen_prep():
    L = 'prep_kernel'
    a = Asm()
    a('s_cmp_ge_u32 s2, %d' % N_PREP)
    a('s_cbranch_scc1 prep_end')
    srd(a, 4, 96, 0)
    a('s_load_dwordx2 s[20:21], s[0:1], 8')
    a('s_load_dwordx4 s[24:27], s[0:1], 16')
    a('s_load_dwordx4 s[28:31], s[0:1], 32')
    a('s_load_dwordx4 s[32:35], s[0:1], 64')
    a('s_waitcnt lgkmcnt(0)')
    srd_fin(a, 4, WS_SIZE)
    a('v_and_b32 v1, 63, v0')
    a('v_lshrrev_b32 v2, 6, v0')
    a('s_cmp_ge_u32 s2, %d' % N_TR)
    a('s_cbranch_scc1 prep_init')
    a('s_mov_b32 s11, 0x20000')
    a('s_cmp_ge_u32 s2, 1536')
    a('s_cbranch_scc1 prep_t_wo')
    a('s_lshr_b32 s16, s2, 9')
    a('s_and_b32 s17, s2, 511')
    a('s_and_b32 s18, s17, 7')
    a('s_lshr_b32 s19, s17, 3')
    a('s_mov_b32 s8, s24'); a('s_mov_b32 s9, s25')
    a('s_cmp_eq_u32 s16, 1'); a('s_cselect_b32 s8, s26, s8'); a('s_cselect_b32 s9, s27, s9')
    a('s_cmp_eq_u32 s16, 2'); a('s_cselect_b32 s8, s28, s8'); a('s_cselect_b32 s9, s29, s9')
    a('s_and_b32 s9, s9, 0xffff')
    a('s_mov_b32 s10, 0x400000')
    a('s_mov_b32 s12, 8192')
    a('s_lshl_b32 s13, s18, 19')
    a('s_lshl_b32 s36, s19, 7')
    a('s_add_u32 s13, s13, s36')
    a('s_lshl_b32 s14, s16, 22')
    a('s_lshl_b32 s36, s19, 16')
    a('s_add_u32 s14, s14, s36')
    a('s_lshl_b32 s36, s18, 11')
    a('s_add_u32 s14, s14, s36')
    a('s_add_u32 s14, s14, %d' % WT)
    a('s_mov_b32 s15, 16384')
    a('s_branch prep_tr_plain')
    a.label('prep_t_wo')
    a('s_cmp_ge_u32 s2, 2048')
    a('s_cbranch_scc1 prep_t_bqkv')
    a('s_sub_u32 s17, s2, 1536')
    a('s_and_b32 s18, s17, 63')
    a('s_lshr_b32 s19, s17, 6')
    a('s_mov_b32 s8, s30'); a('s_and_b32 s9, s31, 0xffff'); a('s_mov_b32 s10, 0x400000')
    a('s_mov_b32 s12, 1024')
    a('s_lshl_b32 s13, s18, 16')
    a('s_lshl_b32 s36, s19, 7')
    a('s_add_u32 s13, s13, s36')
    a('s_lshl_b32 s14, s19, 19')
    a('s_lshl_b32 s36, s18, 11')
    a('s_add_u32 s14, s14, s36')
    a('s_add_u32 s14, s14, %d' % WOT)
    a('s_mov_b32 s15, 131072')
    a('s_branch prep_tr_perm')
    a.label('prep_t_bqkv')
    a('s_cmp_ge_u32 s2, 2240')
    a('s_cbranch_scc1 prep_t_bwo')
    a('s_sub_u32 s17, s2, 2048')
    a('s_and_b32 s18, s17, 7')
    a('s_lshr_b32 s19, s17, 3')
    a('s_mov_b32 s8, s32'); a('s_and_b32 s9, s33, 0xffff'); a('s_mov_b32 s10, 0x180000')
    a('s_mov_b32 s12, 3072')
    a('s_mul_i32 s13, s18, %d' % (64*3072))
    a('s_lshl_b32 s36, s19, 7')
    a('s_add_u32 s13, s13, s36')
    a('s_lshl_b32 s14, s19, 16')
    a('s_lshl_b32 s36, s18, 11')
    a('s_add_u32 s14, s14, s36')
    a('s_add_u32 s14, s14, %d' % BQKV)
    a('s_mov_b32 s15, 16384')
    a('s_branch prep_tr_plain')
    a.label('prep_t_bwo')
    a('s_sub_u32 s17, s2, 2240')
    a('s_and_b32 s18, s17, 7')
    a('s_lshr_b32 s19, s17, 3')
    a('s_mov_b32 s8, s34'); a('s_and_b32 s9, s35, 0xffff'); a('s_mov_b32 s10, 0x80000')
    a('s_mov_b32 s12, 1024')
    a('s_lshl_b32 s13, s18, 16')
    a('s_lshl_b32 s36, s19, 7')
    a('s_add_u32 s13, s13, s36')
    a('s_lshl_b32 s14, s19, 16')
    a('s_lshl_b32 s36, s18, 11')
    a('s_add_u32 s14, s14, s36')
    a('s_add_u32 s14, s14, %d' % BWO)
    a('s_mov_b32 s15, 16384')
    a('s_branch prep_tr_perm')
    for perm in (0, 1):
        a.label('prep_tr_perm' if perm else 'prep_tr_plain')
        a('v_lshrrev_b32 v3, 3, v0')
        a('v_and_b32 v4, 7, v0')
        a('v_mul_lo_u32 v5, v3, s12')
        a('v_lshl_add_u32 v5, v4, 4, v5')
        a('s_lshl_b32 s36, s12, 5')
        a('s_add_u32 s36, s36, s13')
        a('buffer_load_dwordx4 v[8:11], v5, s[8:11], s13 offen')
        a('buffer_load_dwordx4 v[12:15], v5, s[8:11], s36 offen')
        a('v_mul_u32_u24 v6, 144, v3')
        a('v_lshl_add_u32 v6, v4, 4, v6')
        a('s_waitcnt vmcnt(1)')
        a('ds_write_b128 v6, v[8:11]')
        a('s_waitcnt vmcnt(0)')
        a('ds_write_b128 v6, v[12:15] offset:%d' % (32*144))
        a('s_waitcnt lgkmcnt(0)')
        a('s_barrier')
        for i in range(2):
            a('v_add_u32 v16, %d, v2' % (4*i))
            if perm:
                a('v_lshrrev_b32 v17, 2, v16')
                a('v_and_b32 v18, 3, v16')
                a('v_lshlrev_b32 v17, 5, v17')
                a('v_lshl_add_u32 v17, v18, 2, v17')
                hi = 16
            else:
                a('v_lshlrev_b32 v17, 3, v16')
                hi = 4
            a('v_mul_u32_u24 v17, 144, v17')
            a('v_lshl_add_u32 v17, v1, 1, v17')
            for j in range(8):
                row = j if j < 4 else hi + j - 4
                a('ds_read_u16 v%d, v17 offset:%d' % (24 + j, row*144))
            a('v_lshrrev_b32 v19, 4, v1')
            a('v_mul_lo_u32 v19, v19, s15')
            a('v_lshrrev_b32 v18, 2, v16')
            a('v_lshl_add_u32 v19, v18, 10, v19')
            a('v_and_b32 v18, 3, v16')
            a('v_lshl_add_u32 v19, v18, 8, v19')
            a('v_and_b32 v18, 15, v1')
            a('v_lshl_add_u32 v19, v18, 4, v19')
            a('s_waitcnt lgkmcnt(0)')
            for j in range(4):
                a('v_lshl_or_b32 v%d, v%d, 16, v%d' % (20 + j, 25 + 2*j, 24 + 2*j))
            a('buffer_store_dwordx4 v[20:23], v19, s[4:7], s14 offen')
            a('s_nop 1')
        a('s_branch prep_end')
    a.label('prep_init')
    a('s_sub_u32 s17, s2, %d' % N_TR)
    a('s_cmp_ge_u32 s17, 2')
    a('s_cbranch_scc1 prep_fill')
    a('s_mov_b32 s8, s20'); a('s_and_b32 s9, s21, 0xffff'); a('s_mov_b32 s10, 8192'); a('s_mov_b32 s11, 0x20000')
    a('s_lshl_b32 s14, s17, 20')
    a('s_add_u32 s14, s14, %d' % MEMB)
    for i in range(2):
        a('v_add_u32 v3, %d, v0' % (256*i))
        a('v_lshrrev_b32 v4, 5, v3')
        a('v_bfe_u32 v5, v3, 3, 2')
        a('v_and_b32 v6, 7, v3')
        a('v_lshlrev_b32 v7, 10, v6')
        a('v_lshl_add_u32 v7, v4, 6, v7')
        a('v_lshl_add_u32 v7, v5, 4, v7')
        a('buffer_load_dwordx4 v[8:11], v7, s[8:11], 0 offen')
        a('v_lshlrev_b32 v12, 4, v3')
        a('s_waitcnt vmcnt(0)')
        a('buffer_store_dwordx4 v[8:11], v12, s[4:7], s14 offen')
        a('s_nop 1')
    a('s_branch prep_end')
    a.label('prep_fill')
    a('s_sub_u32 s17, s17, 2')
    a('s_mov_b32 s18, -1')
    a('s_mov_b32 s14, %d' % (MEMB + 8192))
    a('s_cmp_ge_u32 s17, 32')
    a('s_cselect_b32 s14, %d, s14' % (MEMB + 0x100000 + 8192 - 32*16384))
    a('s_cmp_ge_u32 s17, 64')
    a('s_cselect_b32 s14, %d, s14' % (PART - 64*16384))
    a('s_cmp_ge_u32 s17, 128')
    a('s_cselect_b32 s14, %d, s14' % (KVB - 128*16384))
    a('s_cselect_b32 s18, 0, s18')
    a('s_lshl_b32 s19, s17, 14')
    a('s_add_u32 s14, s14, s19')
    a('v_mov_b32 v8, s18'); a('v_mov_b32 v9, s18'); a('v_mov_b32 v10, s18'); a('v_mov_b32 v11, s18')
    a('v_lshlrev_b32 v3, 4, v0')
    for i in range(4):
        a('buffer_store_dwordx4 v[8:11], v3, s[4:7], s14 offen offset:%d' % 0 if i == 0 else
          'buffer_store_dwordx4 v[8:11], v3, s[4:7], s14 offen')
        if i < 3: a('s_add_u32 s14, s14, 4096')
    a.label('prep_end')
    finish(L, a, vgpr=32, accum=32)
    launches.append((L, N_PREP, 256, 64*144))

def gen_ln(L, src_off):
    a = Asm()
    a('s_cmp_ge_u32 s2, 512')
    a(f's_cbranch_scc1 {L}_end')
    srd(a, 4, 96, 0)
    a('s_load_dwordx2 s[8:9], s[0:1], 0')
    a('s_waitcnt lgkmcnt(0)')
    srd_fin(a, 4, WS_SIZE)
    srd_fin(a, 8, 0x200000)
    a('s_lshl_b32 s12, s2, 12')
    a('v_lshlrev_b32 v1, 4, v0')
    if src_off is None:
        a('buffer_load_dwordx4 v[4:7], v1, s[8:11], s12 offen')
    else:
        a(f's_add_u32 s13, s12, {src_off}')
        a('buffer_load_dwordx4 v[4:7], v1, s[4:7], s13 offen')
    a('s_waitcnt vmcnt(0)')
    for i in range(4):
        a(f'v_lshlrev_b32 v{8+2*i}, 16, v{4+i}')
        a(f'v_and_b32 v{9+2*i}, 0xffff0000, v{4+i}')
    a('v_add_f32 v16, v8, v9')
    for i in range(2, 8): a(f'v_add_f32 v16, v16, v{8+i}')
    wave_allreduce(a, 16, 17, 'v_add_f32')
    a('v_mul_f32 v16, 0x3b000000, v16')
    a('v_mov_b32 v18, 0')
    for i in range(8):
        a(f'v_sub_f32 v17, v{8+i}, v16')
        a('v_fmac_f32 v18, v17, v17')
    wave_allreduce(a, 18, 17, 'v_add_f32')
    a('v_mul_f32 v18, 0x3b000000, v18')
    bf16_round(a, 18, 17)
    a('v_add_f32 v18, 0x3727c5ac, v18')
    bf16_round(a, 18, 17)
    a('v_sqrt_f32 v18, v18')
    bf16_round(a, 18, 17)
    bf16_round(a, 16, 17)
    a('v_rcp_f32 v19, v18')
    for i in range(0, 8, 2):
        a(f'v_sub_f32 v{8+i}, v{8+i}, v16')
        a(f'v_sub_f32 v{9+i}, v{9+i}, v16')
        bf16_round2(a, 8+i, 9+i, 17)
        for k in (8+i, 9+i):
            a(f'v_mul_f32 v20, v{k}, v19')
            a(f'v_fma_f32 v21, -v20, v18, v{k}')
            a(f'v_fma_f32 v{k}, v21, v19, v20')
        a(f'v_cvt_pk_bf16_f32 v{4+i//2}, v{8+i}, v{9+i}')
    a('v_lshrrev_b32 v22, 6, v0')
    a('s_lshl_b32 s13, s2, 2')
    a('v_add_u32 v22, s13, v22')
    a('v_lshrrev_b32 v23, 4, v22')
    a('v_lshlrev_b32 v23, 14, v23')
    a('v_and_b32 v22, 15, v22')
    a('v_lshl_add_u32 v23, v22, 4, v23')
    a('v_bfe_u32 v22, v0, 2, 4')
    a('v_lshl_add_u32 v23, v22, 10, v23')
    a('v_and_b32 v22, 3, v0')
    a('v_lshl_add_u32 v23, v22, 8, v23')
    a(f's_mov_b32 s13, {XN}')
    a('buffer_store_dwordx4 v[4:7], v23, s[4:7], s13 offen')
    a.label(f'{L}_end')
    finish(L, a, vgpr=32, accum=32)
    launches.append((L, 512, 256, 0))

def gemm_loop(a, streams, nks, mfmas, bufs):
    L = a.uid('gl')
    n = len(streams); D = len(bufs)
    assert nks % D == 0
    def R(b):
        k, base = bufs[b]
        return lambda i: f'{k}[{base+4*i}:{base+4*i+3}]'
    def loads(b, off):
        sr = 's98'
        if off > 4095: sr = 's99'; off -= 4096
        for i, (va, sfx) in enumerate(streams):
            a(f'buffer_load_dwordx4 {R(b)(i)}, v{va}, s[4:7], {sr} offen offset:{off} {sfx}')
    a('s_mov_b32 s98, 0')
    a('s_mov_b32 s99, 4096')
    for j in range(D-1): loads(j, j*1024)
    a.label(L)
    for j in range(D):
        loads((j+D-1) % D, (j+D-1)*1024)
        a(f's_waitcnt vmcnt({(D-1)*n})')
        for m in mfmas(R(j)): a(m)
    a(f's_add_u32 s98, s98, {D*1024}')
    a(f's_add_u32 s99, s99, {D*1024}')
    a(f's_cmp_lt_u32 s98, {nks*1024}')
    a(f's_cbranch_scc1 {L}')
    a('s_waitcnt vmcnt(0)')

def body_t1(a, sfx, deep=False):
    a('s_lshr_b32 s41, s40, 5')
    a('s_and_b32 s42, s40, 31')
    a('v_and_b32 v1, 63, v0')
    a('v_lshrrev_b32 v2, 6, v0')
    a('v_readfirstlane_b32 s43, v2')
    a('s_lshr_b32 s44, s43, 1')
    a('s_and_b32 s45, s43, 1')
    a('v_lshlrev_b32 v3, 4, v1')
    a('s_lshl_b32 s46, s41, 17')
    a('s_lshl_b32 s47, s44, 16')
    a('s_add_u32 s46, s46, s47')
    a(f's_add_u32 s46, s46, {XN}')
    for t in range(4):
        a(f'v_add_u32 v{4+t}, s46, v3')
        if t < 3: a('s_add_u32 s46, s46, 16384')
    a('s_lshl_b32 s46, s42, 17')
    a('s_lshl_b32 s47, s45, 16')
    a('s_add_u32 s46, s46, s47')
    a(f's_add_u32 s46, s46, {WT + 256*16384}')
    for t in range(4):
        a(f'v_add_u32 v{8+t}, s46, v3')
        a(f'v_add_u32 v{12+t}, {256*16384}, v{8+t}')
        if t < 3: a('s_add_u32 s46, s46, 16384')
    ACK = 128; ACV = 192
    for r in range(128, 256): a(f'v_mov_b32 v{r}, 0')
    def mf(f):
        o = []
        for et in range(4):
            for tt in range(4):
                d = ACK + (et*4+tt)*4
                o.append(f'v_mfma_f32_16x16x32_bf16 v[{d}:{d+3}], {f(4+et)}, {f(tt)}, v[{d}:{d+3}]')
        for tt in range(4):
            for et in range(4):
                d = ACV + (tt*4+et)*4
                o.append(f'v_mfma_f32_16x16x32_bf16 v[{d}:{d+3}], {f(tt)}, {f(8+et)}, v[{d}:{d+3}]')
        return o
    gemm_loop(a, [(4+i, '') for i in range(12)], 16, mf, [('v',16), ('v',64)] + ([('a',0), ('a',48)] if deep else []))
    a('s_lshl_b32 s46, s42, 19')
    a('s_lshl_b32 s47, s41, 15')
    a('s_add_u32 s46, s46, s47')
    a('s_lshl_b32 s47, s44, 14')
    a('s_add_u32 s46, s46, s47')
    a('s_lshl_b32 s47, s45, 11')
    a('s_add_u32 s46, s46, s47')
    a(f's_add_u32 s46, s46, {KF}')
    k = 0
    for tt in range(4):
        if tt: a('s_add_u32 s46, s46, 4096')
        for mm in range(2):
            o = 16 + 4*(k % 8); k += 1
            d0 = ACK + ((2*mm)*4+tt)*4; d1 = ACK + ((2*mm+1)*4+tt)*4
            a(f'v_cvt_pk_bf16_f32 v{o}, v{d0}, v{d0+1}')
            a(f'v_cvt_pk_bf16_f32 v{o+1}, v{d0+2}, v{d0+3}')
            a(f'v_cvt_pk_bf16_f32 v{o+2}, v{d1}, v{d1+1}')
            a(f'v_cvt_pk_bf16_f32 v{o+3}, v{d1+2}, v{d1+3}')
            a(f'buffer_store_dwordx4 v[{o}:{o+3}], v3, s[4:7], s46 offen offset:{mm*1024} {sfx}')
    a('v_and_b32 v5, 15, v1')
    a('v_lshrrev_b32 v6, 4, v1')
    a('v_lshlrev_b32 v7, 6, v5')
    a('v_lshl_add_u32 v7, v6, 4, v7')
    a('s_lshl_b32 s46, s42, 19')
    a('s_lshl_b32 s47, s41, 15')
    a('s_add_u32 s46, s46, s47')
    a('s_lshl_b32 s47, s44, 14')
    a('s_add_u32 s46, s46, s47')
    a('s_lshl_b32 s47, s45, 12')
    a('s_add_u32 s46, s46, s47')
    a(f's_add_u32 s46, s46, {VF}')
    for sg in range(2):
        if sg: a('s_add_u32 s46, s46, 8192')
        for et in range(4):
            o = 48 + 4*(k % 8); k += 1
            d0 = ACV + ((2*sg)*4+et)*4; d1 = ACV + ((2*sg+1)*4+et)*4
            a(f'v_cvt_pk_bf16_f32 v{o}, v{d0}, v{d0+1}')
            a(f'v_cvt_pk_bf16_f32 v{o+1}, v{d0+2}, v{d0+3}')
            a(f'v_cvt_pk_bf16_f32 v{o+2}, v{d1}, v{d1+1}')
            a(f'v_cvt_pk_bf16_f32 v{o+3}, v{d1+2}, v{d1+3}')
            a(f'buffer_store_dwordx4 v[{o}:{o+3}], v7, s[4:7], s46 offen offset:{et*1024} {sfx}')

def gen_t1(L):
    a = Asm()
    a('s_cmp_ge_u32 s2, 512')
    a(f's_cbranch_scc1 {L}_end')
    srd(a, 4, 96, 0)
    a('s_waitcnt lgkmcnt(0)')
    srd_fin(a, 4, WS_SIZE)
    a('s_mov_b32 s40, s2')
    body_t1(a, '')
    a.label(f'{L}_end')
    finish(L, a, vgpr=256, accum=256)
    launches.append((L, 512, 256, 0))


LDS_SC = 131072
LDS_OB = LDS_SC + 6144
LDS_MS = LDS_OB + 2048
LDS_PF = LDS_MS + 8192
LDS_ROLE = LDS_SC
LDS_REC = LDS_PF + 16384
SPIN_MAX = 1 << 20

def interleave(a, mf, va, per=3):
    i = 0
    for m in mf:
        a(m)
        for _ in range(per):
            if i < len(va): a(va[i]); i += 1
    while i < len(va): a(va[i]); i += 1

def role_select(a, L):
    a('v_lshrrev_b32 v1, 6, v0')
    a('v_readfirstlane_b32 s14, v1')
    a('s_cmp_lg_u32 s14, 0')
    a(f's_cbranch_scc1 {L}_role_wait')
    a('s_getreg_b32 s26, hwreg(HW_REG_XCC_ID)')
    a('s_and_b32 s26, s26, 7')
    a('s_mov_b64 s[28:29], exec')
    a('s_mov_b64 exec, 1')
    a('s_lshl_b32 s27, s26, 2')
    a('v_mov_b32 v2, s27')
    a('v_mov_b32 v3, 1')
    a('buffer_atomic_add v3, v2, s[8:11], 0 offen sc0')
    a('s_waitcnt vmcnt(0)')
    a('v_readfirstlane_b32 s27, v3')
    a('s_mov_b32 s12, -1')
    a('s_cmp_ge_u32 s27, 32')
    a(f's_cbranch_scc1 {L}_role_done')
    a('v_mov_b32 v2, 32')
    a('s_add_u32 s26, s26, 1')
    a('s_cmp_lg_u32 s27, 31')
    a(f's_cbranch_scc1 {L}_role_poll0')
    a('v_mov_b32 v4, s26')
    a('v_mov_b32 v5, 0')
    a('buffer_atomic_cmpswap v[4:5], v2, s[8:11], 0 offen sc0')
    a('s_waitcnt vmcnt(0)')
    a.label(f'{L}_role_poll0')
    a('s_mov_b32 s36, 0')
    a.label(f'{L}_role_poll')
    a('buffer_load_dword v3, v2, s[8:11], 0 offen sc1')
    a('s_waitcnt vmcnt(0)')
    a('v_readfirstlane_b32 s37, v3')
    a('s_cmp_lg_u32 s37, 0')
    a(f's_cbranch_scc1 {L}_role_dec')
    a('s_sleep 4')
    a('s_add_u32 s36, s36, 1')
    a('s_cmp_lt_u32 s36, 4000')
    a(f's_cbranch_scc1 {L}_role_poll')
    a('v_mov_b32 v4, 100')
    a('v_mov_b32 v5, 0')
    a('buffer_atomic_cmpswap v[4:5], v2, s[8:11], 0 offen sc0')
    a('s_waitcnt vmcnt(0)')
    a(f's_branch {L}_role_poll0')
    a.label(f'{L}_role_dec')
    a('s_cmp_eq_u32 s37, s26')
    a('s_cselect_b32 s12, s27, s12')
    a('s_cmp_lg_u32 s37, 100')
    a(f's_cbranch_scc1 {L}_role_done')
    a('v_mov_b32 v2, 36')
    a('v_mov_b32 v3, 1')
    a('buffer_atomic_add v3, v2, s[8:11], 0 offen sc0')
    a('s_waitcnt vmcnt(0)')
    a('v_readfirstlane_b32 s27, v3')
    a('s_or_b32 s26, s27, 256')
    a('s_cmp_lt_u32 s27, 32')
    a('s_cselect_b32 s12, s26, s12')
    a.label(f'{L}_role_done')
    a('v_mov_b32 v2, %d' % LDS_ROLE)
    a('v_mov_b32 v3, s12')
    a('ds_write_b32 v2, v3')
    a('s_waitcnt lgkmcnt(0)')
    a('s_mov_b64 exec, s[28:29]')
    a.label(f'{L}_role_wait')
    a('s_barrier')
    a('v_mov_b32 v2, %d' % LDS_ROLE)
    a('ds_read_b32 v3, v2')
    a('s_waitcnt lgkmcnt(0)')
    a('v_readfirstlane_b32 s12, v3')

PROF = int(os.environ.get('PROF', '0'))
def stamp(a, i):
    if not PROF: return
    a('s_memtime s[50:51]')
    a('s_waitcnt lgkmcnt(0)')
    if i > 0:
        a('s_sub_u32 s52, s50, s53')
        a(f's_add_u32 s{60+i}, s{60+i}, s52')
    a('s_mov_b32 s53, s50')

def body_rec(a, L, layer, xs, merged=False):
    OOB = '0x7fffff00'
    a('s_lshr_b32 s13, s12, 8')
    a('s_and_b32 s12, s12, 31')
    a('v_and_b32 v0, 63, v0')
    a('v_and_b32 v12, 15, v0')
    a('v_lshrrev_b32 v13, 4, v0')
    a('v_and_b32 v14, 7, v0')
    a('v_cmp_gt_u32 s[30:31], 8, v12')
    a('v_cmp_gt_u32 s[32:33], 8, v0')
    a('v_cmp_gt_u32 s[34:35], 32, v0')
    a(f'v_mov_b32 v16, {OOB}')
    a('v_lshlrev_b32 v1, 7, v13')
    a('v_lshl_add_u32 v1, v14, 4, v1')
    a('s_lshl_b32 s26, s14, 10')
    a('v_lshlrev_b32 v2, 4, v0')
    a('v_add_u32 v2, s26, v2')
    a('s_lshl_b32 s26, s14, 11')
    a('v_lshlrev_b32 v3, 6, v12')
    a('v_lshl_add_u32 v3, v13, 4, v3')
    a('v_add_u32 v3, s26, v3')
    a('v_lshlrev_b32 v4, 6, v12')
    a('v_lshl_add_u32 v4, v13, 4, v4')
    a('v_cndmask_b32 v4, v16, v4, s[30:31]')
    a('s_lshl_b32 s26, s14, 7')
    a('v_lshrrev_b32 v5, 3, v0')
    a('v_lshlrev_b32 v5, 9, v5')
    a('v_lshl_add_u32 v5, v14, 4, v5')
    a('v_add_u32 v5, s26, v5')
    a('v_bfe_u32 v15, v0, 1, 1')
    a('v_lshlrev_b32 v6, 7, v15')
    a('v_bfe_u32 v15, v0, 2, 1')
    a('v_lshl_add_u32 v6, v15, 4, v6')
    a('v_and_b32 v15, 1, v0')
    a('v_lshl_add_u32 v6, v15, 3, v6')
    a('s_lshl_b32 s26, s14, 5')
    a('v_add_u32 v6, s26, v6')
    a('v_cndmask_b32 v6, v16, v6, s[32:33]')
    a('s_lshl_b32 s26, s14, 9')
    a('v_add_u32 v7, s26, v1')
    a('v_cndmask_b32 v7, v16, v7, s[30:31]')
    a('s_lshl_b32 s26, s14, 9')
    a('v_lshlrev_b32 v8, 4, v12')
    a('v_lshl_add_u32 v8, v13, 3, v8')
    a('v_add_u32 v8, s26, v8')
    a('v_cndmask_b32 v8, v16, v8, s[34:35]')
    a('v_lshlrev_b32 v9, 4, v0')
    a('s_lshl_b32 s26, s14, 15')
    a('v_add_u32 v10, s26, v9')
    a('s_lshl_b32 s26, s12, 17')
    a('s_lshl_b32 s27, s14, 15')
    a('s_add_u32 s26, s26, s27')
    a(f's_add_u32 s26, s26, {WT}')
    def wreg(which, et, ks):
        i = (et*16 + ks)*4
        if which == 0: return f'a[{i}:{i+3}]'
        if which == 1: return f'a[{128+i}:{128+i+3}]'
        return f'v[{128+i}:{128+i+3}]'
    for which in range(3):
        for et in range(2):
            for ks in range(16):
                if ks % 4 == 0: a(f's_add_u32 s27, s26, {which*256*16384 + et*16384 + ks*1024}')
                a(f'buffer_load_dwordx4 {wreg(which, et, ks)}, v9, s[4:7], s27 offen offset:{(ks%4)*1024}')
    a('s_lshl_b32 s26, s14, 20')
    a('s_lshl_b32 s27, s12, 12')
    a('s_add_u32 s26, s26, s27')
    a(f's_add_u32 s26, s26, {WOT}')
    for dt in range(8):
        for m in range(4):
            r = 64 + ((dt % 4)*4 + m)*4
            a(f'buffer_load_dwordx4 v[{r}:{r+3}], v9, s[4:7], s26 offen offset:{m*1024}')
        a('s_add_u32 s26, s26, 131072')
        if dt % 4 == 3:
            a('s_waitcnt vmcnt(0)')
            for d2 in range(dt-3, dt+1):
                for m in range(4):
                    r = 64 + ((d2 % 4)*4 + m)*4
                    a(f'ds_write_b128 v10, v[{r}:{r+3}] offset:{(d2*4+m)*1024}')
            a('s_waitcnt lgkmcnt(0)')
    a(f's_mov_b32 s16, {MEMB + layer*0x100000}')
    a('s_add_u32 s17, s16, 4096')
    a('s_lshr_b32 s26, s12, 1')
    a('s_lshl_b32 s26, s26, 9')
    a('s_and_b32 s27, s12, 1')
    a('s_lshl_b32 s27, s27, 8')
    a('s_add_u32 s18, s26, s27')
    a(f's_add_u32 s18, s18, {MEMB + layer*0x100000 + 8192}')
    a('s_lshl_b32 s26, s12, 19')
    a(f's_add_u32 s19, s26, {KF}')
    a('s_add_u32 s20, s19, 4096')
    a(f's_add_u32 s21, s26, {VF}')
    a('s_lshl_b32 s26, s12, 9')
    a('s_lshl_b32 s27, s14, 17')
    a('s_add_u32 s22, s26, s27')
    a(f's_add_u32 s22, s22, {PART}')
    a('s_lshl_b32 s26, s12, 14')
    a(f's_add_u32 s23, s26, {PART}')
    a('s_lshl_b32 s26, s12, 17')
    a(f's_add_u32 s24, s26, {KMF}')
    a(f's_add_u32 s25, s26, {VMF}')
    a('s_mov_b32 s15, 0')
    a('s_lshl_b32 s38, s14, 12')
    a(f's_add_u32 s38, s38, {LDS_PF}')
    a('v_add_u32 v11, s38, v9')
    a('s_lshl_b32 s26, s14, 9')
    a('s_mul_i32 s27, s14, 1536')
    a(f'v_add_u32 v12, {LDS_SC}, v1')
    a('v_add_u32 v13, s27, v12')
    a(f'v_add_u32 v14, {LDS_OB}, v1')
    a('v_add_u32 v15, s26, v14')
    a('s_lshl_b32 s26, s14, 11')
    a('v_add_u32 v17, s26, v9')
    a(f'v_add_u32 v18, {LDS_MS}, v17')
    a(f'v_add_u32 v1, {LDS_MS}, v1')
    a('v_mov_b32 v9, v17')
    a('v_mov_b32 v0, v18')
    a('s_lshl_b32 s38, s14, 12')
    a(f's_add_u32 s38, s38, {LDS_PF}')
    a('s_add_u32 s39, s38, 1024')
    a('s_add_u32 s40, s38, 2048')
    def prefetch():
        a('s_mov_b32 m0, s38')
        a(f'buffer_load_dwordx4 v2, s[4:7], s19 offen {xs} lds')
        a('s_mov_b32 m0, s39')
        a(f'buffer_load_dwordx4 v2, s[4:7], s20 offen {xs} lds')
        a('s_mov_b32 m0, s40')
        a(f'buffer_load_dwordx4 v3, s[4:7], s21 offen {xs} lds')
        a(f'buffer_load_dwordx4 v3, s[4:7], s21 offen offset:1024 {xs} lds')
        a('s_add_u32 s19, s19, 8192'); a('s_add_u32 s20, s20, 8192'); a('s_add_u32 s21, s21, 8192')
    FL = FLG + layer*0x1000
    a('s_mov_b32 s41, 0')
    a(f's_mov_b32 s42, {FL}')
    a('s_lshl_b32 s43, s12, 2')
    a(f's_add_u32 s43, s43, {FL + 512}')
    def kvwait(LL, rbreg):
        LL2 = a.uid('kvw')
        a('s_cmp_lg_u32 s41, 0')
        a(f's_cbranch_scc1 {LL2}_ok')
        a('s_mov_b32 s46, 0')
        a.label(f'{LL2}_p')
        a(f's_lshl_b32 s44, {rbreg}, 2')
        a('v_mov_b32 v56, s44')
        a('v_mov_b32 v57, 128')
        a('buffer_load_dword v56, v56, s[4:7], s42 offen sc1')
        a('buffer_load_dword v57, v57, s[4:7], s42 offen sc1')
        a('s_waitcnt vmcnt(0)')
        a('v_readfirstlane_b32 s44, v56')
        a('v_readfirstlane_b32 s45, v57')
        a('s_cmp_ge_u32 s45, 512')
        a('s_cselect_b32 s41, 1, 0')
        a('s_cmp_ge_u32 s44, 32')
        a(f's_cbranch_scc1 {LL2}_ok')
        a('s_sleep 2')
        a('s_add_u32 s46, s46, 1')
        a(f's_cmp_le_u32 s46, {SPIN_MAX}')
        a(f's_cbranch_scc1 {LL2}_p')
        a.label(f'{LL2}_ok')
    if merged:
        a('s_mov_b32 s47, 0')
        kvwait(L, 's47')
    prefetch()
    a('s_waitcnt vmcnt(0)')
    a('s_barrier')
    if PROF:
        for i in range(60, 70): a(f's_mov_b32 s{i}, 0')
    a('s_cmp_lg_u32 s13, 0')
    a(f's_cbranch_scc1 {L}_s_step')
    for mode in ('f', 's'):
        rec_loop(a, f'{L}_{mode}', 'sc1' if mode == 's' else '', xs, wreg, prefetch, kvwait if merged else None)
        if mode == 'f': a(f's_branch {L}_recdone')
    a.label(f'{L}_recdone')
    if merged:
        a('s_waitcnt vmcnt(0)')
        a('s_barrier')
        a('s_cmp_lg_u32 s14, 0')
        a(f's_cbranch_scc1 {L}_nopub')
        a('v_mov_b32 v56, 64')
        a('v_mov_b32 v57, 0')
        a('buffer_store_dword v56, v57, s[4:7], s43 offen sc1')
        a.label(f'{L}_nopub')
    if PROF:
        a('s_cmp_lg_u32 s12, 5')
        a(f's_cbranch_scc1 {L}_pf')
        a('s_mul_i32 s26, s14, 40')
        a('s_add_u32 s26, s26, 60')
        a('s_mov_b64 exec, 1')
        for i in range(1, 10):
            a(f'v_mov_b32 v20, s{60+i}')
            a(f'v_mov_b32 v21, {4*i}')
            a('buffer_store_dword v20, v21, s[8:11], s26 offen')
        a('s_mov_b64 exec, -1')
        a.label(f'{L}_pf')

def rec_loop(a, L, rs, xs, wreg, prefetch, kvwait):
    a.label(f'{L}_step')
    stamp(a, 0)
    for i in range(4): a(f'ds_read_b128 v[{16+4*i}:{16+4*i+3}], v11 offset:{i*1024}')
    a('s_mov_b32 s36, 0')
    a.label(f'{L}_gpoll')
    a('buffer_load_dwordx4 v[64:67], v9, s[4:7], s16 offen sc1')
    a('buffer_load_dwordx4 v[68:71], v9, s[4:7], s16 offen offset:1024 sc1')
    a('s_waitcnt vmcnt(0)')
    a('v_max3_u32 v56, v64, v65, v66')
    a('v_max3_u32 v56, v56, v67, v68')
    a('v_max3_u32 v56, v56, v69, v70')
    a('v_max_u32 v56, v56, v71')
    a('v_cmp_eq_u32 vcc, -1, v56')
    a(f's_cbranch_vccz {L}_gok')
    a('s_add_u32 s36, s36, 1')
    a(f's_cmp_le_u32 s36, {SPIN_MAX}')
    a(f's_cbranch_scc1 {L}_gpoll')
    a.label(f'{L}_gok')
    a('ds_write_b128 v0, v[64:67]')
    a('ds_write_b128 v0, v[68:71] offset:1024')
    if PROF: a('s_add_u32 s69, s69, s36')
    a('s_waitcnt lgkmcnt(0)')
    a('s_barrier')
    stamp(a, 7)
    for k in range(16): a(f'ds_read_b128 v[{64+4*k}:{64+4*k+3}], v1 offset:{k*512}')
    if kvwait:
        a('s_and_b32 s44, s15, 3')
        a('s_cmp_lg_u32 s44, 0')
        a(f's_cbranch_scc1 {L}_np')
        a('s_cmp_lg_u32 s14, 0')
        a(f's_cbranch_scc1 {L}_np')
        a('v_mov_b32 v56, s15')
        a('v_mov_b32 v57, 0')
        a('buffer_store_dword v56, v57, s[4:7], s43 offen sc1')
        a.label(f'{L}_np')
        a('s_and_b32 s44, s15, 3')
        a('s_cmp_lg_u32 s44, 3')
        a(f's_cbranch_scc1 {L}_nk')
        a('s_add_u32 s47, s15, 1')
        a('s_lshr_b32 s47, s47, 2')
        a('s_min_u32 s47, s47, 15')
        kvwait(L, 's47')
        a.label(f'{L}_nk')
    prefetch()
    def proj(which):
        o = []
        for ks in range(16):
            mf = f'v[{64+4*ks}:{64+4*ks+3}]'
            for et in range(2):
                d = 32 + which*8 + et*4
                c = '0' if ks == 0 else f'v[{d}:{d+3}]'
                if which < 2: o.append(f'v_mfma_f32_16x16x32_bf16 v[{d}:{d+3}], {wreg(which, et, ks)}, {mf}, {c}')
                else: o.append(f'v_mfma_f32_16x16x32_bf16 v[{d}:{d+3}], {mf}, {wreg(2, et, ks)}, {c}')
        return o
    def rnd(S, t):
        o = []
        for i in range(0, len(S), 2):
            o += [f'v_cvt_pk_bf16_f32 v{t}, v{S[i]}, v{S[i+1]}', f'v_lshlrev_b32 v{S[i]}, 16, v{t}', f'v_and_b32 v{S[i+1]}, 0xffff0000, v{t}']
        return o
    qm = proj(0)
    for ks in range(16):
        a(f's_waitcnt lgkmcnt({15-ks})')
        a(qm[2*ks]); a(qm[2*ks+1])
    km = proj(1)
    for m in km[:2]: a(m)
    stamp(a, 1)
    for i in range(4): a(f'v_cvt_pk_bf16_f32 v{56+i}, v{32+2*i}, v{33+2*i}')
    a('v_mfma_f32_16x16x32_bf16 v[32:35], v[16:19], v[56:59], 0')
    a('v_mfma_f32_16x16x32_bf16 v[36:39], v[20:23], v[56:59], 0')
    for m in km[2:6]: a(m)
    for t in range(2): a(f'ds_write_b128 v13, v[{32+4*t}:{32+4*t+3}] offset:{t*512}')
    for m in km[6:10]: a(m)
    a('s_waitcnt lgkmcnt(0)')
    a('s_barrier')
    TQ = [16, 20]
    va = []
    for w2 in range(4):
        for t in range(2):
            dq = (32 + 4*t) if w2 == 0 else TQ[t]
            va.append(f'ds_read_b128 v[{dq}:{dq+3}], v12 offset:{w2*1536 + t*512}')
        if w2 > 0:
            va.append('s_waitcnt lgkmcnt(0)')
            for t in range(2):
                for i in range(4): va.append(f'v_add_f32 v{32+4*t+i}, v{32+4*t+i}, v{TQ[t]+i}')
    SX = list(range(32, 40))
    va += rnd(SX, 16)
    for i in SX: va.append(f'v_mul_f32 v{i}, 0x3db504f3, v{i}')
    va += rnd(SX, 16)
    va.append('v_max3_f32 v18, v32, v33, v34')
    va.append('v_max3_f32 v18, v18, v35, v36')
    va.append('v_max3_f32 v18, v18, v37, v38')
    va.append('v_max_f32 v18, v18, v39')
    interleave(a, km[10:], va, per=4)
    vm = proj(2)
    for m in vm[:2]: a(m)
    stamp(a, 8)
    for i in range(4): a(f'v_cvt_pk_bf16_f32 v{60+i}, v{40+2*i}, v{41+2*i}')
    a('v_mfma_f32_16x16x32_bf16 v[40:43], v[60:63], v[56:59], 0')
    a(f'buffer_store_dwordx4 v[60:63], v7, s[4:7], s24 offen {xs}')
    for m in vm[2:6]: a(m)
    a('ds_write_b128 v13, v[40:43] offset:1024')
    for m in vm[6:9]: a(m)
    a('s_waitcnt lgkmcnt(0)')
    a('s_barrier')
    va = []
    for w2 in range(4):
        dq = [40, 44, 20, 60][w2]
        va.append(f'ds_read_b128 v[{dq}:{dq+3}], v12 offset:{w2*1536 + 1024}')
    va.append('s_waitcnt lgkmcnt(0)')
    for i in range(4):
        va.append(f'v_add_f32 v{40+i}, v{40+i}, v{44+i}')
        va.append(f'v_add_f32 v{20+i}, v{20+i}, v{60+i}')
    for i in range(4): va.append(f'v_add_f32 v{40+i}, v{40+i}, v{20+i}')
    SM = [40, 41, 42, 43]
    va += rnd(SM, 16)
    for i in SM: va.append(f'v_mul_f32 v{i}, 0x3db504f3, v{i}')
    va += rnd(SM, 16)
    va.append('v_mov_b32 v17, 0xf149f2ca')
    for i in SM: va.append(f'v_cndmask_b32 v{i}, v17, v{i}, s[34:35]')
    va.append('v_max3_f32 v18, v18, v40, v41')
    va.append('v_max3_f32 v18, v18, v42, v43')
    for sw in ('v_permlane16_swap_b32', 'v_permlane32_swap_b32'):
        va += ['v_mov_b32 v19, v18', f'{sw} v18, v19', 'v_max_f32 v18, v18, v19']
    va.append('v_mul_f32 v18, 0xbfb8aa3b, v18')
    va.append('v_mov_b32 v17, 0x3fb8aa3b')
    S = list(range(32, 44))
    for i in range(12): va.append(f'v_fma_f32 v{S[i]}, v{S[i]}, v17, v18')
    for i in range(12): va.append(f'v_exp_f32 v{S[i]}, v{S[i]}')
    va.append('v_add_f32 v18, v32, v33')
    va.append('v_add_f32 v19, v34, v35')
    for i in range(4, 12, 2):
        va.append(f'v_add_f32 v18, v18, v{S[i]}')
        va.append(f'v_add_f32 v19, v19, v{S[i+1]}')
    va.append('v_add_f32 v18, v18, v19')
    for sw in ('v_permlane16_swap_b32', 'v_permlane32_swap_b32'):
        va += ['v_mov_b32 v19, v18', f'{sw} v18, v19', 'v_add_f32 v18, v18, v19']
    va.append('v_rcp_f32 v18, v18')
    for i in range(12): va.append(f'v_mul_f32 v{S[i]}, v{S[i]}, v18')
    for i in range(4): va.append(f'v_cvt_pk_bf16_f32 v{16+i}, v{32+2*i}, v{33+2*i}')
    va += ['v_cvt_pk_bf16_f32 v20, v40, v41', 'v_cvt_pk_bf16_f32 v21, v42, v43', 'v_mov_b32 v22, 0', 'v_mov_b32 v23, 0']
    interleave(a, vm[9:], va, per=5)
    stamp(a, 2)
    for dt in range(4):
        for m in range(4):
            r = 64 + (dt*4+m)*4
            a(f'ds_read_b128 v[{r}:{r+3}], v10 offset:{(dt*4+m)*1024}')
    a('v_cvt_pk_bf16_f32 v56, v48, v49'); a('v_cvt_pk_bf16_f32 v57, v50, v51'); a('v_mov_b32 v58, 0'); a('v_mov_b32 v59, 0')
    a('v_cvt_pk_bf16_f32 v60, v52, v53'); a('v_cvt_pk_bf16_f32 v61, v54, v55'); a('v_mov_b32 v62, 0'); a('v_mov_b32 v63, 0')
    a('v_mfma_f32_16x16x32_bf16 v[32:35], v[24:27], v[16:19], 0')
    a('v_mfma_f32_16x16x32_bf16 v[36:39], v[28:31], v[16:19], 0')
    a('v_mfma_f32_16x16x32_bf16 v[32:35], v[56:59], v[20:23], v[32:35]')
    a('v_mfma_f32_16x16x32_bf16 v[36:39], v[60:63], v[20:23], v[36:39]')
    a(f'buffer_store_dwordx2 v[56:57], v8, s[4:7], s25 offen {xs}')
    a(f'buffer_store_dwordx2 v[60:61], v8, s[4:7], s25 offen offset:256 {xs}')
    for i in range(4): a(f'v_cvt_pk_bf16_f32 v{40+i}, v{32+2*i}, v{33+2*i}')
    a('ds_write_b128 v15, v[40:43]')
    a('s_waitcnt lgkmcnt(0)')
    a('s_barrier')
    for m in range(4): a(f'ds_read_b128 v[{44+4*m}:{44+4*m+3}], v14 offset:{m*512}')
    a('s_waitcnt lgkmcnt(0)')
    stamp(a, 3)
    def wacc(dt): return 16 + 4*dt if dt < 7 else 60
    a('s_mov_b32 s26, s22')
    def pstore(dt):
        d = wacc(dt)
        a(f'buffer_store_dwordx4 v[{d}:{d+3}], v4, s[4:7], s26 offen {rs}')
        a('s_add_u32 s26, s26, 16384')
    for dt in range(8):
        d = wacc(dt)
        if dt >= 4: a(f's_waitcnt lgkmcnt({12-4*(dt-4)})')
        for m in range(4):
            r = 64 + ((dt % 4)*4+m)*4
            c = '0' if m == 0 else f'v[{d}:{d+3}]'
            a(f'v_mfma_f32_16x16x32_bf16 v[{d}:{d+3}], v[{r}:{r+3}], v[{44+4*m}:{44+4*m+3}], {c}')
        if dt < 4:
            for m in range(4):
                r = 64 + (dt*4+m)*4
                a(f'ds_read_b128 v[{r}:{r+3}], v10 offset:{((dt+4)*4+m)*1024}')
        if dt >= 1: pstore(dt-1)
    pstore(7)
    a('s_add_u32 s24, s24, 2048'); a('s_add_u32 s25, s25, 2048')
    stamp(a, 4)
    a('s_add_u32 s26, s23, 4096'); a('s_add_u32 s27, s23, 8192'); a('s_add_u32 s28, s23, 12288')
    RS = ['s23', 's26', 's27', 's28']
    a('s_mov_b32 s36, 0')
    a.label(f'{L}_rpoll')
    for i in range(4): a(f'buffer_load_dwordx4 v[{64+4*i}:{64+4*i+3}], v5, s[4:7], {RS[i]} offen sc1')
    a('s_waitcnt vmcnt(0)')
    a('v_max3_u32 v80, v64, v65, v66')
    for i in range(3, 15, 2): a(f'v_max3_u32 v80, v80, v{64+i}, v{64+i+1}')
    a('v_max_u32 v80, v80, v79')
    a('v_cmp_eq_u32 vcc, -1, v80')
    a(f's_cbranch_vccz {L}_rok')
    a('s_add_u32 s36, s36, 1')
    a(f's_cmp_le_u32 s36, {SPIN_MAX}')
    a(f's_cbranch_scc1 {L}_rpoll')
    a.label(f'{L}_rok')
    stamp(a, 5)
    for i in range(4):
        a(f'v_add_f32 v{80+i}, v{64+i}, v{68+i}')
        a(f'v_add_f32 v{84+i}, v{72+i}, v{76+i}')
    for i in range(4): a(f'v_add_f32 v{80+i}, v{80+i}, v{84+i}')
    for i in range(4): a(f'v_add_f32_dpp v{80+i}, v{80+i}, v{80+i} row_ror:8 row_mask:0xf bank_mask:0xf')
    for sw in ('v_permlane16_swap_b32', 'v_permlane32_swap_b32'):
        for i in range(4): a(f'v_mov_b32 v{84+i}, v{80+i}')
        for i in range(4): a(f'{sw} v{80+i}, v{84+i}')
        for i in range(4): a(f'v_add_f32 v{80+i}, v{80+i}, v{84+i}')
    a('v_cvt_pk_bf16_f32 v88, v80, v81'); a('v_cvt_pk_bf16_f32 v89, v82, v83')
    a(f'buffer_store_dwordx2 v[88:89], v6, s[4:7], s18 offen {rs}')
    for i in range(4): a(f'v_mov_b32 v{92+i}, -1')
    for i in range(4): a(f'buffer_store_dwordx4 v[92:95], v5, s[4:7], {RS[i]} offen {rs}')
    a('s_add_u32 s16, s16, 8192'); a('s_add_u32 s17, s17, 8192'); a('s_add_u32 s18, s18, 8192')
    a('s_xor_b32 s22, s22, 0x80000'); a('s_xor_b32 s23, s23, 0x80000')
    stamp(a, 6)
    a('s_add_u32 s15, s15, 1')
    a('s_cmp_lt_u32 s15, 64')
    a(f's_cbranch_scc1 {L}_step')

def gen_rec(L, layer):
    a = Asm()
    a('s_cmp_ge_u32 s2, 256')
    a(f's_cbranch_scc1 {L}_end')
    srd(a, 4, 96, 0)
    srd(a, 8, 88, 0)
    a('s_waitcnt lgkmcnt(0)')
    srd_fin(a, 4, WS_SIZE)
    srd_fin(a, 8, 256)
    role_select(a, L)
    a('s_cmp_eq_u32 s12, -1')
    a(f's_cbranch_scc1 {L}_end')
    body_rec(a, L, layer, '')
    a.label(f'{L}_end')
    finish(L, a, vgpr=512, accum=256)
    launches.append((L, 256, 256, LDS_REC))


def softmax_block(a, S, valid_fix, t0, t1, t2):
    n = len(S)
    for rnd in range(2):
        for i in range(0, n, 2):
            a(f'v_cvt_pk_bf16_f32 v{t0}, v{S[i]}, v{S[i+1]}'); a(f'v_lshlrev_b32 v{S[i]}, 16, v{t0}'); a(f'v_and_b32 v{S[i+1]}, 0xffff0000, v{t0}')
        if rnd == 0:
            for i in range(n): a(f'v_mul_f32 v{S[i]}, 0x3db504f3, v{S[i]}')
    valid_fix(a)
    a(f'v_max_f32 v{t1}, v{S[0]}, v{S[1]}')
    for i in range(2, n, 2): a(f'v_max3_f32 v{t1}, v{t1}, v{S[i]}, v{S[i+1]}')
    g_allreduce(a, t1, t2, 'v_max_f32')
    a(f'v_mul_f32 v{t1}, 0xbfb8aa3b, v{t1}')
    a(f'v_mov_b32 v{t0}, 0x3fb8aa3b')
    for i in range(n):
        a(f'v_fma_f32 v{S[i]}, v{S[i]}, v{t0}, v{t1}')
        a(f'v_exp_f32 v{S[i]}, v{S[i]}')
    a(f'v_add_f32 v{t1}, v{S[0]}, v{S[1]}')
    for i in range(2, n): a(f'v_add_f32 v{t1}, v{t1}, v{S[i]}')
    g_allreduce(a, t1, t2, 'v_add_f32')
    a(f'v_rcp_f32 v{t1}, v{t1}')
    for i in range(n): a(f'v_mul_f32 v{S[i]}, v{S[i]}, v{t1}')

def body_t2(a, ld, st, wait_fn=None, deep=False):
    a('s_lshr_b32 s41, s40, 5')
    a('s_and_b32 s42, s40, 31')
    a('v_and_b32 v1, 63, v0')
    a('v_lshrrev_b32 v2, 6, v0')
    a('v_readfirstlane_b32 s43, v2')
    a('s_lshl_b32 s44, s41, 2')
    a('s_add_u32 s44, s44, s43')
    a('v_and_b32 v3, 15, v1')
    a('v_lshrrev_b32 v4, 4, v1')
    a('v_lshlrev_b32 v5, 4, v1')
    a('s_lshl_b32 s46, s44, 15')
    a(f's_add_u32 s46, s46, {XN}')
    a('v_add_u32 v6, s46, v5')
    a('v_add_u32 v7, 16384, v6')
    a('s_lshl_b32 s46, s42, 17')
    a(f's_add_u32 s46, s46, {WT}')
    for t in range(8):
        a(f'v_add_u32 v{8+t}, s46, v5')
        if t < 7: a('s_add_u32 s46, s46, 16384')
    for r in range(128, 192): a(f'v_mov_b32 v{r}, 0')
    def mf(f):
        o = []
        for et in range(8):
            for tt in range(2):
                d = 128 + (et*2+tt)*4
                o.append(f'v_mfma_f32_16x16x32_bf16 v[{d}:{d+3}], {f(2+et)}, {f(tt)}, v[{d}:{d+3}]')
        return o
    gemm_loop(a, [(6+i, '') for i in range(10)], 16, mf, [('v',16), ('v',56)] + ([('a',0), ('a',40)] if deep else []))
    if wait_fn: wait_fn(a)
    a('v_and_b32 v7, 7, v1')
    a('v_lshlrev_b32 v7, 4, v7')
    a('v_lshl_add_u32 v7, v4, 7, v7')
    a('v_lshlrev_b32 v8, 6, v3')
    a('v_lshl_add_u32 v8, v4, 4, v8')
    a('v_and_b32 v9, 1, v4')
    a('v_lshlrev_b32 v9, 3, v9')
    a('v_lshl_add_u32 v9, v3, 4, v9')
    a('s_lshl_b32 s46, s42, 19')
    a('s_lshl_b32 s47, s44, 13')
    a('s_add_u32 s46, s46, s47')
    a(f's_add_u32 s60, s46, {KF}')
    a('s_add_u32 s61, s60, 4096')
    a(f's_add_u32 s62, s46, {VF}')
    a('s_add_u32 s63, s62, 4096')
    a('s_lshl_b32 s46, s42, 17')
    a('s_lshl_b32 s47, s44, 11')
    a('s_add_u32 s46, s46, s47')
    a(f's_add_u32 s64, s46, {KMF}')
    a(f's_add_u32 s65, s46, {VMF}')
    for kt in range(2):
        for m in range(4):
            r = 16 + (kt*4+m)*4
            a(f'buffer_load_dwordx4 v[{r}:{r+3}], v5, s[4:7], s{60+kt} offen offset:{m*1024} {ld}')
    for m in range(4):
        r = 48 + m*4
        a(f'buffer_load_dwordx4 v[{r}:{r+3}], v7, s[4:7], s64 offen offset:{m*512} {ld}')
    for et in range(8):
        r = 192 + et*4
        a(f'buffer_load_dwordx4 v[{r}:{r+3}], v8, s[4:7], s{62+et//4} offen offset:{(et%4)*1024} {ld}')
    for et in range(8):
        r = 224 + et*4
        a(f'buffer_load_dwordx2 v[{r}:{r+1}], v9, s[4:7], s65 offen offset:{et*256} {ld}')
        a(f'v_mov_b32 v{r+2}, 0'); a(f'v_mov_b32 v{r+3}, 0')
    for m in range(4):
        for tt in range(2):
            o = 96 + (m*2+tt)*4
            d0 = 128 + ((2*m)*2+tt)*4; d1 = 128 + ((2*m+1)*2+tt)*4
            a(f'v_cvt_pk_bf16_f32 v{o}, v{d0}, v{d0+1}'); a(f'v_cvt_pk_bf16_f32 v{o+1}, v{d0+2}, v{d0+3}')
            a(f'v_cvt_pk_bf16_f32 v{o+2}, v{d1}, v{d1+1}'); a(f'v_cvt_pk_bf16_f32 v{o+3}, v{d1+2}, v{d1+3}')
    a('v_lshlrev_b32 v10, 2, v4')
    for i in range(4):
        a(f'v_add_u32 v11, {i}, v10')
        a(f'v_cmp_le_u32 s[{66+2*i}:{67+2*i}], v11, v3')
    a('v_cmp_gt_u32 s[74:75], 2, v4')
    a('s_waitcnt vmcnt(16)')
    tiles = [(16, 0, 128), (16, 1, 132), (32, 1, 136), (48, 0, 140), (48, 1, 144)]
    for (kb, tt, d) in tiles:
        for m in range(4):
            c = '0' if m == 0 else f'v[{d}:{d+3}]'
            a(f'v_mfma_f32_16x16x32_bf16 v[{d}:{d+3}], v[{kb+4*m}:{kb+4*m+3}], v[{96+(m*2+tt)*4}:{96+(m*2+tt)*4+3}], {c}')
    a('v_mov_b32 v12, 0xf149f2ca')
    def fix0(a):
        for i in range(4): a(f'v_cndmask_b32 v{128+i}, v12, v{128+i}, s[{66+2*i}:{67+2*i}]')
        for i in range(4): a(f'v_cndmask_b32 v{140+i}, v12, v{140+i}, s[74:75]')
    def fix1(a):
        for i in range(4): a(f'v_cndmask_b32 v{136+i}, v12, v{136+i}, s[{66+2*i}:{67+2*i}]')
        for i in range(4): a(f'v_cndmask_b32 v{144+i}, v12, v{144+i}, s[74:75]')
    softmax_block(a, [128,129,130,131,140,141,142,143], fix0, 13, 14, 15)
    softmax_block(a, [132,133,134,135,136,137,138,139,144,145,146,147], fix1, 13, 14, 15)
    a('v_cvt_pk_bf16_f32 v80, v128, v129'); a('v_cvt_pk_bf16_f32 v81, v130, v131'); a('v_mov_b32 v82, 0'); a('v_mov_b32 v83, 0')
    a('v_cvt_pk_bf16_f32 v84, v140, v141'); a('v_cvt_pk_bf16_f32 v85, v142, v143'); a('v_mov_b32 v86, 0'); a('v_mov_b32 v87, 0')
    a('v_cvt_pk_bf16_f32 v88, v132, v133'); a('v_cvt_pk_bf16_f32 v89, v134, v135'); a('v_cvt_pk_bf16_f32 v90, v136, v137'); a('v_cvt_pk_bf16_f32 v91, v138, v139')
    a('v_cvt_pk_bf16_f32 v92, v144, v145'); a('v_cvt_pk_bf16_f32 v93, v146, v147'); a('v_mov_b32 v94, 0'); a('v_mov_b32 v95, 0')
    a('s_waitcnt vmcnt(0)')
    for et in range(8):
        for tt in range(2):
            d = 16 + (et*2+tt)*4
            a(f'v_mfma_f32_16x16x32_bf16 v[{d}:{d+3}], v[{192+4*et}:{192+4*et+3}], v[{80+8*tt}:{80+8*tt+3}], 0')
    for et in range(8):
        for tt in range(2):
            d = 16 + (et*2+tt)*4
            a(f'v_mfma_f32_16x16x32_bf16 v[{d}:{d+3}], v[{224+4*et}:{224+4*et+3}], v[{84+8*tt}:{84+8*tt+3}], v[{d}:{d+3}]')
    a('s_lshl_b32 s46, s44, 18')
    a('s_lshl_b32 s47, s42, 12')
    a('s_add_u32 s46, s46, s47')
    a(f's_add_u32 s46, s46, {OF}')
    a('s_add_u32 s47, s46, 131072')
    for m in range(4):
        for tt in range(2):
            o = 96 + (m*2+tt)*4
            d0 = 16 + ((2*m)*2+tt)*4; d1 = 16 + ((2*m+1)*2+tt)*4
            a(f'v_cvt_pk_bf16_f32 v{o}, v{d0}, v{d0+1}'); a(f'v_cvt_pk_bf16_f32 v{o+1}, v{d0+2}, v{d0+3}')
            a(f'v_cvt_pk_bf16_f32 v{o+2}, v{d1}, v{d1+1}'); a(f'v_cvt_pk_bf16_f32 v{o+3}, v{d1+2}, v{d1+3}')
            a(f'buffer_store_dwordx4 v[{o}:{o+3}], v5, s[4:7], s{46+tt} offen offset:{m*1024} {st}')

def gen_t2(L):
    a = Asm()
    a('s_cmp_ge_u32 s2, 512')
    a(f's_cbranch_scc1 {L}_end')
    srd(a, 4, 96, 0)
    a('s_waitcnt lgkmcnt(0)')
    srd_fin(a, 4, WS_SIZE)
    a('s_mov_b32 s40, s2')
    body_t2(a, '', '')
    a.label(f'{L}_end')
    finish(L, a, vgpr=256, accum=256)
    launches.append((L, 512, 256, 0))

def resid_store(a, acc, xr, t, voff, srd_x, sx, srd_o, so, off, ldx):
    a(f'v_cvt_pk_bf16_f32 v{t}, v{acc}, v{acc+1}'); a(f'v_lshlrev_b32 v{acc}, 16, v{t}'); a(f'v_and_b32 v{acc+1}, 0xffff0000, v{t}')
    a(f'v_cvt_pk_bf16_f32 v{t}, v{acc+2}, v{acc+3}'); a(f'v_lshlrev_b32 v{acc+2}, 16, v{t}'); a(f'v_and_b32 v{acc+3}, 0xffff0000, v{t}')
    a(f'v_lshlrev_b32 v{t}, 16, v{xr}'); a(f'v_add_f32 v{acc}, v{acc}, v{t}')
    a(f'v_and_b32 v{t}, 0xffff0000, v{xr}'); a(f'v_add_f32 v{acc+1}, v{acc+1}, v{t}')
    a(f'v_lshlrev_b32 v{t}, 16, v{xr+1}'); a(f'v_add_f32 v{acc+2}, v{acc+2}, v{t}')
    a(f'v_and_b32 v{t}, 0xffff0000, v{xr+1}'); a(f'v_add_f32 v{acc+3}, v{acc+3}, v{t}')
    a(f'v_cvt_pk_bf16_f32 v{xr}, v{acc}, v{acc+1}'); a(f'v_cvt_pk_bf16_f32 v{xr+1}, v{acc+2}, v{acc+3}')
    a(f'buffer_store_dwordx2 v[{xr}:{xr+1}], v{voff}, {srd_o}, {so} offen offset:{off}')

def body_t3(a, xsrd, xoff, dst, ld, deep=False, wait_fn=None):
    a('s_lshr_b32 s41, s40, 3')
    a('s_and_b32 s42, s40, 7')
    a('v_and_b32 v1, 63, v0')
    a('v_lshrrev_b32 v2, 6, v0')
    a('v_readfirstlane_b32 s43, v2')
    a('v_and_b32 v3, 15, v1')
    a('v_lshrrev_b32 v4, 4, v1')
    a('v_lshlrev_b32 v5, 4, v1')
    a('s_lshl_b32 s46, s42, 19')
    a('s_lshl_b32 s47, s43, 15')
    a('s_add_u32 s46, s46, s47')
    a(f's_add_u32 s46, s46, {WOT}')
    for t in range(4):
        a(f'v_add_u32 v{8+t}, s46, v5')
        if t < 3: a('s_add_u32 s46, s46, 131072')
    a('s_lshl_b32 s46, s41, 19')
    a('s_add_u32 s46, s46, s47')
    a(f's_add_u32 s46, s46, {OF}')
    for t in range(4):
        a(f'v_add_u32 v{12+t}, s46, v5')
        if t < 3: a('s_add_u32 s46, s46, 131072')
    for r in range(128, 192): a(f'v_mov_b32 v{r}, 0')
    if wait_fn: wait_fn(a)
    def mf(f):
        o = []
        for dt in range(4):
            for tt in range(4):
                d = 128 + (dt*4+tt)*4
                o.append(f'v_mfma_f32_16x16x32_bf16 v[{d}:{d+3}], {f(dt)}, {f(4+tt)}, v[{d}:{d+3}]')
        return o
    gemm_loop(a, [(8+i, '') for i in range(4)] + [(12+i, ld) for i in range(4)], 32, mf, [('v',16), ('v',48)] + ([('a',0), ('a',32)] if deep else []))
    a('v_lshlrev_b32 v6, 10, v3')
    a('v_lshl_add_u32 v6, v4, 3, v6')
    a('s_lshl_b32 s46, s41, 16')
    a('s_lshl_b32 s47, s43, 14')
    a('s_add_u32 s46, s46, s47')
    a('s_lshl_b32 s47, s42, 7')
    a('s_add_u32 s46, s46, s47')
    a(f's_add_u32 s47, s46, {dst}')
    if xoff: a(f's_add_u32 s46, s46, {xoff}')
    for dt in range(4): a(f'buffer_load_dwordx2 v[{96+2*dt}:{97+2*dt}], v6, {xsrd}, s46 offen offset:{dt*32}')
    a('v_lshlrev_b32 v7, 4, v1')
    a('s_lshl_b32 s44, s43, 14')
    a('v_add_u32 v8, s44, v7')
    for i in range(16): a(f'ds_write_b128 v8, v[{128+4*i}:{128+4*i+3}] offset:{i*1024}')
    a('s_waitcnt lgkmcnt(0)')
    a('s_barrier')
    a('s_lshl_b32 s44, s43, 10')
    a('v_add_u32 v8, s44, v7')
    for dt in range(4):
        for w2 in range(4):
            r = 16 + (dt*4+w2)*4
            a(f'ds_read_b128 v[{r}:{r+3}], v8 offset:{w2*16384 + dt*4096}')
    a('s_waitcnt lgkmcnt(0)')
    a('s_waitcnt vmcnt(0)')
    for dt in range(4):
        r = 16 + dt*16
        for i in range(4):
            a(f'v_add_f32 v{r+i}, v{r+i}, v{r+4+i}')
            a(f'v_add_f32 v{r+8+i}, v{r+8+i}, v{r+12+i}')
            a(f'v_add_f32 v{r+i}, v{r+i}, v{r+8+i}')
        resid_store(a, r, 96+2*dt, 9, 6, xsrd, 's46', 's[4:7]', 's47', dt*32, '')
    a('s_barrier')

def gen_t3(L, xoff, dst):
    a = Asm()
    a('s_cmp_ge_u32 s2, 256')
    a(f's_cbranch_scc1 {L}_end')
    srd(a, 4, 96, 0)
    srd(a, 76, 0, 0)
    a('s_waitcnt lgkmcnt(0)')
    srd_fin(a, 4, WS_SIZE)
    srd_fin(a, 76, 0x200000)
    a('s_mov_b32 s40, s2')
    if xoff is None: body_t3(a, 's[76:79]', 0, dst, '')
    else: body_t3(a, 's[4:7]', xoff, dst, '')
    a.label(f'{L}_end')
    finish(L, a, vgpr=256, accum=256)
    launches.append((L, 256, 256, 65536))

NTASK = 512 + 16*48
def gen_mega(L, layer, xoff, dst):
    a = Asm()
    a('s_cmp_ge_u32 s2, 256')
    a(f's_cbranch_scc1 {L}_end')
    srd(a, 4, 96, 0)
    srd(a, 8, 88, 0)
    srd(a, 76, 0, 0)
    a('s_waitcnt lgkmcnt(0)')
    srd_fin(a, 4, WS_SIZE)
    srd_fin(a, 8, 256)
    srd_fin(a, 76, 0x200000)
    role_select(a, L)
    a('s_cmp_eq_u32 s12, -1')
    a(f's_cbranch_scc1 {L}_worker')
    body_rec(a, L, layer, 'sc1', merged=True)
    a(f's_branch {L}_end')
    FL = FLG + layer*0x1000
    a.label(f'{L}_worker')
    a(f's_mov_b32 s80, {FL}')
    a.label(f'{L}_next')
    a('v_mbcnt_lo_u32_b32 v0, -1, 0')
    a('v_mbcnt_hi_u32_b32 v0, -1, v0')
    a('s_lshl_b32 s81, s14, 6')
    a('v_add_u32 v0, s81, v0')
    a('s_barrier')
    a('s_cmp_lg_u32 s14, 0')
    a(f's_cbranch_scc1 {L}_tw')
    a('s_mov_b64 exec, 1')
    a('v_mov_b32 v2, 40')
    a('v_mov_b32 v3, 1')
    a('buffer_atomic_add v3, v2, s[8:11], 0 offen sc0')
    a('s_waitcnt vmcnt(0)')
    a(f'v_mov_b32 v2, {LDS_REC - 256}')
    a('ds_write_b32 v2, v3')
    a('s_waitcnt lgkmcnt(0)')
    a('s_mov_b64 exec, -1')
    a.label(f'{L}_tw')
    a('s_barrier')
    a(f'v_mov_b32 v2, {LDS_REC - 256}')
    a('ds_read_b32 v3, v2')
    a('s_waitcnt lgkmcnt(0)')
    a('v_readfirstlane_b32 s81, v3')
    a(f's_cmp_ge_u32 s81, {NTASK}')
    a(f's_cbranch_scc1 {L}_end')
    def signal(off_sreg_expr):
        a('s_waitcnt vmcnt(0)')
        a('s_barrier')
        LL = a.uid('sig')
        a('s_cmp_lg_u32 s14, 0')
        a(f's_cbranch_scc1 {LL}')
        a('s_mov_b64 exec, 1')
        a('v_mov_b32 v2, s82')
        a('v_mov_b32 v3, 1')
        a('buffer_atomic_add v3, v2, s[4:7], s80 offen')
        if off_sreg_expr:
            a('v_mov_b32 v2, 128')
            a('buffer_atomic_add v3, v2, s[4:7], s80 offen')
        a('s_mov_b64 exec, -1')
        a.label(LL)
    def poll(a, off_s, thr_s):
        LL = a.uid('poll')
        a('s_mov_b32 s85, 0')
        a.label(LL)
        a(f'v_mov_b32 v254, {off_s}')
        a('buffer_load_dword v254, v254, s[4:7], s80 offen sc1')
        a('s_waitcnt vmcnt(0)')
        a('v_readfirstlane_b32 s84, v254')
        a(f's_cmp_ge_u32 s84, {thr_s}')
        a(f's_cbranch_scc1 {LL}_ok')
        a('s_sleep 8')
        a('s_add_u32 s85, s85, 1')
        a(f's_cmp_le_u32 s85, {SPIN_MAX*4}')
        a(f's_cbranch_scc1 {LL}')
        a.label(f'{LL}_ok')
    a('s_cmp_ge_u32 s81, 512')
    a(f's_cbranch_scc1 {L}_t23')
    a('s_mov_b32 s40, s81')
    body_t1(a, 'sc1', deep=True)
    a('s_lshl_b32 s82, s41, 2')
    signal(True)
    a(f's_branch {L}_next')
    a.label(f'{L}_t23')
    a('s_sub_u32 s81, s81, 512')
    a('s_mul_hi_u32 s83, s81, %d' % ((1 << 32) // 48 + 1))
    a('s_mul_i32 s82, s83, 48')
    a('s_sub_u32 s81, s81, s82')
    a('s_cmp_ge_u32 s81, 32')
    a(f's_cbranch_scc1 {L}_t3')
    a('s_lshl_b32 s40, s83, 5')
    a('s_add_u32 s40, s40, s81')
    def w2(a):
        a('s_lshl_b32 s86, s41, 2')
        poll(a, 's86', '32')
        a('s_lshl_b32 s86, s42, 2')
        a('s_add_u32 s86, s86, 512')
        a('s_lshl_b32 s87, s41, 2')
        a('s_add_u32 s87, s87, 4')
        poll(a, 's86', 's87')
    body_t2(a, 'sc1', 'sc1', wait_fn=w2, deep=True)
    a('s_lshl_b32 s82, s41, 2')
    a('s_add_u32 s82, s82, 256')
    signal(False)
    a(f's_branch {L}_next')
    a.label(f'{L}_t3')
    a('s_sub_u32 s81, s81, 32')
    a('s_lshl_b32 s40, s83, 4')
    a('s_add_u32 s40, s40, s81')
    def w3(a):
        a('s_lshl_b32 s86, s83, 2')
        a('s_add_u32 s86, s86, 256')
        poll(a, 's86', '32')
    if xoff is None: body_t3(a, 's[76:79]', 0, dst, 'sc1', deep=True, wait_fn=w3)
    else: body_t3(a, 's[4:7]', xoff, dst, 'sc1', deep=True, wait_fn=w3)
    a(f's_branch {L}_next')
    a.label(f'{L}_end')
    finish(L, a, vgpr=512, accum=256)
    launches.append((L, 256, 256, LDS_REC))

def phi(a, r, t, t2):
    a(f'v_add_f32 v{t}, 1.0, v{r}')
    a(f'v_mul_f32 v{t2}, 0x3fb8aa3b, v{r}')
    a(f'v_exp_f32 v{t2}, v{t2}')
    a(f'v_cmp_lt_f32 vcc, 0, v{r}')
    a(f'v_cndmask_b32 v{r}, v{t2}, v{t}, vcc')
    bf16_round(a, r, t)
    a(f'v_add_f32 v{r}, 0x358637bd, v{r}')
    bf16_round(a, r, t)

def gen_b1(L, layer):
    a = Asm()
    a('s_cmp_ge_u32 s2, 128')
    a(f's_cbranch_scc1 {L}_end')
    srd(a, 4, 96, 0)
    a('s_waitcnt lgkmcnt(0)')
    srd_fin(a, 4, WS_SIZE)
    a('s_lshr_b32 s41, s2, 1')
    a('s_and_b32 s42, s2, 1')
    a('v_and_b32 v1, 63, v0')
    a('v_lshrrev_b32 v2, 6, v0')
    a('v_readfirstlane_b32 s43, v2')
    a('v_and_b32 v3, 15, v1')
    a('v_lshrrev_b32 v4, 4, v1')
    a('v_lshlrev_b32 v5, 4, v1')
    a('s_lshl_b32 s44, s42, 4')
    a('s_lshl_b32 s45, s43, 2')
    a('s_add_u32 s44, s44, s45')
    a('s_lshl_b32 s46, s41, 15')
    a(f's_add_u32 s46, s46, {XN}')
    a('v_add_u32 v6, s46, v5')
    a('v_add_u32 v7, 16384, v6')
    a('s_lshl_b32 s46, s44, 14')
    a(f's_add_u32 s46, s46, {BQKV + 32*16384}')
    for t in range(4):
        a(f'v_add_u32 v{8+t}, s46, v5')
        a(f'v_add_u32 v{12+t}, {32*16384}, v{8+t}')
        if t < 3: a('s_add_u32 s46, s46, 16384')
    for r in range(128, 192): a(f'v_mov_b32 v{r}, 0')
    def mf(f):
        o = []
        for n in range(8):
            for tt in range(2):
                d = 128 + (n*2+tt)*4
                o.append(f'v_mfma_f32_16x16x32_bf16 v[{d}:{d+3}], {f(tt)}, {f(2+n)}, v[{d}:{d+3}]')
        return o
    gemm_loop(a, [(6+i, '') for i in range(10)], 16, mf, [('v',16), ('v',56)])
    for n in range(4):
        for r in range(128 + n*8, 128 + n*8 + 8):
            bf16_round(a, r, 10)
            phi(a, r, 10, 11)
    for n in range(8):
        o = 16 + 4*n; d = 128 + n*8
        for i in range(4): a(f'v_cvt_pk_bf16_f32 v{o+i}, v{d+2*i}, v{d+2*i+1}')
    for i in range(4): a(f'v_mov_b32 v{48+i}, 0x3f803f80')
    for n in range(4):
        a(f'v_mfma_f32_16x16x32_bf16 v[{64+8*n}:{64+8*n+3}], v[{16+4*n}:{16+4*n+3}], v[{32+4*n}:{32+4*n+3}], 0')
        a(f'v_mfma_f32_16x16x32_bf16 v[{68+8*n}:{68+8*n+3}], v[{16+4*n}:{16+4*n+3}], v[48:51], 0')
    a('v_mul_u32_u24 v6, 272, v4')
    a('v_lshl_add_u32 v6, v3, 2, v6')
    a('s_mul_i32 s46, s44, 1088')
    a(f's_add_u32 s46, s46, {KVB + layer*0x10000}')
    a('v_cmp_eq_u32 s[60:61], 0, v3')
    for n in range(4):
        for i in range(4):
            a(f'buffer_atomic_add_f32 v{64+8*n+i}, v6, s[4:7], s46 offen offset:{n*1088 + i*68}')
    a('s_mov_b64 exec, s[60:61]')
    for n in range(4):
        for i in range(4):
            a(f'buffer_atomic_add_f32 v{68+8*n+i}, v6, s[4:7], s46 offen offset:{n*1088 + i*68 + 64}')
    a('s_mov_b64 exec, -1')
    a.label(f'{L}_end')
    finish(L, a, vgpr=256, accum=256)
    launches.append((L, 128, 256, 0))

def gen_b2(L, layer, xoff, dst):
    a = Asm()
    a('s_cmp_ge_u32 s2, 64')
    a(f's_cbranch_scc1 {L}_end')
    srd(a, 4, 96, 0)
    srd(a, 76, 80, 0)
    a('s_waitcnt lgkmcnt(0)')
    srd_fin(a, 4, WS_SIZE)
    srd_fin(a, 76, 0x200000)
    a('s_mov_b32 s41, s2')
    a('v_and_b32 v1, 63, v0')
    a('v_lshrrev_b32 v2, 6, v0')
    a('v_readfirstlane_b32 s43, v2')
    a('v_and_b32 v3, 15, v1')
    a('v_lshrrev_b32 v4, 4, v1')
    a('v_lshlrev_b32 v5, 4, v1')
    a('s_lshl_b32 s46, s41, 15')
    a(f's_add_u32 s46, s46, {XN}')
    a('v_add_u32 v96, s46, v5')
    a('v_add_u32 v97, 16384, v96')
    a('s_lshl_b32 s46, s43, 17')
    a(f's_add_u32 s46, s46, {BQKV}')
    for t in range(8):
        a(f'v_add_u32 v{98+t}, s46, v5')
        if t < 7: a('s_add_u32 s46, s46, 16384')
    a('v_mul_u32_u24 v6, 272, v4')
    a('v_lshl_add_u32 v7, v3, 2, v6')
    a('s_mul_i32 s46, s43, %d' % (8*1088))
    a(f's_add_u32 s46, s46, {KVB + layer*0x10000}')
    for hh in range(8):
        if hh == 3 or hh == 6: a('s_add_u32 s46, s46, %d' % (3*1088))
        ho = (hh % 3)*1088
        for j in range(4):
            a(f'buffer_load_dword v{192+8*hh+j}, v7, s[4:7], s46 offen offset:{ho + j*68}')
            a(f'buffer_load_dword v{196+8*hh+j}, v6, s[4:7], s46 offen offset:{ho + j*68 + 64}')
    for r in range(128, 192): a(f'v_mov_b32 v{r}, 0')
    def mf(f):
        o = []
        for n in range(8):
            for tt in range(2):
                d = 128 + (n*2+tt)*4
                o.append(f'v_mfma_f32_16x16x32_bf16 v[{d}:{d+3}], {f(2+n)}, {f(tt)}, v[{d}:{d+3}]')
        return o
    gemm_loop(a, [(96+i, '') for i in range(10)], 16, mf, [('v',16), ('v',56)])
    for hh in range(8):
        b = 192 + 8*hh; o = 96 + 4*hh
        a(f'v_cvt_pk_bf16_f32 v{o}, v{b}, v{b+1}'); a(f'v_cvt_pk_bf16_f32 v{o+1}, v{b+2}, v{b+3}')
        a(f'v_cvt_pk_bf16_f32 v{o+2}, v{b+4}, v{b+5}'); a(f'v_cvt_pk_bf16_f32 v{o+3}, v{b+6}, v{b+7}')
    for r in range(128, 192):
        bf16_round(a, r, 10)
        phi(a, r, 10, 11)
    for i in range(16):
        d = 128 + 4*i
        a(f'v_cvt_pk_bf16_f32 v{16+2*i}, v{d}, v{d+1}'); a(f'v_cvt_pk_bf16_f32 v{17+2*i}, v{d+2}, v{d+3}')
    for hh in range(8):
        for tt in range(2):
            i = hh*2+tt
            a(f'v_mfma_f32_16x16x16_bf16 v[{192+4*i}:{192+4*i+3}], v[{96+4*hh}:{97+4*hh}], v[{16+2*i}:{17+2*i}], 0')
            a(f'v_mfma_f32_16x16x16_bf16 v[{128+4*i}:{128+4*i+3}], v[{98+4*hh}:{99+4*hh}], v[{16+2*i}:{17+2*i}], 0')
    for i in range(16):
        dn = 128 + 4*i; nm = 192 + 4*i
        bf16_round(a, dn, 10)
        a(f'v_add_f32 v{dn}, 0x358637bd, v{dn}')
        bf16_round(a, dn, 10)
        a(f'v_rcp_f32 v11, v{dn}')
        bf16_round2(a, nm, nm+1, 10); bf16_round2(a, nm+2, nm+3, 10)
        for k in range(4):
            a(f'v_mul_f32 v12, v{nm+k}, v11')
            a(f'v_fma_f32 v13, -v12, v{dn}, v{nm+k}')
            a(f'v_fma_f32 v{nm+k}, v13, v11, v12')
    a('v_lshlrev_b32 v8, 4, v1')
    a('s_lshl_b32 s44, s43, 13')
    a('v_add_u32 v9, s44, v8')
    for bb in range(4):
        for tt in range(2):
            o = 16 + (bb*2+tt)*4
            d0 = 192 + ((2*bb)*2+tt)*4; d1 = 192 + ((2*bb+1)*2+tt)*4
            a(f'v_cvt_pk_bf16_f32 v{o}, v{d0}, v{d0+1}'); a(f'v_cvt_pk_bf16_f32 v{o+1}, v{d0+2}, v{d0+3}')
            a(f'v_cvt_pk_bf16_f32 v{o+2}, v{d1}, v{d1+1}'); a(f'v_cvt_pk_bf16_f32 v{o+3}, v{d1+2}, v{d1+3}')
            a(f'ds_write_b128 v9, v[{o}:{o+3}] offset:{(bb*2+tt)*1024}')
    a('s_waitcnt lgkmcnt(0)')
    a('s_barrier')
    for i in range(32): a(f'ds_read_b128 v[{128+4*i}:{128+4*i+3}], v8 offset:{i*1024}')
    a('s_lshl_b32 s46, s43, 17')
    a(f's_add_u32 s46, s46, {BWO}')
    for t in range(8):
        a(f'v_add_u32 v{6+t}, s46, v5')
        if t < 7: a('s_add_u32 s46, s46, 16384')
    for r in range(64, 128): a(f'v_mov_b32 v{r}, 0')
    def loads2(ks, b):
        f = 16 + 0
        a(f's_mov_b32 s98, {ks*1024}')
        for t in range(8): a(f'buffer_load_dwordx4 v[{f+4*t}:{f+4*t+3}], v{6+t}, s[4:7], s98 offen')
    a('s_waitcnt lgkmcnt(0)')
    for ks in range(16):
        loads2(ks, 0)
        a('s_waitcnt vmcnt(0)')
        for dt in range(8):
            for tt in range(2):
                d = 64 + (dt*2+tt)*4
                a(f'v_mfma_f32_16x16x32_bf16 v[{d}:{d+3}], v[{16+4*dt}:{16+4*dt+3}], v[{128+(ks*2+tt)*4}:{128+(ks*2+tt)*4+3}], v[{d}:{d+3}]')
    a('v_lshlrev_b32 v6, 10, v3')
    a('v_lshl_add_u32 v6, v4, 3, v6')
    a('s_lshl_b32 s46, s41, 15')
    a('s_lshl_b32 s47, s43, 8')
    a('s_add_u32 s46, s46, s47')
    a(f's_add_u32 s60, s46, {xoff}')
    a('s_add_u32 s61, s60, 16384')
    if dst is None:
        a('s_mov_b32 s62, s46'); osrd = 's[76:79]'
    else:
        a(f's_add_u32 s62, s46, {dst}'); osrd = 's[4:7]'
    a('s_add_u32 s63, s62, 16384')
    for dt in range(8):
        for tt in range(2):
            i = dt*2+tt
            a(f'buffer_load_dwordx2 v[{16+2*i}:{17+2*i}], v6, s[4:7], s{60+tt} offen offset:{dt*32}')
    a('s_waitcnt vmcnt(0)')
    for dt in range(8):
        for tt in range(2):
            i = dt*2+tt
            resid_store(a, 64+4*i, 16+2*i, 9, 6, None, None, osrd, f's{62+tt}', dt*32, '')
    a.label(f'{L}_end')
    finish(L, a, vgpr=256, accum=256)
    launches.append((L, 64, 256, 32768))

def emit(path):
    hdr = open(os.path.join(os.path.dirname(__file__), '..', 'cdna_kernels', NAME + '.s.ref')).read().split('; Override')[0]
    s = hdr
    for (L, g, b, lds) in launches:
        s += f'; @launch kernel={L} grid=({g},1,1) block=({b},1,1) lds={lds}\n'
    s += '.amdgcn_target "amdgcn-amd-amdhsa--gfx950"\n.text\n'
    seen = set()
    for (L, t, k) in kernels:
        s += t
    s += '.section .rodata,"a"\n'
    for (L, t, k) in kernels:
        s += '.p2align 6\n' + k
    open(path, 'w').write(s)

if __name__ == '__main__':
    gen_prep()
    gen_ln('lna0_kernel', None)
    gen_mega('mega0_kernel', 0, None, X1)
    gen_ln('lnb0_kernel', X1)
    gen_b1('b1a_kernel', 0)
    gen_b2('b2a_kernel', 0, X1, X2)
    gen_ln('lna1_kernel', X2)
    gen_mega('mega1_kernel', 1, X2, X3)
    gen_ln('lnb1_kernel', X3)
    gen_b1('b1b_kernel', 1)
    gen_b2('b2b_kernel', 1, X3, None)
    emit(os.path.join(os.path.dirname(__file__), '..', 'cdna_kernels', NAME + '.s'))
```

```python
import sys, os
sys.path.insert(0, os.path.dirname(__file__))
from asmlib import Asm, kd

NAME = 'interleave_layers__memory_aug_recurrent_mem_tr__linear_attn_block__prompt'
WT   = 0x0000000
WOT  = 0x0C00000
BQKV = 0x1000000
BWO  = 0x1180000
XN   = 0x1200000
XS0  = 0x1400000
X1   = 0x1600000
X2   = 0x1800000
X3   = 0x1A00000
PQ   = 0x1C00000
XNB  = 0x1E00000
LSTR = 0x6000000
KF   = 0x2000000
VF   = 0x3000000
KMF  = 0x4000000
VMF  = 0x4400000
OF   = 0x5000000
MEMB = 0x6000000
PART = 0x6200000
KVB  = 0x6400000
FLG  = 0x6420000
WS_SIZE = 0x10000000

def srd(a, d, koff, size):
    a(f's_load_dwordx2 s[{d}:{d+1}], s[0:1], {koff}')
def srd_fin(a, d, size):
    a(f's_and_b32 s{d+1}, s{d+1}, 0xffff')
    a(f's_mov_b32 s{d+2}, {size}')
    a(f's_mov_b32 s{d+3}, 0x20000')

def bf16_round(a, v, t):
    a(f'v_cvt_pk_bf16_f32 v{t}, v{v}, v{v}')
    a(f'v_lshlrev_b32 v{v}, 16, v{t}')
def bf16_round2(a, v0, v1, t):
    a(f'v_cvt_pk_bf16_f32 v{t}, v{v0}, v{v1}')
    a(f'v_lshlrev_b32 v{v0}, 16, v{t}')
    a(f'v_and_b32 v{v1}, 0xffff0000, v{t}')

def wave_allreduce(a, v, t, op):
    a(f'{op}_dpp v{v}, v{v}, v{v} quad_perm:[1,0,3,2] row_mask:0xf bank_mask:0xf')
    a(f'{op}_dpp v{v}, v{v}, v{v} quad_perm:[2,3,0,1] row_mask:0xf bank_mask:0xf')
    a(f'{op}_dpp v{v}, v{v}, v{v} row_half_mirror row_mask:0xf bank_mask:0xf')
    a(f'{op}_dpp v{v}, v{v}, v{v} row_mirror row_mask:0xf bank_mask:0xf')
    g_allreduce(a, v, t, op)
def g_allreduce(a, v, t, op):
    a(f'v_mov_b32 v{t}, v{v}')
    a(f'v_permlane16_swap_b32 v{v}, v{t}')
    a(f'{op} v{v}, v{v}, v{t}')
    a(f'v_mov_b32 v{t}, v{v}')
    a(f'v_permlane32_swap_b32 v{v}, v{t}')
    a(f'{op} v{v}, v{v}, v{t}')

kernels = []
launches = []
def finish(label, a, vgpr=512, accum=256):
    a('s_endpgm')
    a.fix_hazards()
    txt = f'.globl {label}\n.p2align 8\n.type {label},@function\n{label}:\n' + a.text()
    kernels.append((label, txt, kd(label, vgpr, accum)))

N_TR = 2304
N_PREP0 = N_TR + 2 + 32 + 32 + 64 + 12
N_PREP = N_PREP0 + 512
def gen_prep():
    L = 'prep_kernel'
    a = Asm()
    a('s_cmp_ge_u32 s2, %d' % N_PREP)
    a('s_cbranch_scc1 prep_end')
    srd(a, 4, 96, 0)
    a('s_load_dwordx4 s[20:23], s[0:1], 0')
    a('s_load_dwordx4 s[24:27], s[0:1], 16')
    a('s_load_dwordx4 s[28:31], s[0:1], 32')
    a('s_load_dwordx4 s[32:35], s[0:1], 64')
    a('s_waitcnt lgkmcnt(0)')
    srd_fin(a, 4, WS_SIZE)
    a('v_and_b32 v1, 63, v0')
    a('v_lshrrev_b32 v2, 6, v0')
    a('s_cmp_ge_u32 s2, %d' % N_PREP0)
    a('s_cbranch_scc1 prep_ln')
    a('s_cmp_ge_u32 s2, %d' % N_TR)
    a('s_cbranch_scc1 prep_init')
    a('s_mov_b32 s11, 0x20000')
    a('s_cmp_ge_u32 s2, 1536')
    a('s_cbranch_scc1 prep_t_wo')
    a('s_lshr_b32 s16, s2, 9')
    a('s_and_b32 s17, s2, 511')
    a('s_and_b32 s18, s17, 7')
    a('s_lshr_b32 s19, s17, 3')
    a('s_mov_b32 s8, s24'); a('s_mov_b32 s9, s25')
    a('s_cmp_eq_u32 s16, 1'); a('s_cselect_b32 s8, s26, s8'); a('s_cselect_b32 s9, s27, s9')
    a('s_cmp_eq_u32 s16, 2'); a('s_cselect_b32 s8, s28, s8'); a('s_cselect_b32 s9, s29, s9')
    a('s_and_b32 s9, s9, 0xffff')
    a('s_mov_b32 s10, 0x400000')
    a('s_mov_b32 s12, 8192')
    a('s_lshl_b32 s13, s18, 19')
    a('s_lshl_b32 s36, s19, 7')
    a('s_add_u32 s13, s13, s36')
    a('s_lshl_b32 s14, s16, 22')
    a('s_lshl_b32 s36, s19, 16')
    a('s_add_u32 s14, s14, s36')
    a('s_lshl_b32 s36, s18, 11')
    a('s_add_u32 s14, s14, s36')
    a('s_add_u32 s14, s14, %d' % WT)
    a('s_mov_b32 s15, 16384')
    a('s_branch prep_tr_plain')
    a.label('prep_t_wo')
    a('s_cmp_ge_u32 s2, 2048')
    a('s_cbranch_scc1 prep_t_bqkv')
    a('s_sub_u32 s17, s2, 1536')
    a('s_and_b32 s18, s17, 63')
    a('s_lshr_b32 s19, s17, 6')
    a('s_mov_b32 s8, s30'); a('s_and_b32 s9, s31, 0xffff'); a('s_mov_b32 s10, 0x400000')
    a('s_mov_b32 s12, 1024')
    a('s_lshl_b32 s13, s18, 16')
    a('s_lshl_b32 s36, s19, 7')
    a('s_add_u32 s13, s13, s36')
    a('s_lshl_b32 s14, s19, 19')
    a('s_lshl_b32 s36, s18, 11')
    a('s_add_u32 s14, s14, s36')
    a('s_add_u32 s14, s14, %d' % WOT)
    a('s_mov_b32 s15, 131072')
    a('s_branch prep_tr_perm')
    a.label('prep_t_bqkv')
    a('s_cmp_ge_u32 s2, 2240')
    a('s_cbranch_scc1 prep_t_bwo')
    a('s_sub_u32 s17, s2, 2048')
    a('s_and_b32 s18, s17, 7')
    a('s_lshr_b32 s19, s17, 3')
    a('s_mov_b32 s8, s32'); a('s_and_b32 s9, s33, 0xffff'); a('s_mov_b32 s10, 0x180000')
    a('s_mov_b32 s12, 3072')
    a('s_mul_i32 s13, s18, %d' % (64*3072))
    a('s_lshl_b32 s36, s19, 7')
    a('s_add_u32 s13, s13, s36')
    a('s_lshl_b32 s14, s19, 16')
    a('s_lshl_b32 s36, s18, 11')
    a('s_add_u32 s14, s14, s36')
    a('s_add_u32 s14, s14, %d' % BQKV)
    a('s_mov_b32 s15, 16384')
    a('s_branch prep_tr_plain')
    a.label('prep_t_bwo')
    a('s_sub_u32 s17, s2, 2240')
    a('s_and_b32 s18, s17, 7')
    a('s_lshr_b32 s19, s17, 3')
    a('s_mov_b32 s8, s34'); a('s_and_b32 s9, s35, 0xffff'); a('s_mov_b32 s10, 0x80000')
    a('s_mov_b32 s12, 1024')
    a('s_lshl_b32 s13, s18, 16')
    a('s_lshl_b32 s36, s19, 7')
    a('s_add_u32 s13, s13, s36')
    a('s_lshl_b32 s14, s19, 16')
    a('s_lshl_b32 s36, s18, 11')
    a('s_add_u32 s14, s14, s36')
    a('s_add_u32 s14, s14, %d' % BWO)
    a('s_mov_b32 s15, 16384')
    a('s_branch prep_tr_perm')
    for perm in (0, 1):
        a.label('prep_tr_perm' if perm else 'prep_tr_plain')
        a('v_lshrrev_b32 v3, 3, v0')
        a('v_and_b32 v4, 7, v0')
        a('v_mul_lo_u32 v5, v3, s12')
        a('v_lshl_add_u32 v5, v4, 4, v5')
        a('s_lshl_b32 s36, s12, 5')
        a('s_add_u32 s36, s36, s13')
        a('buffer_load_dwordx4 v[8:11], v5, s[8:11], s13 offen')
        a('buffer_load_dwordx4 v[12:15], v5, s[8:11], s36 offen')
        a('v_mul_u32_u24 v6, 144, v3')
        a('v_lshl_add_u32 v6, v4, 4, v6')
        a('s_waitcnt vmcnt(1)')
        a('ds_write_b128 v6, v[8:11]')
        a('s_waitcnt vmcnt(0)')
        a('ds_write_b128 v6, v[12:15] offset:%d' % (32*144))
        a('s_waitcnt lgkmcnt(0)')
        a('s_barrier')
        for i in range(2):
            a('v_add_u32 v16, %d, v2' % (4*i))
            if perm:
                a('v_lshrrev_b32 v17, 2, v16')
                a('v_and_b32 v18, 3, v16')
                a('v_lshlrev_b32 v17, 5, v17')
                a('v_lshl_add_u32 v17, v18, 2, v17')
                hi = 16
            else:
                a('v_lshlrev_b32 v17, 3, v16')
                hi = 4
            a('v_mul_u32_u24 v17, 144, v17')
            a('v_lshl_add_u32 v17, v1, 1, v17')
            for j in range(8):
                row = j if j < 4 else hi + j - 4
                a('ds_read_u16 v%d, v17 offset:%d' % (24 + j, row*144))
            a('v_lshrrev_b32 v19, 4, v1')
            a('v_mul_lo_u32 v19, v19, s15')
            a('v_lshrrev_b32 v18, 2, v16')
            a('v_lshl_add_u32 v19, v18, 10, v19')
            a('v_and_b32 v18, 3, v16')
            a('v_lshl_add_u32 v19, v18, 8, v19')
            a('v_and_b32 v18, 15, v1')
            a('v_lshl_add_u32 v19, v18, 4, v19')
            a('s_waitcnt lgkmcnt(0)')
            for j in range(4):
                a('v_lshl_or_b32 v%d, v%d, 16, v%d' % (20 + j, 25 + 2*j, 24 + 2*j))
            a('buffer_store_dwordx4 v[20:23], v19, s[4:7], s14 offen')
            a('s_nop 1')
        a('s_branch prep_end')
    a.label('prep_init')
    a('s_sub_u32 s17, s2, %d' % N_TR)
    a('s_cmp_ge_u32 s17, 2')
    a('s_cbranch_scc1 prep_fill')
    a('s_mov_b32 s8, s22'); a('s_and_b32 s9, s23, 0xffff'); a('s_mov_b32 s10, 8192'); a('s_mov_b32 s11, 0x20000')
    a('s_lshl_b32 s14, s17, 20')
    a('s_add_u32 s14, s14, %d' % MEMB)
    for i in range(2):
        a('v_add_u32 v3, %d, v0' % (256*i))
        a('v_lshrrev_b32 v4, 5, v3')
        a('v_bfe_u32 v5, v3, 3, 2')
        a('v_and_b32 v6, 7, v3')
        a('v_lshlrev_b32 v7, 10, v6')
        a('v_lshl_add_u32 v7, v4, 6, v7')
        a('v_lshl_add_u32 v7, v5, 4, v7')
        a('buffer_load_dwordx4 v[8:11], v7, s[8:11], 0 offen')
        a('v_lshlrev_b32 v12, 4, v3')
        a('s_waitcnt vmcnt(0)')
        a('buffer_store_dwordx4 v[8:11], v12, s[4:7], s14 offen')
        a('s_nop 1')
    a('s_branch prep_end')
    a.label('prep_fill')
    a('s_sub_u32 s17, s17, 2')
    a('s_mov_b32 s18, -1')
    a('s_mov_b32 s14, %d' % (MEMB + 8192))
    a('s_cmp_ge_u32 s17, 32')
    a('s_cselect_b32 s14, %d, s14' % (MEMB + 0x100000 + 8192 - 32*16384))
    a('s_cmp_ge_u32 s17, 64')
    a('s_cselect_b32 s14, %d, s14' % (PART - 64*16384))
    a('s_cmp_ge_u32 s17, 128')
    a('s_cselect_b32 s14, %d, s14' % (KVB - 128*16384))
    a('s_cselect_b32 s18, 0, s18')
    a('s_lshl_b32 s19, s17, 14')
    a('s_add_u32 s14, s14, s19')
    a('v_mov_b32 v8, s18'); a('v_mov_b32 v9, s18'); a('v_mov_b32 v10, s18'); a('v_mov_b32 v11, s18')
    a('v_lshlrev_b32 v3, 4, v0')
    for i in range(4):
        a('buffer_store_dwordx4 v[8:11], v3, s[4:7], s14 offen offset:%d' % 0 if i == 0 else
          'buffer_store_dwordx4 v[8:11], v3, s[4:7], s14 offen')
        if i < 3: a('s_add_u32 s14, s14, 4096')
    a('s_branch prep_end')
    a.label('prep_ln')
    a('s_sub_u32 s17, s2, %d' % N_PREP0)
    a('s_mov_b32 s8, s20'); a('s_and_b32 s9, s21, 0xffff'); a('s_mov_b32 s10, 0x200000'); a('s_mov_b32 s11, 0x20000')
    a('s_lshl_b32 s12, s17, 12')
    a('v_lshlrev_b32 v1, 4, v0')
    a('buffer_load_dwordx4 v[4:7], v1, s[8:11], s12 offen')
    a(f's_add_u32 s13, s12, {XS0}')
    a('s_waitcnt vmcnt(0)')
    a('buffer_store_dwordx4 v[4:7], v1, s[4:7], s13 offen')
    ln_core(a, 24)
    a('v_lshrrev_b32 v22, 6, v0')
    a('s_lshl_b32 s13, s17, 2')
    a('v_add_u32 v22, s13, v22')
    a('v_lshrrev_b32 v23, 4, v22')
    a('v_lshlrev_b32 v23, 14, v23')
    a('v_and_b32 v22, 15, v22')
    a('v_lshl_add_u32 v23, v22, 4, v23')
    a('v_bfe_u32 v22, v0, 2, 4')
    a('v_lshl_add_u32 v23, v22, 10, v23')
    a('v_and_b32 v22, 3, v0')
    a('v_lshl_add_u32 v23, v22, 8, v23')
    a(f's_mov_b32 s13, {XN}')
    a('buffer_store_dwordx4 v[24:27], v23, s[4:7], s13 offen')
    a.label('prep_end')
    finish(L, a, vgpr=32, accum=32)
    launches.append((L, N_PREP, 256, 64*144))

def ln_core(a, dreg):
    for i in range(4):
        a(f'v_lshlrev_b32 v{8+2*i}, 16, v{4+i}')
        a(f'v_and_b32 v{9+2*i}, 0xffff0000, v{4+i}')
    a('v_add_f32 v16, v8, v9')
    for i in range(2, 8): a(f'v_add_f32 v16, v16, v{8+i}')
    wave_allreduce(a, 16, 17, 'v_add_f32')
    a('v_mul_f32 v16, 0x3b000000, v16')
    a('v_mov_b32 v18, 0')
    for i in range(8):
        a(f'v_sub_f32 v17, v{8+i}, v16')
        a('v_fmac_f32 v18, v17, v17')
    wave_allreduce(a, 18, 17, 'v_add_f32')
    a('v_mul_f32 v18, 0x3b000000, v18')
    bf16_round(a, 18, 17)
    a('v_add_f32 v18, 0x3727c5ac, v18')
    bf16_round(a, 18, 17)
    a('v_sqrt_f32 v18, v18')
    bf16_round(a, 18, 17)
    bf16_round(a, 16, 17)
    a('v_rcp_f32 v19, v18')
    for i in range(0, 8, 2):
        a(f'v_sub_f32 v{8+i}, v{8+i}, v16')
        a(f'v_sub_f32 v{9+i}, v{9+i}, v16')
        bf16_round2(a, 8+i, 9+i, 17)
        for k in (8+i, 9+i):
            a(f'v_mul_f32 v20, v{k}, v19')
            a(f'v_fma_f32 v21, -v20, v18, v{k}')
            a(f'v_fma_f32 v{k}, v21, v19, v20')
        a(f'v_cvt_pk_bf16_f32 v{dreg+i//2}, v{8+i}, v{9+i}')

def body_lnb(a):
    a('v_and_b32 v1, 63, v0')
    a('v_lshlrev_b32 v2, 4, v1')
    a('s_lshl_b32 s46, s40, 14')
    a('s_lshl_b32 s47, s14, 12')
    a('s_add_u32 s46, s46, s47')
    a('s_lshl_b32 s47, s89, 22')
    a('s_add_u32 s46, s46, s47')
    a(f's_add_u32 s46, s46, {X1}')
    for r in range(4): a(f'buffer_load_dwordx4 v[{32+4*r}:{32+4*r+3}], v2, s[4:7], s46 offen offset:{r*1024} sc1')
    a('v_lshrrev_b32 v22, 2, v1')
    a('v_lshlrev_b32 v23, 10, v22')
    a('v_and_b32 v22, 3, v1')
    a('v_lshl_add_u32 v23, v22, 8, v23')
    a('s_lshl_b32 s46, s40, 14')
    a('s_lshl_b32 s47, s14, 6')
    a('s_add_u32 s46, s46, s47')
    a('s_add_u32 s46, s46, s88')
    a(f's_add_u32 s46, s46, {XNB}')
    for r in range(4):
        a('s_waitcnt vmcnt(3)')
        for i in range(4): a(f'v_mov_b32 v{4+i}, v{32+4*r+i}')
        ln_core(a, 48+4*r)
        a(f'buffer_store_dwordx4 v[{48+4*r}:{48+4*r+3}], v23, s[4:7], s46 offen offset:{r*16} sc1')

def gemm_loop(a, streams, nks, mfmas, bufs):
    L = a.uid('gl')
    n = len(streams); D = len(bufs)
    assert nks % D == 0
    def R(b):
        k, base = bufs[b]
        return lambda i: f'{k}[{base+4*i}:{base+4*i+3}]'
    def loads(b, off):
        sr = 's98'
        if off > 4095: sr = 's99'; off -= 4096
        for i, (va, sfx) in enumerate(streams):
            a(f'buffer_load_dwordx4 {R(b)(i)}, v{va}, s[4:7], {sr} offen offset:{off} {sfx}')
    a('s_mov_b32 s98, 0')
    a('s_mov_b32 s99, 4096')
    for j in range(D-1): loads(j, j*1024)
    a.label(L)
    for j in range(D):
        loads((j+D-1) % D, (j+D-1)*1024)
        a(f's_waitcnt vmcnt({(D-1)*n})')
        for m in mfmas(R(j)): a(m)
    a(f's_add_u32 s98, s98, {D*1024}')
    a(f's_add_u32 s99, s99, {D*1024}')
    a(f's_cmp_lt_u32 s98, {nks*1024}')
    a(f's_cbranch_scc1 {L}')
    a('s_waitcnt vmcnt(0)')

def body_t1(a, sfx, deep=False, wait_fn=None):
    a('s_lshr_b32 s41, s40, 5')
    a('s_and_b32 s42, s40, 31')
    a('v_and_b32 v1, 63, v0')
    a('v_lshrrev_b32 v2, 6, v0')
    a('v_readfirstlane_b32 s43, v2')
    a('s_lshr_b32 s44, s43, 1')
    a('s_and_b32 s45, s43, 1')
    a('v_lshlrev_b32 v3, 4, v1')
    a('s_lshl_b32 s46, s41, 17')
    a('s_lshl_b32 s47, s44, 16')
    a('s_add_u32 s46, s46, s47')
    a(f's_add_u32 s46, s46, {XN}')
    a('s_add_u32 s46, s46, s88')
    if wait_fn: wait_fn(a)
    for t in range(4):
        a(f'v_add_u32 v{4+t}, s46, v3')
        if t < 3: a('s_add_u32 s46, s46, 16384')
    a('s_lshl_b32 s46, s42, 17')
    a('s_lshl_b32 s47, s45, 16')
    a('s_add_u32 s46, s46, s47')
    a(f's_add_u32 s46, s46, {WT + 256*16384}')
    for t in range(4):
        a(f'v_add_u32 v{8+t}, s46, v3')
        a(f'v_add_u32 v{12+t}, {256*16384}, v{8+t}')
        if t < 3: a('s_add_u32 s46, s46, 16384')
    ACK = 128; ACV = 192
    for r in range(128, 256): a(f'v_mov_b32 v{r}, 0')
    def mf(f):
        o = []
        for et in range(4):
            for tt in range(4):
                d = ACK + (et*4+tt)*4
                o.append(f'v_mfma_f32_16x16x32_bf16 v[{d}:{d+3}], {f(4+et)}, {f(tt)}, v[{d}:{d+3}]')
        for tt in range(4):
            for et in range(4):
                d = ACV + (tt*4+et)*4
                o.append(f'v_mfma_f32_16x16x32_bf16 v[{d}:{d+3}], {f(tt)}, {f(8+et)}, v[{d}:{d+3}]')
        return o
    gemm_loop(a, [(4+i, 'sc1' if i < 4 else '') for i in range(12)], 16, mf, [('v',16), ('v',64)] + ([('a',0), ('a',48)] if deep else []))
    a('s_lshl_b32 s46, s42, 19')
    a('s_lshl_b32 s47, s41, 15')
    a('s_add_u32 s46, s46, s47')
    a('s_lshl_b32 s47, s44, 14')
    a('s_add_u32 s46, s46, s47')
    a('s_lshl_b32 s47, s45, 11')
    a('s_add_u32 s46, s46, s47')
    a(f's_add_u32 s46, s46, {KF}')
    a('s_add_u32 s46, s46, s88')
    k = 0
    for tt in range(4):
        if tt: a('s_add_u32 s46, s46, 4096')
        for mm in range(2):
            o = 16 + 4*(k % 8); k += 1
            d0 = ACK + ((2*mm)*4+tt)*4; d1 = ACK + ((2*mm+1)*4+tt)*4
            a(f'v_cvt_pk_bf16_f32 v{o}, v{d0}, v{d0+1}')
            a(f'v_cvt_pk_bf16_f32 v{o+1}, v{d0+2}, v{d0+3}')
            a(f'v_cvt_pk_bf16_f32 v{o+2}, v{d1}, v{d1+1}')
            a(f'v_cvt_pk_bf16_f32 v{o+3}, v{d1+2}, v{d1+3}')
            a(f'buffer_store_dwordx4 v[{o}:{o+3}], v3, s[4:7], s46 offen offset:{mm*1024} {sfx}')
    a('v_and_b32 v5, 15, v1')
    a('v_lshrrev_b32 v6, 4, v1')
    a('v_lshlrev_b32 v7, 6, v5')
    a('v_lshl_add_u32 v7, v6, 4, v7')
    a('s_lshl_b32 s46, s42, 19')
    a('s_lshl_b32 s47, s41, 15')
    a('s_add_u32 s46, s46, s47')
    a('s_lshl_b32 s47, s44, 14')
    a('s_add_u32 s46, s46, s47')
    a('s_lshl_b32 s47, s45, 12')
    a('s_add_u32 s46, s46, s47')
    a(f's_add_u32 s46, s46, {VF}')
    a('s_add_u32 s46, s46, s88')
    for sg in range(2):
        if sg: a('s_add_u32 s46, s46, 8192')
        for et in range(4):
            o = 48 + 4*(k % 8); k += 1
            d0 = ACV + ((2*sg)*4+et)*4; d1 = ACV + ((2*sg+1)*4+et)*4
            a(f'v_cvt_pk_bf16_f32 v{o}, v{d0}, v{d0+1}')
            a(f'v_cvt_pk_bf16_f32 v{o+1}, v{d0+2}, v{d0+3}')
            a(f'v_cvt_pk_bf16_f32 v{o+2}, v{d1}, v{d1+1}')
            a(f'v_cvt_pk_bf16_f32 v{o+3}, v{d1+2}, v{d1+3}')
            a(f'buffer_store_dwordx4 v[{o}:{o+3}], v7, s[4:7], s46 offen offset:{et*1024} {sfx}')

def gen_t1(L):
    a = Asm()
    a('s_cmp_ge_u32 s2, 512')
    a(f's_cbranch_scc1 {L}_end')
    srd(a, 4, 96, 0)
    a('s_waitcnt lgkmcnt(0)')
    srd_fin(a, 4, WS_SIZE)
    a('s_mov_b32 s40, s2')
    body_t1(a, '')
    a.label(f'{L}_end')
    finish(L, a, vgpr=256, accum=256)
    launches.append((L, 512, 256, 0))


LDS_SC = 131072
LDS_OB = LDS_SC + 6144
LDS_MS = LDS_OB + 2048
LDS_PF = LDS_MS + 8192
LDS_ROLE = LDS_SC
LDS_REC = LDS_PF + 16384
SPIN_MAX = 1 << 20

def interleave(a, mf, va, per=3):
    i = 0
    for m in mf:
        a(m)
        for _ in range(per):
            if i < len(va): a(va[i]); i += 1
    while i < len(va): a(va[i]); i += 1

def role_select(a, L):
    a('v_lshrrev_b32 v1, 6, v0')
    a('v_readfirstlane_b32 s14, v1')
    a('s_cmp_lg_u32 s14, 0')
    a(f's_cbranch_scc1 {L}_role_wait')
    a('s_getreg_b32 s26, hwreg(HW_REG_XCC_ID)')
    a('s_and_b32 s26, s26, 7')
    a('s_mov_b64 s[28:29], exec')
    a('s_mov_b64 exec, 1')
    a('s_lshl_b32 s27, s26, 2')
    a('v_mov_b32 v2, s27')
    a('v_mov_b32 v3, 1')
    a('buffer_atomic_add v3, v2, s[8:11], 0 offen sc0')
    a('s_waitcnt vmcnt(0)')
    a('v_readfirstlane_b32 s27, v3')
    a('s_mov_b32 s12, -1')
    a('s_cmp_ge_u32 s27, 32')
    a(f's_cbranch_scc1 {L}_role_done')
    a('v_mov_b32 v2, 32')
    a('s_add_u32 s26, s26, 1')
    a('s_cmp_lg_u32 s27, 31')
    a(f's_cbranch_scc1 {L}_role_poll0')
    a('v_mov_b32 v4, s26')
    a('v_mov_b32 v5, 0')
    a('buffer_atomic_cmpswap v[4:5], v2, s[8:11], 0 offen sc0')
    a('s_waitcnt vmcnt(0)')
    a.label(f'{L}_role_poll0')
    a('s_mov_b32 s36, 0')
    a.label(f'{L}_role_poll')
    a('buffer_load_dword v3, v2, s[8:11], 0 offen sc1')
    a('s_waitcnt vmcnt(0)')
    a('v_readfirstlane_b32 s37, v3')
    a('s_cmp_lg_u32 s37, 0')
    a(f's_cbranch_scc1 {L}_role_dec')
    a('s_sleep 4')
    a('s_add_u32 s36, s36, 1')
    a('s_cmp_lt_u32 s36, 4000')
    a(f's_cbranch_scc1 {L}_role_poll')
    a('v_mov_b32 v4, 100')
    a('v_mov_b32 v5, 0')
    a('buffer_atomic_cmpswap v[4:5], v2, s[8:11], 0 offen sc0')
    a('s_waitcnt vmcnt(0)')
    a(f's_branch {L}_role_poll0')
    a.label(f'{L}_role_dec')
    a('s_cmp_eq_u32 s37, s26')
    a('s_cselect_b32 s12, s27, s12')
    a('s_cmp_lg_u32 s37, 100')
    a(f's_cbranch_scc1 {L}_role_done')
    a('v_mov_b32 v2, 36')
    a('v_mov_b32 v3, 1')
    a('buffer_atomic_add v3, v2, s[8:11], 0 offen sc0')
    a('s_waitcnt vmcnt(0)')
    a('v_readfirstlane_b32 s27, v3')
    a('s_or_b32 s26, s27, 256')
    a('s_cmp_lt_u32 s27, 32')
    a('s_cselect_b32 s12, s26, s12')
    a.label(f'{L}_role_done')
    a('v_mov_b32 v2, %d' % LDS_ROLE)
    a('v_mov_b32 v3, s12')
    a('ds_write_b32 v2, v3')
    a('s_waitcnt lgkmcnt(0)')
    a('s_mov_b64 exec, s[28:29]')
    a.label(f'{L}_role_wait')
    a('s_barrier')
    a('v_mov_b32 v2, %d' % LDS_ROLE)
    a('ds_read_b32 v3, v2')
    a('s_waitcnt lgkmcnt(0)')
    a('v_readfirstlane_b32 s12, v3')

PROF = int(os.environ.get('PROF', '0'))
def stamp(a, i):
    if not PROF: return
    a('s_memtime s[50:51]')
    a('s_waitcnt lgkmcnt(0)')
    if i > 0:
        a('s_sub_u32 s52, s50, s53')
        a(f's_add_u32 s{60+i}, s{60+i}, s52')
    a('s_mov_b32 s53, s50')

def body_rec(a, L, layer, xs, merged=False):
    OOB = '0x7fffff00'
    a('s_lshr_b32 s13, s12, 8')
    a('s_and_b32 s12, s12, 31')
    a('v_and_b32 v0, 63, v0')
    a('v_and_b32 v12, 15, v0')
    a('v_lshrrev_b32 v13, 4, v0')
    a('v_and_b32 v14, 7, v0')
    a('v_cmp_gt_u32 s[30:31], 8, v12')
    a('v_cmp_gt_u32 s[32:33], 8, v0')
    a('v_cmp_gt_u32 s[34:35], 32, v0')
    a(f'v_mov_b32 v16, {OOB}')
    a('v_lshlrev_b32 v1, 7, v13')
    a('v_lshl_add_u32 v1, v14, 4, v1')
    a('s_lshl_b32 s26, s14, 10')
    a('v_lshlrev_b32 v2, 4, v0')
    a('v_add_u32 v2, s26, v2')
    a('s_lshl_b32 s26, s14, 11')
    a('v_lshlrev_b32 v3, 6, v12')
    a('v_lshl_add_u32 v3, v13, 4, v3')
    a('v_add_u32 v3, s26, v3')
    a('v_lshlrev_b32 v4, 6, v12')
    a('v_lshl_add_u32 v4, v13, 4, v4')
    a('v_cndmask_b32 v4, v16, v4, s[30:31]')
    a('s_lshl_b32 s26, s14, 7')
    a('v_lshrrev_b32 v5, 3, v0')
    a('v_lshlrev_b32 v5, 9, v5')
    a('v_lshl_add_u32 v5, v14, 4, v5')
    a('v_add_u32 v5, s26, v5')
    a('v_bfe_u32 v15, v0, 1, 1')
    a('v_lshlrev_b32 v6, 7, v15')
    a('v_bfe_u32 v15, v0, 2, 1')
    a('v_lshl_add_u32 v6, v15, 4, v6')
    a('v_and_b32 v15, 1, v0')
    a('v_lshl_add_u32 v6, v15, 3, v6')
    a('s_lshl_b32 s26, s14, 5')
    a('v_add_u32 v6, s26, v6')
    a('v_cndmask_b32 v6, v16, v6, s[32:33]')
    a('s_lshl_b32 s26, s14, 9')
    a('v_add_u32 v7, s26, v1')
    a('v_cndmask_b32 v7, v16, v7, s[30:31]')
    a('s_lshl_b32 s26, s14, 9')
    a('v_lshlrev_b32 v8, 4, v12')
    a('v_lshl_add_u32 v8, v13, 3, v8')
    a('v_add_u32 v8, s26, v8')
    a('v_cndmask_b32 v8, v16, v8, s[34:35]')
    a('v_lshlrev_b32 v9, 4, v0')
    a('s_lshl_b32 s26, s14, 15')
    a('v_add_u32 v10, s26, v9')
    a('s_lshl_b32 s26, s12, 17')
    a('s_lshl_b32 s27, s14, 15')
    a('s_add_u32 s26, s26, s27')
    a(f's_add_u32 s26, s26, {WT}')
    def wreg(which, et, ks):
        i = (et*16 + ks)*4
        if which == 0: return f'a[{i}:{i+3}]'
        if which == 1: return f'a[{128+i}:{128+i+3}]'
        return f'v[{128+i}:{128+i+3}]'
    for which in range(3):
        for et in range(2):
            for ks in range(16):
                if ks % 4 == 0: a(f's_add_u32 s27, s26, {which*256*16384 + et*16384 + ks*1024}')
                a(f'buffer_load_dwordx4 {wreg(which, et, ks)}, v9, s[4:7], s27 offen offset:{(ks%4)*1024}')
    a('s_lshl_b32 s26, s14, 20')
    a('s_lshl_b32 s27, s12, 12')
    a('s_add_u32 s26, s26, s27')
    a(f's_add_u32 s26, s26, {WOT}')
    a('s_lshl_b32 s27, s14, 15')
    for dt in range(8):
        a('s_mov_b32 m0, s27')
        for m in range(4):
            a(f'buffer_load_dwordx4 v9, s[4:7], s26 offen offset:{m*1024} lds')
        a('s_add_u32 s26, s26, 131072')
        a('s_add_u32 s27, s27, 4096')
    a(f'v_add_u32 v11, {LDS_PF}, v9')
    a('s_lshl_b32 s26, s14, 9')
    a(f'v_add_u32 v12, {LDS_SC}, v1')
    a('v_add_u32 v13, s26, v12')
    a(f'v_add_u32 v14, {LDS_OB}, v1')
    a('v_add_u32 v15, s26, v14')
    a('s_lshl_b32 s26, s14, 11')
    a('v_add_u32 v17, s26, v9')
    a(f'v_add_u32 v18, {LDS_MS}, v17')
    a(f'v_add_u32 v1, {LDS_MS}, v1')
    a('v_mov_b32 v9, v17')
    a('v_mov_b32 v0, v18')
    a('s_mov_b32 s89, 0')
    a('s_mov_b32 s88, 0')
    a.label(f'{L}_layer')
    a('s_lshl_b32 s16, s89, 20')
    a(f's_add_u32 s16, s16, {MEMB}')
    a('s_add_u32 s17, s16, 4096')
    a('s_lshr_b32 s26, s12, 1')
    a('s_lshl_b32 s26, s26, 9')
    a('s_and_b32 s27, s12, 1')
    a('s_lshl_b32 s27, s27, 8')
    a('s_add_u32 s18, s26, s27')
    a('s_add_u32 s18, s18, s16')
    a('s_add_u32 s18, s18, 8192')
    a('s_lshl_b32 s26, s12, 19')
    a('s_add_u32 s26, s26, s88')
    a(f's_add_u32 s19, s26, {KF}')
    a('s_add_u32 s20, s19, 4096')
    a(f's_add_u32 s21, s26, {VF}')
    a('s_lshl_b32 s26, s12, 9')
    a('s_lshl_b32 s27, s14, 17')
    a('s_add_u32 s22, s26, s27')
    a(f's_add_u32 s22, s22, {PART}')
    a('s_lshl_b32 s26, s12, 14')
    a(f's_add_u32 s23, s26, {PART}')
    a('s_lshl_b32 s26, s12, 17')
    a('s_add_u32 s26, s26, s88')
    a(f's_add_u32 s24, s26, {KMF}')
    a(f's_add_u32 s25, s26, {VMF}')
    a('s_mov_b32 s15, 0')
    a('s_lshl_b32 s38, s14, 11')
    a(f's_add_u32 s38, s38, {LDS_PF}')
    a('s_add_u32 s39, s38, 1024')
    def prefetch():
        o = ['s_mov_b32 m0, s38', f'buffer_load_dwordx4 v2, s[4:7], s19 offen {xs} lds',
             's_mov_b32 m0, s39', f'buffer_load_dwordx4 v2, s[4:7], s20 offen {xs} lds',
             's_add_u32 s19, s19, 8192', 's_add_u32 s20, s20, 8192',
             's_xor_b32 s38, s38, 0x2000', 's_xor_b32 s39, s39, 0x2000']
        return o
    a('s_mov_b32 s41, 0')
    a('s_lshl_b32 s42, s89, 12')
    a(f's_add_u32 s42, s42, {FLG}')
    a('s_lshl_b32 s43, s12, 2')
    a('s_add_u32 s43, s43, s42')
    a('s_add_u32 s43, s43, 512')
    def kvwait(LL, rbreg):
        LL2 = a.uid('kvw')
        a('s_cmp_lg_u32 s41, 0')
        a(f's_cbranch_scc1 {LL2}_ok')
        a('s_mov_b32 s46, 0')
        a.label(f'{LL2}_p')
        a(f's_lshl_b32 s44, {rbreg}, 2')
        a('v_mov_b32 v50, s44')
        a('v_mov_b32 v51, 128')
        a('buffer_load_dword v50, v50, s[4:7], s42 offen sc1')
        a('buffer_load_dword v51, v51, s[4:7], s42 offen sc1')
        a('s_waitcnt vmcnt(0)')
        a('v_readfirstlane_b32 s44, v50')
        a('v_readfirstlane_b32 s45, v51')
        a('s_cmp_ge_u32 s45, 512')
        a('s_cselect_b32 s41, 1, 0')
        a('s_cmp_ge_u32 s44, 32')
        a(f's_cbranch_scc1 {LL2}_ok')
        a('s_sleep 2')
        a('s_add_u32 s46, s46, 1')
        a(f's_cmp_le_u32 s46, {SPIN_MAX*4}')
        a(f's_cbranch_scc1 {LL2}_p')
        a.label(f'{LL2}_ok')
    if merged:
        a('s_mov_b32 s47, 0')
        kvwait(L, 's47')
    for x in prefetch(): a(x)
    a('s_waitcnt vmcnt(0)')
    a('s_barrier')
    if PROF:
        for i in range(60, 70): a(f's_mov_b32 s{i}, 0')
        a('s_memrealtime s[92:93]')
        a('s_waitcnt lgkmcnt(0)')
    a('s_xor_b32 s29, s23, 0x80000')
    a('s_add_u32 s26, s29, 4096'); a('s_add_u32 s27, s29, 8192'); a('s_add_u32 s28, s29, 12288')
    a('s_cmp_lg_u32 s13, 0')
    a(f's_cbranch_scc1 {L}_s_step')
    for mode in ('f', 's'):
        rec_loop(a, f'{L}_{mode}', 'sc1' if mode == 's' else '', xs, wreg, prefetch, kvwait if merged else None)
        if mode == 'f': a(f's_branch {L}_recdone')
    a.label(f'{L}_recdone')
    for i in range(4): a(f'v_mov_b32 v{92+i}, -1')
    for sr in ('s29', 's26', 's27', 's28'): a(f'buffer_store_dwordx4 v[92:95], v5, s[4:7], {sr} offen sc1')
    if merged:
        a('s_waitcnt vmcnt(0)')
        a('s_barrier')
        a('s_cmp_lg_u32 s14, 0')
        a(f's_cbranch_scc1 {L}_nopub')
        a('v_mov_b32 v56, 64')
        a('v_mov_b32 v57, 0')
        a('buffer_store_dword v56, v57, s[4:7], s43 offen sc1')
        a.label(f'{L}_nopub')
        a('s_add_u32 s89, s89, 1')
        a(f's_add_u32 s88, s88, {LSTR}')
        a('s_cmp_lt_u32 s89, 2')
        a(f's_cbranch_scc1 {L}_layer')
    if PROF:
        a('s_memrealtime s[94:95]')
        a('s_waitcnt lgkmcnt(0)')
        a('s_sub_u32 s92, s92, s90')
        a('s_sub_u32 s94, s94, s90')
        a('s_mov_b64 exec, 1')
        a('v_mov_b32 v20, s92')
        a('v_mov_b32 v21, s94')
        a('v_mov_b32 v22, 44')
        a('buffer_store_dwordx2 v[20:21], v22, s[8:11], 0 offen')
        a('s_mov_b64 exec, -1')
        a('s_cmp_lg_u32 s12, 5')
        a(f's_cbranch_scc1 {L}_pf')
        a('s_mul_i32 s26, s14, 40')
        a('s_add_u32 s26, s26, 60')
        a('s_mov_b64 exec, 1')
        for i in range(1, 10):
            a(f'v_mov_b32 v20, s{60+i}')
            a(f'v_mov_b32 v21, {4*i}')
            a('buffer_store_dword v20, v21, s[8:11], s26 offen')
        a('s_mov_b64 exec, -1')
        a.label(f'{L}_pf')

def rec_loop(a, L, rs, xs, wreg, prefetch, kvwait):
    a.label(f'{L}_step')
    stamp(a, 0)
    a('s_mov_b32 s36, 0')
    a.label(f'{L}_gpoll')
    a('buffer_load_dwordx4 v[64:67], v9, s[4:7], s16 offen sc1')
    a('buffer_load_dwordx4 v[68:71], v9, s[4:7], s16 offen offset:1024 sc1')
    a('s_waitcnt vmcnt(0)')
    a('v_max3_u32 v56, v64, v65, v66')
    a('v_max3_u32 v56, v56, v67, v68')
    a('v_max3_u32 v56, v56, v69, v70')
    a('v_max_u32 v56, v56, v71')
    a('v_cmp_eq_u32 vcc, -1, v56')
    a(f's_cbranch_vccz {L}_gok')
    a('s_add_u32 s36, s36, 1')
    a(f's_cmp_le_u32 s36, {SPIN_MAX}')
    a(f's_cbranch_scc1 {L}_gpoll')
    a.label(f'{L}_gok')
    a('ds_write_b128 v0, v[64:67]')
    a('ds_write_b128 v0, v[68:71] offset:1024')
    for i in range(4): a(f'v_mov_b32 v{92+i}, -1')
    for sr in ('s29', 's26', 's27', 's28'): a(f'buffer_store_dwordx4 v[92:95], v5, s[4:7], {sr} offen {rs}')
    if PROF: a('s_add_u32 s69, s69, s36')
    a('s_waitcnt lgkmcnt(0)')
    a('s_barrier')
    stamp(a, 7)
    for k in range(16): a(f'ds_read_b128 v[{64+4*k}:{64+4*k+3}], v1 offset:{k*512}')
    def proj(which, dbase):
        o = []
        for ks in range(16):
            mf = f'v[{64+4*ks}:{64+4*ks+3}]'
            for et in range(2):
                d = dbase + et*4
                c = '0' if ks == 0 else f'v[{d}:{d+3}]'
                if which < 2: o.append(f'v_mfma_f32_16x16x32_bf16 v[{d}:{d+3}], {wreg(which, et, ks)}, {mf}, {c}')
                else: o.append(f'v_mfma_f32_16x16x32_bf16 v[{d}:{d+3}], {mf}, {wreg(2, et, ks)}, {c}')
        return o
    qm = proj(0, 32)
    fill = [f'buffer_load_dwordx4 v[24:27], v3, s[4:7], s21 offen {xs}',
            f'buffer_load_dwordx4 v[28:31], v3, s[4:7], s21 offen offset:1024 {xs}',
            's_add_u32 s21, s21, 8192']
    for ks in range(16):
        a(f's_waitcnt lgkmcnt({15-ks})')
        a(qm[2*ks]); a(qm[2*ks+1])
        if ks >= 2 and fill: a(fill.pop(0))
    km = proj(1, 40)
    ki = 0
    def K(n):
        nonlocal ki
        for _ in range(n):
            a(km[ki]); ki += 1
    K(4)
    stamp(a, 1)
    for i in range(4): a(f'v_cvt_pk_bf16_f32 v{56+i}, v{32+2*i}, v{33+2*i}')
    a('ds_write_b128 v13, v[56:59]')
    K(2)
    if kvwait:
        a('s_and_b32 s44, s15, 3')
        a('s_cmp_lg_u32 s44, 0')
        a(f's_cbranch_scc1 {L}_np')
        a('s_cmp_lg_u32 s14, 0')
        a(f's_cbranch_scc1 {L}_np')
        a('v_mov_b32 v48, s15')
        a('v_mov_b32 v49, 0')
        a('buffer_store_dword v48, v49, s[4:7], s43 offen sc1')
        a.label(f'{L}_np')
        a('s_cmp_lg_u32 s44, 3')
        a(f's_cbranch_scc1 {L}_nk')
        a('s_add_u32 s47, s15, 1')
        a('s_lshr_b32 s47, s47, 2')
        a('s_min_u32 s47, s47, 15')
        kvwait(L, 's47')
        a.label(f'{L}_nk')
    pf = prefetch()
    for i in range(0, 8, 2):
        a(pf[i]); a(pf[i+1]); K(1)
    a('s_waitcnt lgkmcnt(0)')
    a('s_barrier')
    QF = [16, 20, 56, 60]
    for m in range(4): a(f'ds_read_b128 v[{QF[m]}:{QF[m]+3}], v12 offset:{m*512}')
    for m in range(4):
        a(f'ds_read_b128 v[48:51], v11 offset:{m*2048}')
        a(f'ds_read_b128 v[52:55], v11 offset:{m*2048+1024}')
        K(5 if m < 3 else 4)
        a('s_waitcnt lgkmcnt(0)')
        c0 = '0' if m == 0 else 'v[32:35]'; c1 = '0' if m == 0 else 'v[36:39]'
        a(f'v_mfma_f32_16x16x32_bf16 v[32:35], v[48:51], v[{QF[m]}:{QF[m]+3}], {c0}')
        a(f'v_mfma_f32_16x16x32_bf16 v[36:39], v[52:55], v[{QF[m]}:{QF[m]+3}], {c1}')
    K(32 - ki)
    a('v_xor_b32 v11, 0x2000, v11')
    stamp(a, 8)
    vm = proj(2, 40)
    a('s_nop 4')
    for i in range(4): a(f'v_cvt_pk_bf16_f32 v{48+i}, v{40+2*i}, v{41+2*i}')
    a('ds_write_b128 v13, v[48:51] offset:2048')
    a(f'buffer_store_dwordx4 v[48:51], v7, s[4:7], s24 offen {xs}')
    vi = 0
    def V(n):
        nonlocal vi
        for _ in range(n):
            a(vm[vi]); vi += 1
    V(8)
    a('s_waitcnt lgkmcnt(0)')
    a('s_barrier')
    for m in range(4): a(f'ds_read_b128 v[{64+4*m}:{64+4*m+3}], v12 offset:{2048+m*512}')
    a('v_max3_f32 v52, v32, v33, v34')
    a('v_max3_f32 v52, v52, v35, v36')
    a('v_max3_f32 v52, v52, v37, v38')
    a('v_max_f32 v52, v52, v39')
    V(4)
    a('s_waitcnt lgkmcnt(0)')
    for m in range(4):
        c = '0' if m == 0 else 'v[48:51]'
        a(f'v_mfma_f32_16x16x32_bf16 v[48:51], v[{64+4*m}:{64+4*m+3}], v[{QF[m]}:{QF[m]+3}], {c}')
    V(4)
    va = ['v_mov_b32 v17, 0xf149f2ca']
    for i in range(48, 52): va.append(f'v_cndmask_b32 v{i}, v17, v{i}, s[34:35]')
    va.append('v_max3_f32 v52, v52, v48, v49')
    va.append('v_max3_f32 v52, v52, v50, v51')
    for sw in ('v_permlane16_swap_b32', 'v_permlane32_swap_b32'):
        va += ['v_mov_b32 v53, v52', f'{sw} v52, v53', 'v_max_f32 v52, v52, v53']
    CS = '0x3e0293ee'
    va.append(f'v_mul_f32 v52, {CS}, v52')
    va.append(f'v_mov_b32 v17, {CS}')
    S = list(range(32, 40)) + [48, 49, 50, 51]
    for i in S: va.append(f'v_fma_f32 v{i}, v{i}, v17, -v52')
    for i in S: va.append(f'v_exp_f32 v{i}, v{i}')
    va.append('v_add_f32 v52, v32, v33')
    va.append('v_add_f32 v53, v34, v35')
    for i in range(4, 12, 2):
        va.append(f'v_add_f32 v52, v52, v{S[i]}')
        va.append(f'v_add_f32 v53, v53, v{S[i+1]}')
    va.append('v_add_f32 v52, v52, v53')
    for sw in ('v_permlane16_swap_b32', 'v_permlane32_swap_b32'):
        va += ['v_mov_b32 v53, v52', f'{sw} v52, v53', 'v_add_f32 v52, v52, v53']
    va.append('v_rcp_f32 v52, v52')
    for i in S: va.append(f'v_mul_f32 v{i}, v{i}, v52')
    for i in range(4): va.append(f'v_cvt_pk_bf16_f32 v{16+i}, v{32+2*i}, v{33+2*i}')
    va += ['v_cvt_pk_bf16_f32 v20, v48, v49', 'v_cvt_pk_bf16_f32 v21, v50, v51', 'v_mov_b32 v22, 0', 'v_mov_b32 v23, 0']
    interleave(a, vm[vi:], va, per=4)
    stamp(a, 2)
    for dt in range(4):
        for m in range(4):
            r = 64 + (dt*4+m)*4
            a(f'ds_read_b128 v[{r}:{r+3}], v10 offset:{(dt*4+m)*1024}')
    a('v_cvt_pk_bf16_f32 v56, v40, v41'); a('v_cvt_pk_bf16_f32 v57, v42, v43'); a('v_mov_b32 v58, 0'); a('v_mov_b32 v59, 0')
    a('v_cvt_pk_bf16_f32 v60, v44, v45'); a('v_cvt_pk_bf16_f32 v61, v46, v47'); a('v_mov_b32 v62, 0'); a('v_mov_b32 v63, 0')
    a('s_waitcnt vmcnt(3)')
    a('v_mfma_f32_16x16x32_bf16 v[32:35], v[24:27], v[16:19], 0')
    a('v_mfma_f32_16x16x32_bf16 v[36:39], v[28:31], v[16:19], 0')
    a('v_mfma_f32_16x16x32_bf16 v[32:35], v[56:59], v[20:23], v[32:35]')
    a('v_mfma_f32_16x16x32_bf16 v[36:39], v[60:63], v[20:23], v[36:39]')
    a(f'buffer_store_dwordx2 v[56:57], v8, s[4:7], s25 offen {xs}')
    a(f'buffer_store_dwordx2 v[60:61], v8, s[4:7], s25 offen offset:256 {xs}')
    for i in range(4): a(f'v_cvt_pk_bf16_f32 v{40+i}, v{32+2*i}, v{33+2*i}')
    a('ds_write_b128 v15, v[40:43]')
    a('s_waitcnt lgkmcnt(0)')
    a('s_barrier')
    for m in range(4): a(f'ds_read_b128 v[{44+4*m}:{44+4*m+3}], v14 offset:{m*512}')
    a('s_waitcnt lgkmcnt(0)')
    stamp(a, 3)
    def wacc(dt): return 16 + 4*dt if dt < 7 else 60
    a('s_mov_b32 s26, s22')
    def pstore(dt):
        d = wacc(dt)
        a(f'buffer_store_dwordx4 v[{d}:{d+3}], v4, s[4:7], s26 offen {rs}')
        a('s_add_u32 s26, s26, 16384')
    for dt in range(8):
        d = wacc(dt)
        if dt >= 4: a(f's_waitcnt lgkmcnt({12-4*(dt-4)})')
        for m in range(4):
            r = 64 + ((dt % 4)*4+m)*4
            c = '0' if m == 0 else f'v[{d}:{d+3}]'
            a(f'v_mfma_f32_16x16x32_bf16 v[{d}:{d+3}], v[{r}:{r+3}], v[{44+4*m}:{44+4*m+3}], {c}')
        if dt < 4:
            for m in range(4):
                r = 64 + (dt*4+m)*4
                a(f'ds_read_b128 v[{r}:{r+3}], v10 offset:{((dt+4)*4+m)*1024}')
        if dt >= 1: pstore(dt-1)
    pstore(7)
    a('s_add_u32 s24, s24, 2048'); a('s_add_u32 s25, s25, 2048')
    stamp(a, 4)
    a('s_add_u32 s26, s23, 4096'); a('s_add_u32 s27, s23, 8192'); a('s_add_u32 s28, s23, 12288')
    RS = ['s23', 's26', 's27', 's28']
    a('s_mov_b32 s36, 0')
    a.label(f'{L}_rpoll')
    for i in range(4): a(f'buffer_load_dwordx4 v[{64+4*i}:{64+4*i+3}], v5, s[4:7], {RS[i]} offen sc1')
    a('s_waitcnt vmcnt(0)')
    a('v_max3_u32 v80, v64, v65, v66')
    for i in range(3, 15, 2): a(f'v_max3_u32 v80, v80, v{64+i}, v{64+i+1}')
    a('v_max_u32 v80, v80, v79')
    a('v_cmp_eq_u32 vcc, -1, v80')
    a(f's_cbranch_vccz {L}_rok')
    a('s_add_u32 s36, s36, 1')
    a(f's_cmp_le_u32 s36, {SPIN_MAX}')
    a(f's_cbranch_scc1 {L}_rpoll')
    a.label(f'{L}_rok')
    stamp(a, 5)
    for i in range(4):
        a(f'v_add_f32 v{80+i}, v{64+i}, v{68+i}')
        a(f'v_add_f32 v{84+i}, v{72+i}, v{76+i}')
    for i in range(4): a(f'v_add_f32 v{80+i}, v{80+i}, v{84+i}')
    for i in range(4): a(f'v_add_f32_dpp v{80+i}, v{80+i}, v{80+i} row_ror:8 row_mask:0xf bank_mask:0xf')
    for sw in ('v_permlane16_swap_b32', 'v_permlane32_swap_b32'):
        for i in range(4): a(f'v_mov_b32 v{84+i}, v{80+i}')
        for i in range(4): a(f'{sw} v{80+i}, v{84+i}')
        for i in range(4): a(f'v_add_f32 v{80+i}, v{80+i}, v{84+i}')
    a('v_cvt_pk_bf16_f32 v88, v80, v81'); a('v_cvt_pk_bf16_f32 v89, v82, v83')
    a(f'buffer_store_dwordx2 v[88:89], v6, s[4:7], s18 offen {rs}')
    a('s_mov_b32 s29, s23')
    a('s_add_u32 s16, s16, 8192'); a('s_add_u32 s17, s17, 8192'); a('s_add_u32 s18, s18, 8192')
    a('s_xor_b32 s22, s22, 0x80000'); a('s_xor_b32 s23, s23, 0x80000')
    stamp(a, 6)
    a('s_add_u32 s15, s15, 1')
    a('s_cmp_lt_u32 s15, 64')
    a(f's_cbranch_scc1 {L}_step')

def gen_rec(L, layer):
    a = Asm()
    a('s_cmp_ge_u32 s2, 256')
    a(f's_cbranch_scc1 {L}_end')
    srd(a, 4, 96, 0)
    srd(a, 8, 88, 0)
    a('s_waitcnt lgkmcnt(0)')
    srd_fin(a, 4, WS_SIZE)
    srd_fin(a, 8, 256)
    role_select(a, L)
    a('s_cmp_eq_u32 s12, -1')
    a(f's_cbranch_scc1 {L}_end')
    body_rec(a, L, layer, '')
    a.label(f'{L}_end')
    finish(L, a, vgpr=512, accum=256)
    launches.append((L, 256, 256, LDS_REC))


def softmax_block(a, S, valid_fix, t0, t1, t2):
    n = len(S)
    for rnd in range(2):
        for i in range(0, n, 2):
            a(f'v_cvt_pk_bf16_f32 v{t0}, v{S[i]}, v{S[i+1]}'); a(f'v_lshlrev_b32 v{S[i]}, 16, v{t0}'); a(f'v_and_b32 v{S[i+1]}, 0xffff0000, v{t0}')
        if rnd == 0:
            for i in range(n): a(f'v_mul_f32 v{S[i]}, 0x3db504f3, v{S[i]}')
    valid_fix(a)
    a(f'v_max_f32 v{t1}, v{S[0]}, v{S[1]}')
    for i in range(2, n, 2): a(f'v_max3_f32 v{t1}, v{t1}, v{S[i]}, v{S[i+1]}')
    g_allreduce(a, t1, t2, 'v_max_f32')
    a(f'v_mul_f32 v{t1}, 0xbfb8aa3b, v{t1}')
    a(f'v_mov_b32 v{t0}, 0x3fb8aa3b')
    for i in range(n):
        a(f'v_fma_f32 v{S[i]}, v{S[i]}, v{t0}, v{t1}')
        a(f'v_exp_f32 v{S[i]}, v{S[i]}')
    a(f'v_add_f32 v{t1}, v{S[0]}, v{S[1]}')
    for i in range(2, n): a(f'v_add_f32 v{t1}, v{t1}, v{S[i]}')
    g_allreduce(a, t1, t2, 'v_add_f32')
    a(f'v_rcp_f32 v{t1}, v{t1}')
    for i in range(n): a(f'v_mul_f32 v{S[i]}, v{S[i]}, v{t1}')

def body_t2(a, ld, st, wait_fn=None, deep=False, pre_fn=None):
    a('s_lshr_b32 s41, s40, 5')
    a('s_and_b32 s42, s40, 31')
    a('v_and_b32 v1, 63, v0')
    a('v_lshrrev_b32 v2, 6, v0')
    a('v_readfirstlane_b32 s43, v2')
    a('s_lshl_b32 s44, s41, 2')
    a('s_add_u32 s44, s44, s43')
    a('v_and_b32 v3, 15, v1')
    a('v_lshrrev_b32 v4, 4, v1')
    a('v_lshlrev_b32 v5, 4, v1')
    a('s_lshl_b32 s46, s44, 15')
    a(f's_add_u32 s46, s46, {XN}')
    a('s_add_u32 s46, s46, s88')
    a('v_add_u32 v6, s46, v5')
    a('v_add_u32 v7, 16384, v6')
    a('s_lshl_b32 s46, s42, 17')
    a(f's_add_u32 s46, s46, {WT}')
    for t in range(8):
        a(f'v_add_u32 v{8+t}, s46, v5')
        if t < 7: a('s_add_u32 s46, s46, 16384')
    for r in range(128, 192): a(f'v_mov_b32 v{r}, 0')
    if pre_fn: pre_fn(a)
    def mf(f):
        o = []
        for et in range(8):
            for tt in range(2):
                d = 128 + (et*2+tt)*4
                o.append(f'v_mfma_f32_16x16x32_bf16 v[{d}:{d+3}], {f(2+et)}, {f(tt)}, v[{d}:{d+3}]')
        return o
    gemm_loop(a, [(6+i, 'sc1' if i < 2 else '') for i in range(10)], 16, mf, [('v',16), ('v',56)] + ([('a',0), ('a',40)] if deep else []))
    if wait_fn: wait_fn(a)
    a('v_and_b32 v7, 7, v1')
    a('v_lshlrev_b32 v7, 4, v7')
    a('v_lshl_add_u32 v7, v4, 7, v7')
    a('v_lshlrev_b32 v8, 6, v3')
    a('v_lshl_add_u32 v8, v4, 4, v8')
    a('v_and_b32 v9, 1, v4')
    a('v_lshlrev_b32 v9, 3, v9')
    a('v_lshl_add_u32 v9, v3, 4, v9')
    a('s_lshl_b32 s46, s42, 19')
    a('s_lshl_b32 s47, s44, 13')
    a('s_add_u32 s46, s46, s47')
    a('s_add_u32 s46, s46, s88')
    a(f's_add_u32 s60, s46, {KF}')
    a('s_add_u32 s61, s60, 4096')
    a(f's_add_u32 s62, s46, {VF}')
    a('s_add_u32 s63, s62, 4096')
    a('s_lshl_b32 s46, s42, 17')
    a('s_lshl_b32 s47, s44, 11')
    a('s_add_u32 s46, s46, s47')
    a('s_add_u32 s46, s46, s88')
    a(f's_add_u32 s64, s46, {KMF}')
    a(f's_add_u32 s65, s46, {VMF}')
    for kt in range(2):
        for m in range(4):
            r = 16 + (kt*4+m)*4
            a(f'buffer_load_dwordx4 v[{r}:{r+3}], v5, s[4:7], s{60+kt} offen offset:{m*1024} {ld}')
    for m in range(4):
        r = 48 + m*4
        a(f'buffer_load_dwordx4 v[{r}:{r+3}], v7, s[4:7], s64 offen offset:{m*512} {ld}')
    for et in range(8):
        r = 192 + et*4
        a(f'buffer_load_dwordx4 v[{r}:{r+3}], v8, s[4:7], s{62+et//4} offen offset:{(et%4)*1024} {ld}')
    for et in range(8):
        r = 224 + et*4
        a(f'buffer_load_dwordx2 v[{r}:{r+1}], v9, s[4:7], s65 offen offset:{et*256} {ld}')
        a(f'v_mov_b32 v{r+2}, 0'); a(f'v_mov_b32 v{r+3}, 0')
    for m in range(4):
        for tt in range(2):
            o = 96 + (m*2+tt)*4
            d0 = 128 + ((2*m)*2+tt)*4; d1 = 128 + ((2*m+1)*2+tt)*4
            a(f'v_cvt_pk_bf16_f32 v{o}, v{d0}, v{d0+1}'); a(f'v_cvt_pk_bf16_f32 v{o+1}, v{d0+2}, v{d0+3}')
            a(f'v_cvt_pk_bf16_f32 v{o+2}, v{d1}, v{d1+1}'); a(f'v_cvt_pk_bf16_f32 v{o+3}, v{d1+2}, v{d1+3}')
    a('v_lshlrev_b32 v10, 2, v4')
    for i in range(4):
        a(f'v_add_u32 v11, {i}, v10')
        a(f'v_cmp_le_u32 s[{66+2*i}:{67+2*i}], v11, v3')
    a('v_cmp_gt_u32 s[74:75], 2, v4')
    a('s_waitcnt vmcnt(16)')
    tiles = [(16, 0, 128), (16, 1, 132), (32, 1, 136), (48, 0, 140), (48, 1, 144)]
    for (kb, tt, d) in tiles:
        for m in range(4):
            c = '0' if m == 0 else f'v[{d}:{d+3}]'
            a(f'v_mfma_f32_16x16x32_bf16 v[{d}:{d+3}], v[{kb+4*m}:{kb+4*m+3}], v[{96+(m*2+tt)*4}:{96+(m*2+tt)*4+3}], {c}')
    a('v_mov_b32 v12, 0xf149f2ca')
    def fix0(a):
        for i in range(4): a(f'v_cndmask_b32 v{128+i}, v12, v{128+i}, s[{66+2*i}:{67+2*i}]')
        for i in range(4): a(f'v_cndmask_b32 v{140+i}, v12, v{140+i}, s[74:75]')
    def fix1(a):
        for i in range(4): a(f'v_cndmask_b32 v{136+i}, v12, v{136+i}, s[{66+2*i}:{67+2*i}]')
        for i in range(4): a(f'v_cndmask_b32 v{144+i}, v12, v{144+i}, s[74:75]')
    softmax_block(a, [128,129,130,131,140,141,142,143], fix0, 13, 14, 15)
    softmax_block(a, [132,133,134,135,136,137,138,139,144,145,146,147], fix1, 13, 14, 15)
    a('v_cvt_pk_bf16_f32 v80, v128, v129'); a('v_cvt_pk_bf16_f32 v81, v130, v131'); a('v_mov_b32 v82, 0'); a('v_mov_b32 v83, 0')
    a('v_cvt_pk_bf16_f32 v84, v140, v141'); a('v_cvt_pk_bf16_f32 v85, v142, v143'); a('v_mov_b32 v86, 0'); a('v_mov_b32 v87, 0')
    a('v_cvt_pk_bf16_f32 v88, v132, v133'); a('v_cvt_pk_bf16_f32 v89, v134, v135'); a('v_cvt_pk_bf16_f32 v90, v136, v137'); a('v_cvt_pk_bf16_f32 v91, v138, v139')
    a('v_cvt_pk_bf16_f32 v92, v144, v145'); a('v_cvt_pk_bf16_f32 v93, v146, v147'); a('v_mov_b32 v94, 0'); a('v_mov_b32 v95, 0')
    a('s_waitcnt vmcnt(0)')
    for et in range(8):
        for tt in range(2):
            d = 16 + (et*2+tt)*4
            a(f'v_mfma_f32_16x16x32_bf16 v[{d}:{d+3}], v[{192+4*et}:{192+4*et+3}], v[{80+8*tt}:{80+8*tt+3}], 0')
    for et in range(8):
        for tt in range(2):
            d = 16 + (et*2+tt)*4
            a(f'v_mfma_f32_16x16x32_bf16 v[{d}:{d+3}], v[{224+4*et}:{224+4*et+3}], v[{84+8*tt}:{84+8*tt+3}], v[{d}:{d+3}]')
    a('s_lshl_b32 s46, s44, 18')
    a('s_lshl_b32 s47, s42, 12')
    a('s_add_u32 s46, s46, s47')
    a(f's_add_u32 s46, s46, {OF}')
    a('s_add_u32 s46, s46, s88')
    a('s_add_u32 s47, s46, 131072')
    for m in range(4):
        for tt in range(2):
            o = 96 + (m*2+tt)*4
            d0 = 16 + ((2*m)*2+tt)*4; d1 = 16 + ((2*m+1)*2+tt)*4
            a(f'v_cvt_pk_bf16_f32 v{o}, v{d0}, v{d0+1}'); a(f'v_cvt_pk_bf16_f32 v{o+1}, v{d0+2}, v{d0+3}')
            a(f'v_cvt_pk_bf16_f32 v{o+2}, v{d1}, v{d1+1}'); a(f'v_cvt_pk_bf16_f32 v{o+3}, v{d1+2}, v{d1+3}')
            a(f'buffer_store_dwordx4 v[{o}:{o+3}], v5, s[4:7], s{46+tt} offen offset:{m*1024} {st}')

def gen_t2(L):
    a = Asm()
    a('s_cmp_ge_u32 s2, 512')
    a(f's_cbranch_scc1 {L}_end')
    srd(a, 4, 96, 0)
    a('s_waitcnt lgkmcnt(0)')
    srd_fin(a, 4, WS_SIZE)
    a('s_mov_b32 s40, s2')
    body_t2(a, '', '')
    a.label(f'{L}_end')
    finish(L, a, vgpr=256, accum=256)
    launches.append((L, 512, 256, 0))

def resid_store(a, acc, xr, t, voff, srd_x, sx, srd_o, so, off, ldx):
    a(f'v_cvt_pk_bf16_f32 v{t}, v{acc}, v{acc+1}'); a(f'v_lshlrev_b32 v{acc}, 16, v{t}'); a(f'v_and_b32 v{acc+1}, 0xffff0000, v{t}')
    a(f'v_cvt_pk_bf16_f32 v{t}, v{acc+2}, v{acc+3}'); a(f'v_lshlrev_b32 v{acc+2}, 16, v{t}'); a(f'v_and_b32 v{acc+3}, 0xffff0000, v{t}')
    a(f'v_lshlrev_b32 v{t}, 16, v{xr}'); a(f'v_add_f32 v{acc}, v{acc}, v{t}')
    a(f'v_and_b32 v{t}, 0xffff0000, v{xr}'); a(f'v_add_f32 v{acc+1}, v{acc+1}, v{t}')
    a(f'v_lshlrev_b32 v{t}, 16, v{xr+1}'); a(f'v_add_f32 v{acc+2}, v{acc+2}, v{t}')
    a(f'v_and_b32 v{t}, 0xffff0000, v{xr+1}'); a(f'v_add_f32 v{acc+3}, v{acc+3}, v{t}')
    a(f'v_cvt_pk_bf16_f32 v{xr}, v{acc}, v{acc+1}'); a(f'v_cvt_pk_bf16_f32 v{xr+1}, v{acc+2}, v{acc+3}')
    a(f'buffer_store_dwordx2 v[{xr}:{xr+1}], v{voff}, {srd_o}, {so} offen offset:{off} {ldx}')

def body_t3(a, xsrd, xoff, dst, ld, deep=False, wait_fn=None):
    a('s_lshr_b32 s41, s40, 4')
    a('s_and_b32 s42, s40, 15')
    a('v_and_b32 v1, 63, v0')
    a('v_lshrrev_b32 v2, 6, v0')
    a('v_readfirstlane_b32 s43, v2')
    a('v_and_b32 v3, 15, v1')
    a('v_lshrrev_b32 v4, 4, v1')
    a('v_lshlrev_b32 v5, 4, v1')
    a('s_lshl_b32 s46, s42, 18')
    a('s_lshl_b32 s47, s43, 15')
    a('s_add_u32 s46, s46, s47')
    a(f's_add_u32 s46, s46, {WOT}')
    for dt in range(2):
        for ks in range(32):
            if ks % 4 == 0: a(f's_add_u32 s48, s46, {dt*131072 + ks*1024}')
            r = (dt*32+ks)*4
            a(f'buffer_load_dwordx4 a[{r}:{r+3}], v5, s[4:7], s48 offen offset:{(ks%4)*1024}')
    a('s_lshl_b32 s46, s41, 18')
    a('s_add_u32 s46, s46, s47')
    a(f's_add_u32 s46, s46, {OF}')
    a('s_add_u32 s46, s46, s88')
    a('v_add_u32 v12, s46, v5')
    a('v_add_u32 v13, 131072, v12')
    a('v_lshlrev_b32 v6, 10, v3')
    a('v_lshl_add_u32 v6, v4, 3, v6')
    a('s_lshl_b32 s46, s41, 15')
    a('s_and_b32 s47, s43, 1')
    a('s_lshl_b32 s47, s47, 14')
    a('s_add_u32 s46, s46, s47')
    a('s_lshl_b32 s47, s42, 6')
    a('s_add_u32 s46, s46, s47')
    a('s_lshr_b32 s47, s43, 1')
    a('s_lshl_b32 s47, s47, 5')
    a('s_add_u32 s46, s46, s47')
    a('s_lshl_b32 s47, s89, 22')
    a('s_add_u32 s46, s46, s47')
    a(f's_add_u32 s47, s46, {X1}')
    a(f's_add_u32 s46, s46, {XS0}')
    if wait_fn: wait_fn(a)
    a(f'buffer_load_dwordx2 v[96:97], v6, s[4:7], s46 offen sc1')
    D = 6
    def ldb(ks):
        f = 16 + (ks % D)*8
        if ks % 4 == 0: a(f's_mov_b32 s98, {ks*1024}')
        a(f'buffer_load_dwordx4 v[{f}:{f+3}], v12, s[4:7], s98 offen offset:{(ks%4)*1024} {ld}')
        a(f'buffer_load_dwordx4 v[{f+4}:{f+7}], v13, s[4:7], s98 offen offset:{(ks%4)*1024} {ld}')
    for ks in range(D-1): ldb(ks)
    for ks in range(32):
        if ks + D - 1 < 32:
            ldb(ks + D - 1); a(f's_waitcnt vmcnt({2*(D-1)})')
        else:
            a(f's_waitcnt vmcnt({2*(31-ks)})')
        f = 16 + (ks % D)*8
        for dt in range(2):
            for tt in range(2):
                d = 128 + (dt*2+tt)*4
                c = '0' if ks == 0 else f'v[{d}:{d+3}]'
                r = (dt*32+ks)*4
                a(f'v_mfma_f32_16x16x32_bf16 v[{d}:{d+3}], a[{r}:{r+3}], v[{f+4*tt}:{f+4*tt+3}], {c}')
    a('s_lshl_b32 s44, s43, 12')
    a('v_add_u32 v8, s44, v5')
    for i in range(4): a(f'ds_write_b128 v8, v[{128+4*i}:{128+4*i+3}] offset:{i*1024}')
    a('s_waitcnt lgkmcnt(0)')
    a('s_barrier')
    a('s_lshl_b32 s44, s43, 10')
    a('v_add_u32 v8, s44, v5')
    for w2 in range(4): a(f'ds_read_b128 v[{16+4*w2}:{16+4*w2+3}], v8 offset:{w2*4096}')
    a('s_waitcnt lgkmcnt(0)')
    for i in range(4):
        a(f'v_add_f32 v{16+i}, v{16+i}, v{20+i}')
        a(f'v_add_f32 v{24+i}, v{24+i}, v{28+i}')
        a(f'v_add_f32 v{16+i}, v{16+i}, v{24+i}')
    resid_store(a, 16, 96, 9, 6, xsrd, 's46', 's[4:7]', 's47', 0, 'sc1')

def gen_t3(L, xoff, dst):
    a = Asm()
    a('s_cmp_ge_u32 s2, 256')
    a(f's_cbranch_scc1 {L}_end')
    srd(a, 4, 96, 0)
    srd(a, 76, 0, 0)
    a('s_waitcnt lgkmcnt(0)')
    srd_fin(a, 4, WS_SIZE)
    srd_fin(a, 76, 0x200000)
    a('s_mov_b32 s40, s2')
    if xoff is None: body_t3(a, 's[76:79]', 0, dst, '')
    else: body_t3(a, 's[4:7]', xoff, dst, '')
    a.label(f'{L}_end')
    finish(L, a, vgpr=256, accum=256)
    launches.append((L, 256, 256, 65536))

NTL = 512 + 16*120 + 128
def gen_mega(L):
    a = Asm()
    a('s_cmp_ge_u32 s2, 256')
    a(f's_cbranch_scc1 {L}_end')
    srd(a, 4, 96, 0)
    srd(a, 8, 88, 0)
    srd(a, 76, 80, 0)
    a('s_waitcnt lgkmcnt(0)')
    srd_fin(a, 4, WS_SIZE)
    srd_fin(a, 8, 256)
    srd_fin(a, 76, 0x200000)
    if PROF:
        a('s_memrealtime s[90:91]')
        a('s_waitcnt lgkmcnt(0)')
    role_select(a, L)
    a('s_cmp_eq_u32 s12, -1')
    a(f's_cbranch_scc1 {L}_worker')
    body_rec(a, L, 0, 'sc1', merged=True)
    a(f's_branch {L}_end')
    a.label(f'{L}_worker')
    a.label(f'{L}_next')
    a('v_mbcnt_lo_u32_b32 v0, -1, 0')
    a('v_mbcnt_hi_u32_b32 v0, -1, v0')
    a('s_lshl_b32 s81, s14, 6')
    a('v_add_u32 v0, s81, v0')
    a('s_barrier')
    a('s_cmp_lg_u32 s14, 0')
    a(f's_cbranch_scc1 {L}_tw')
    a('s_mov_b64 exec, 1')
    a('v_mov_b32 v2, 40')
    a('v_mov_b32 v3, 1')
    a('buffer_atomic_add v3, v2, s[8:11], 0 offen sc0')
    a('s_waitcnt vmcnt(0)')
    a(f'v_mov_b32 v2, {LDS_REC - 256}')
    a('ds_write_b32 v2, v3')
    a('s_waitcnt lgkmcnt(0)')
    a('s_mov_b64 exec, -1')
    a.label(f'{L}_tw')
    a('s_barrier')
    a(f'v_mov_b32 v2, {LDS_REC - 256}')
    a('ds_read_b32 v3, v2')
    a('s_waitcnt lgkmcnt(0)')
    a('v_readfirstlane_b32 s81, v3')
    a(f's_cmp_ge_u32 s81, {2*NTL}')
    a(f's_cbranch_scc1 {L}_end')
    a(f's_cmp_ge_u32 s81, {NTL}')
    a('s_cselect_b32 s89, 1, 0')
    a(f's_cselect_b32 s88, {LSTR}, 0')
    a(f's_cselect_b32 s82, {NTL}, 0')
    a('s_sub_u32 s81, s81, s82')
    a('s_lshl_b32 s80, s89, 12')
    a(f's_add_u32 s80, s80, {FLG}')
    def signal(extra=None):
        a('s_waitcnt vmcnt(0)')
        a('s_barrier')
        LL = a.uid('sig')
        a('s_cmp_lg_u32 s14, 0')
        a(f's_cbranch_scc1 {LL}')
        a('s_mov_b64 exec, 1')
        a('v_mov_b32 v2, s82')
        a('v_mov_b32 v3, 1')
        a('buffer_atomic_add v3, v2, s[4:7], s80 offen')
        if extra is not None:
            a(f'v_mov_b32 v2, {extra}')
            a('buffer_atomic_add v3, v2, s[4:7], s80 offen')
        a('s_mov_b64 exec, -1')
        a.label(LL)
    def poll(a, off_s, thr_s, base='s80'):
        LL = a.uid('poll')
        a('s_mov_b32 s85, 0')
        a.label(LL)
        a(f'v_mov_b32 v254, {off_s}')
        a(f'buffer_load_dword v254, v254, s[4:7], {base} offen sc1')
        a('s_waitcnt vmcnt(0)')
        a('v_readfirstlane_b32 s84, v254')
        a(f's_cmp_ge_u32 s84, {thr_s}')
        a(f's_cbranch_scc1 {LL}_ok')
        a('s_sleep 8')
        a('s_add_u32 s85, s85, 1')
        a(f's_cmp_le_u32 s85, {SPIN_MAX*4}')
        a(f's_cbranch_scc1 {LL}')
        a.label(f'{LL}_ok')
    a('s_cmp_ge_u32 s81, 512')
    a(f's_cbranch_scc1 {L}_t23')
    a('s_mov_b32 s40, s81')
    def w1(a):
        LL = a.uid('w1')
        a('s_cmp_eq_u32 s89, 0')
        a(f's_cbranch_scc1 {LL}')
        a('s_lshl_b32 s86, s41, 2')
        a('s_add_u32 s86, s86, 1280')
        a(f's_mov_b32 s87, {FLG}')
        poll(a, 's86', '8', 's87')
        a.label(LL)
    body_t1(a, 'sc1', deep=True, wait_fn=w1)
    a('s_lshl_b32 s82, s41, 2')
    signal(128)
    a(f's_branch {L}_next')
    a.label(f'{L}_t23')
    a('s_sub_u32 s81, s81, 512')
    a('s_cmp_ge_u32 s81, 1920')
    a(f's_cbranch_scc1 {L}_b2')
    a('s_mul_hi_u32 s83, s81, %d' % ((1 << 32) // 120 + 1))
    a('s_mul_i32 s82, s83, 120')
    a('s_sub_u32 s81, s81, s82')
    a('s_cmp_ge_u32 s81, 32')
    a(f's_cbranch_scc1 {L}_t3')
    a('s_lshl_b32 s40, s83, 5')
    a('s_add_u32 s40, s40, s81')
    def w2(a):
        a('s_lshl_b32 s86, s41, 2')
        poll(a, 's86', '32')
        a('s_lshl_b32 s86, s42, 2')
        a('s_add_u32 s86, s86, 512')
        a('s_lshl_b32 s87, s41, 2')
        a('s_add_u32 s87, s87, 4')
        poll(a, 's86', 's87')
    def w2a(a):
        a('s_lshl_b32 s86, s41, 2')
        poll(a, 's86', '32')
    body_t2(a, 'sc1', 'sc1', wait_fn=w2, deep=True, pre_fn=w2a)
    a('s_lshl_b32 s82, s41, 2')
    a('s_add_u32 s82, s82, 256')
    signal()
    a(f's_branch {L}_next')
    a.label(f'{L}_t3')
    a('s_sub_u32 s81, s81, 32')
    a('s_cmp_ge_u32 s81, 64')
    a(f's_cbranch_scc1 {L}_lnb')
    a('s_lshl_b32 s40, s83, 6')
    a('s_add_u32 s40, s40, s81')
    def w3(a):
        a('s_lshl_b32 s86, s83, 2')
        a('s_add_u32 s86, s86, 256')
        poll(a, 's86', '32')
    body_t3(a, 's[4:7]', 0, 0, 'sc1', deep=True, wait_fn=w3)
    a('s_lshl_b32 s82, s41, 2')
    a('s_add_u32 s82, s82, 768')
    signal()
    a(f's_branch {L}_next')
    a.label(f'{L}_lnb')
    a('s_sub_u32 s81, s81, 64')
    a('s_cmp_ge_u32 s81, 8')
    a(f's_cbranch_scc1 {L}_b1')
    a('s_lshl_b32 s40, s83, 3')
    a('s_add_u32 s40, s40, s81')
    a('s_lshr_b32 s86, s40, 1')
    a('s_lshl_b32 s86, s86, 2')
    a('s_add_u32 s86, s86, 768')
    poll(a, 's86', '16')
    body_lnb(a)
    a('s_lshl_b32 s82, s83, 2')
    a('s_add_u32 s82, s82, 1024')
    signal()
    a(f's_branch {L}_next')
    a.label(f'{L}_b1')
    a('s_sub_u32 s81, s81, 8')
    a('s_lshl_b32 s40, s83, 4')
    a('s_add_u32 s40, s40, s81')
    def wb1(a):
        a('s_lshl_b32 s86, s83, 2')
        a('s_add_u32 s86, s86, 1024')
        poll(a, 's86', '8')
    body_b1(a, wb1)
    a('s_mov_b32 s82, 1152')
    signal()
    a(f's_branch {L}_next')
    a.label(f'{L}_b2')
    a('s_sub_u32 s40, s81, 1920')
    def wb2(a):
        poll(a, '1152', '256')
    body_b2(a, wb2)
    a('s_lshr_b32 s82, s41, 3')
    a('s_lshl_b32 s82, s82, 2')
    a('s_add_u32 s82, s82, 1280')
    signal()
    a(f's_branch {L}_next')
    a.label(f'{L}_end')
    finish(L, a, vgpr=512, accum=256)
    launches.append((L, 256, 256, LDS_REC))

def phi(a, r, t, t2):
    a(f'v_add_f32 v{t}, 1.0, v{r}')
    a(f'v_mul_f32 v{t2}, 0x3fb8aa3b, v{r}')
    a(f'v_exp_f32 v{t2}, v{t2}')
    a(f'v_cmp_lt_f32 vcc, 0, v{r}')
    a(f'v_cndmask_b32 v{r}, v{t2}, v{t}, vcc')
    bf16_round(a, r, t)
    a(f'v_add_f32 v{r}, 0x358637bd, v{r}')
    bf16_round(a, r, t)

def body_b1(a, wait_fn):
    a('s_lshr_b32 s41, s40, 4')
    a('s_and_b32 s42, s40, 15')
    a('v_and_b32 v1, 63, v0')
    a('v_lshrrev_b32 v2, 6, v0')
    a('v_readfirstlane_b32 s43, v2')
    a('v_and_b32 v3, 15, v1')
    a('v_lshrrev_b32 v4, 4, v1')
    a('v_lshlrev_b32 v5, 4, v1')
    a('s_lshl_b32 s44, s41, 3')
    a('s_lshl_b32 s45, s43, 1')
    a('s_add_u32 s44, s44, s45')
    a('s_lshl_b32 s46, s44, 14')
    a(f's_add_u32 s46, s46, {XNB}')
    a('s_add_u32 s46, s46, s88')
    a('v_add_u32 v6, s46, v5')
    a('v_add_u32 v7, 16384, v6')
    a('s_lshl_b32 s46, s42, 15')
    a(f's_add_u32 s46, s46, {BQKV}')
    a('v_add_u32 v8, s46, v5')
    a('v_add_u32 v9, 16384, v8')
    for t in range(1, 3):
        a(f'v_add_u32 v{8+2*t}, {t*32*16384}, v8')
        a(f'v_add_u32 v{9+2*t}, {t*32*16384}, v9')
    for r in range(128, 176): a(f'v_mov_b32 v{r}, 0')
    wait_fn(a)
    def mf(f):
        o = []
        for hh in range(2):
            for tt in range(2):
                d = 128 + (hh*2+tt)*4
                o.append(f'v_mfma_f32_16x16x32_bf16 v[{d}:{d+3}], {f(2+hh)}, {f(tt)}, v[{d}:{d+3}]')
        for c in range(2):
            for hh in range(2):
                for tt in range(2):
                    d = 144 + c*16 + (hh*2+tt)*4
                    o.append(f'v_mfma_f32_16x16x32_bf16 v[{d}:{d+3}], {f(tt)}, {f(4+2*c+hh)}, v[{d}:{d+3}]')
        return o
    gemm_loop(a, [(6+i, 'sc1' if i < 2 else '') for i in range(8)], 16, mf, [('v',16), ('v',48), ('v',80), ('v',176)])
    for r in range(128, 160):
        bf16_round(a, r, 16 + (r & 1)*2)
        phi(a, r, 16 + (r & 1)*2, 17 + (r & 1)*2)
    a('v_lshlrev_b32 v14, 3, v1')
    a('s_lshl_b32 s46, s44, 14')
    a('s_lshl_b32 s47, s42, 10')
    a('s_add_u32 s46, s46, s47')
    a(f's_add_u32 s46, s46, {PQ}')
    a('s_add_u32 s46, s46, s88')
    a('s_add_u32 s47, s46, 16384')
    for hh in range(2):
        for tt in range(2):
            d = 128 + (hh*2+tt)*4; o = 24 + (hh*2+tt)*2
            a(f'v_cvt_pk_bf16_f32 v{o}, v{d}, v{d+1}'); a(f'v_cvt_pk_bf16_f32 v{o+1}, v{d+2}, v{d+3}')
            a(f'buffer_store_dwordx2 v[{o}:{o+1}], v14, s[4:7], s{46+tt} offen offset:{hh*512} sc1')
    for c in range(2):
        for hh in range(2):
            o = 32 + c*8 + hh*4; d = 144 + c*16 + hh*8
            for i in range(4): a(f'v_cvt_pk_bf16_f32 v{o+i}, v{d+2*i}, v{d+2*i+1}')
    for i in range(4): a(f'v_mov_b32 v{48+i}, 0x3f803f80')
    for hh in range(2):
        a(f'v_mfma_f32_16x16x32_bf16 v[{64+8*hh}:{64+8*hh+3}], v[{32+4*hh}:{32+4*hh+3}], v[{40+4*hh}:{40+4*hh+3}], 0')
        a(f'v_mfma_f32_16x16x32_bf16 v[{68+8*hh}:{68+8*hh+3}], v[{32+4*hh}:{32+4*hh+3}], v[48:51], 0')
    a('s_lshl_b32 s46, s43, 12')
    a('v_add_u32 v15, s46, v5')
    for t in range(4): a(f'ds_write_b128 v15, v[{64+4*t}:{64+4*t+3}] offset:{t*1024}')
    a('s_waitcnt lgkmcnt(0)')
    a('s_barrier')
    a('s_lshl_b32 s46, s43, 10')
    a('v_add_u32 v15, s46, v5')
    for w2 in range(4): a(f'ds_read_b128 v[{80+4*w2}:{80+4*w2+3}], v15 offset:{w2*4096}')
    a('s_waitcnt lgkmcnt(0)')
    for i in range(4):
        a(f'v_add_f32 v{80+i}, v{80+i}, v{84+i}')
        a(f'v_add_f32 v{88+i}, v{88+i}, v{92+i}')
        a(f'v_add_f32 v{80+i}, v{80+i}, v{88+i}')
    a('v_mul_u32_u24 v6, 272, v4')
    a('v_lshl_add_u32 v7, v3, 2, v6')
    a('v_add_u32 v6, 64, v6')
    a('v_mov_b32 v8, 0x7fffff00')
    a('v_cmp_eq_u32 vcc, 0, v3')
    a('v_cndmask_b32 v6, v8, v6, vcc')
    a('s_and_b32 s45, s43, 1')
    a('s_cmp_eq_u32 s45, 1')
    a('s_cselect_b64 vcc, -1, 0')
    a('v_cndmask_b32 v6, v7, v6, vcc')
    a('s_lshl_b32 s46, s42, 1')
    a('s_lshr_b32 s47, s43, 1')
    a('s_add_u32 s46, s46, s47')
    a('s_mul_i32 s46, s46, 1088')
    a(f's_add_u32 s46, s46, {KVB}')
    a('s_lshl_b32 s47, s89, 16')
    a('s_add_u32 s46, s46, s47')
    for i in range(4): a(f'buffer_atomic_add_f32 v{80+i}, v6, s[4:7], s46 offen offset:{i*68}')

def body_b2(a, wait_fn):
    L = a.uid('b2')
    a('s_mov_b32 s41, s40')
    a('v_and_b32 v1, 63, v0')
    a('v_lshrrev_b32 v2, 6, v0')
    a('v_readfirstlane_b32 s43, v2')
    a('v_and_b32 v3, 15, v1')
    a('v_lshrrev_b32 v4, 4, v1')
    a('v_lshlrev_b32 v5, 4, v1')
    wait_fn(a)
    a('v_mul_u32_u24 v6, 272, v4')
    a('v_lshl_add_u32 v7, v3, 2, v6')
    a('s_mul_i32 s46, s43, %d' % (8*1088))
    a(f's_add_u32 s46, s46, {KVB}')
    a('s_lshl_b32 s47, s89, 16')
    a('s_add_u32 s46, s46, s47')
    for hh in range(8):
        if hh == 3 or hh == 6: a('s_add_u32 s46, s46, %d' % (3*1088))
        ho = (hh % 3)*1088
        for j in range(4):
            a(f'buffer_load_dword v{192+8*hh+j}, v7, s[4:7], s46 offen offset:{ho + j*68} sc1')
            a(f'buffer_load_dword v{196+8*hh+j}, v6, s[4:7], s46 offen offset:{ho + j*68 + 64} sc1')
    a('v_lshlrev_b32 v8, 3, v1')
    a('s_lshl_b32 s46, s41, 14')
    a('s_lshl_b32 s47, s43, 12')
    a('s_add_u32 s46, s46, s47')
    a(f's_add_u32 s46, s46, {PQ}')
    a('s_add_u32 s46, s46, s88')
    for hh in range(8): a(f'buffer_load_dwordx2 v[{16+2*hh}:{17+2*hh}], v8, s[4:7], s46 offen offset:{hh*512} sc1')
    a('v_lshlrev_b32 v9, 10, v3')
    a('v_lshl_add_u32 v9, v4, 3, v9')
    a('s_lshl_b32 s46, s41, 14')
    a('s_lshl_b32 s47, s43, 8')
    a('s_add_u32 s48, s46, s47')
    a('s_lshl_b32 s47, s89, 22')
    a('s_add_u32 s46, s48, s47')
    a(f's_add_u32 s46, s46, {X1}')
    for dt in range(8): a(f'buffer_load_dwordx2 v[{32+2*dt}:{33+2*dt}], v9, s[4:7], s46 offen offset:{dt*32} sc1')
    a('s_lshl_b32 s46, s43, 17')
    a(f's_add_u32 s46, s46, {BWO}')
    for t in range(8):
        a(f'v_add_u32 v{48+t}, s46, v5')
        if t < 7: a('s_add_u32 s46, s46, 16384')
    a('s_waitcnt vmcnt(8)')
    for hh in range(8):
        b = 192 + 8*hh; o = 96 + 4*hh
        a(f'v_cvt_pk_bf16_f32 v{o}, v{b}, v{b+1}'); a(f'v_cvt_pk_bf16_f32 v{o+1}, v{b+2}, v{b+3}')
        a(f'v_cvt_pk_bf16_f32 v{o+2}, v{b+4}, v{b+5}'); a(f'v_cvt_pk_bf16_f32 v{o+3}, v{b+6}, v{b+7}')
    for hh in range(8):
        a(f'v_mfma_f32_16x16x16_bf16 v[{192+4*hh}:{192+4*hh+3}], v[{96+4*hh}:{97+4*hh}], v[{16+2*hh}:{17+2*hh}], 0')
        a(f'v_mfma_f32_16x16x16_bf16 v[{128+4*hh}:{128+4*hh+3}], v[{98+4*hh}:{99+4*hh}], v[{16+2*hh}:{17+2*hh}], 0')
    for i in range(8):
        dn = 128 + 4*i; nm = 192 + 4*i
        t = 10 + (i & 1)*3
        bf16_round(a, dn, t)
        a(f'v_add_f32 v{dn}, 0x358637bd, v{dn}')
        bf16_round(a, dn, t)
        a(f'v_rcp_f32 v{t+1}, v{dn}')
        bf16_round2(a, nm, nm+1, t); bf16_round2(a, nm+2, nm+3, t)
        for k in range(4):
            a(f'v_mul_f32 v{t}, v{nm+k}, v{t+1}')
            a(f'v_fma_f32 v{t+2}, -v{t}, v{dn}, v{nm+k}')
            a(f'v_fma_f32 v{nm+k}, v{t+2}, v{t+1}, v{t}')
    a('s_lshl_b32 s44, s43, 12')
    a('v_add_u32 v6, s44, v5')
    for bb in range(4):
        o = 16 + bb*4
        d0 = 192 + (2*bb)*4; d1 = 192 + (2*bb+1)*4
        a(f'v_cvt_pk_bf16_f32 v{o}, v{d0}, v{d0+1}'); a(f'v_cvt_pk_bf16_f32 v{o+1}, v{d0+2}, v{d0+3}')
        a(f'v_cvt_pk_bf16_f32 v{o+2}, v{d1}, v{d1+1}'); a(f'v_cvt_pk_bf16_f32 v{o+3}, v{d1+2}, v{d1+3}')
        a(f'ds_write_b128 v6, v[{o}:{o+3}] offset:{bb*1024}')
    a('s_waitcnt lgkmcnt(0)')
    a('s_barrier')
    for i in range(16): a(f'ds_read_b128 v[{192+4*i}:{192+4*i+3}], v5 offset:{i*1024}')
    for r in range(64, 96): a(f'v_mov_b32 v{r}, 0')
    BUF = [96, 128, 160]
    def ld(ks):
        f = BUF[ks % 3]
        a(f's_mov_b32 s98, {ks*1024}')
        for t in range(8): a(f'buffer_load_dwordx4 v[{f+4*t}:{f+4*t+3}], v{48+t}, s[4:7], s98 offen')
    ld(0); ld(1)
    a('s_waitcnt lgkmcnt(0)')
    for ks in range(16):
        if ks + 2 < 16:
            ld(ks+2); a('s_waitcnt vmcnt(16)')
        elif ks == 14: a('s_waitcnt vmcnt(8)')
        else: a('s_waitcnt vmcnt(0)')
        f = BUF[ks % 3]
        for dt in range(8):
            d = 64 + dt*4
            a(f'v_mfma_f32_16x16x32_bf16 v[{d}:{d+3}], v[{f+4*dt}:{f+4*dt+3}], v[{192+4*ks}:{192+4*ks+3}], v[{d}:{d+3}]')
    a('s_cmp_lg_u32 s89, 0')
    a(f's_cbranch_scc1 {L}_last')
    a(f's_add_u32 s62, s48, {X2}')
    for dt in range(8):
        resid_store(a, 64+4*dt, 32+2*dt, 10, 9, None, None, 's[4:7]', 's62', dt*32, 'sc1')
    if True:
        for dt in range(8):
            for h2 in range(2):
                a(f'v_lshlrev_b32 v{64+4*dt+2*h2}, 16, v{32+2*dt+h2}')
                a(f'v_and_b32 v{65+4*dt+2*h2}, 0xffff0000, v{32+2*dt+h2}')
        def xwave(v, slot):
            g_allreduce(a, v, 11, 'v_add_f32')
            a('s_lshl_b32 s44, s43, 8')
            a('v_lshlrev_b32 v12, 2, v1')
            a('v_add_u32 v13, s44, v12')
            a(f'ds_write_b32 v13, v{v} offset:{16384 + slot*1024}')
            a('s_waitcnt lgkmcnt(0)')
            a('s_barrier')
            for w2 in range(4): a(f'ds_read_b32 v{100+w2}, v12 offset:{16384 + slot*1024 + w2*256}')
            a('s_waitcnt lgkmcnt(0)')
            a('v_add_f32 v100, v100, v101'); a('v_add_f32 v102, v102, v103'); a(f'v_add_f32 v{v}, v100, v102')
        a('v_add_f32 v10, v64, v65')
        for r in range(66, 96): a(f'v_add_f32 v10, v10, v{r}')
        xwave(10, 0)
        a('v_mul_f32 v10, 0x3b000000, v10')
        a('v_mov_b32 v14, 0')
        for r in range(64, 96):
            a(f'v_sub_f32 v15, v{r}, v10')
            a('v_fmac_f32 v14, v15, v15')
        xwave(14, 1)
        a('v_mul_f32 v14, 0x3b000000, v14')
        bf16_round(a, 14, 15)
        a('v_add_f32 v14, 0x3727c5ac, v14')
        bf16_round(a, 14, 15)
        a('v_sqrt_f32 v14, v14')
        bf16_round(a, 14, 15)
        bf16_round(a, 10, 15)
        a('v_rcp_f32 v16, v14')
        a('v_lshrrev_b32 v17, 1, v4')
        a('v_lshlrev_b32 v17, 8, v17')
        a('v_lshl_add_u32 v17, v3, 4, v17')
        a('v_and_b32 v18, 1, v4')
        a('v_lshl_add_u32 v17, v18, 3, v17')
        a('s_lshl_b32 s46, s41, 14')
        a('s_lshl_b32 s47, s43, 12')
        a('s_add_u32 s46, s46, s47')
        a(f's_add_u32 s46, s46, {XN + LSTR}')
        for dt in range(8):
            for h2 in range(2):
                r = 64 + 4*dt + 2*h2
                a(f'v_sub_f32 v{r}, v{r}, v10'); a(f'v_sub_f32 v{r+1}, v{r+1}, v10')
                bf16_round2(a, r, r+1, 15)
                for k in (r, r+1):
                    a(f'v_mul_f32 v19, v{k}, v16')
                    a(f'v_fma_f32 v20, -v19, v14, v{k}')
                    a(f'v_fma_f32 v{k}, v20, v16, v19')
                a(f'v_cvt_pk_bf16_f32 v{104+2*dt+h2}, v{r}, v{r+1}')
            a(f'buffer_store_dwordx2 v[{104+2*dt}:{105+2*dt}], v17, s[4:7], s46 offen offset:{(dt>>1)*1024 + (dt&1)*512} sc1')
    a(f's_branch {L}_done')
    a.label(f'{L}_last')
    a('s_mov_b32 s62, s48')
    for dt in range(8):
        resid_store(a, 64+4*dt, 32+2*dt, 10, 9, None, None, 's[76:79]', 's62', dt*32, '')
    a.label(f'{L}_done')

def emit(path):
    hdr = open(os.path.join(os.path.dirname(__file__), '..', 'cdna_kernels', NAME + '.s.ref')).read().split('; Override')[0]
    s = hdr
    for (L, g, b, lds) in launches:
        s += f'; @launch kernel={L} grid=({g},1,1) block=({b},1,1) lds={lds}\n'
    s += '.amdgcn_target "amdgcn-amd-amdhsa--gfx950"\n.text\n'
    seen = set()
    for (L, t, k) in kernels:
        s += t
    s += '.section .rodata,"a"\n'
    for (L, t, k) in kernels:
        s += '.p2align 6\n' + k
    open(path, 'w').write(s)

if __name__ == '__main__':
    gen_prep()
    gen_mega('mega_kernel')
    emit(os.path.join(os.path.dirname(__file__), '..', 'cdna_kernels', NAME + '.s'))
```

```python
import sys, os
sys.path.insert(0, os.path.dirname(__file__))
from asmlib import Asm, kd

NAME = 'interleave_layers__memory_aug_recurrent_mem_tr__linear_attn_block__prompt'
WT   = 0x0000000
WOT  = 0x0C00000
BQKV = 0x1000000
BWO  = 0x1180000
XN   = 0x1200000
XS0  = 0x1400000
X1   = 0x1600000
X2   = 0x1800000
X3   = 0x1A00000
PQ   = 0x1C00000
XNB  = 0x1E00000
LSTR = 0x6000000
KF   = 0x2000000
VF   = 0x3000000
KMF  = 0x4000000
VMF  = 0x4400000
OF   = 0x5000000
MEMB = 0x6000000
PART = 0x6200000
KVB  = 0x6400000
FLG  = 0x6420000
WS_SIZE = 0x10000000

def srd(a, d, koff, size):
    a(f's_load_dwordx2 s[{d}:{d+1}], s[0:1], {koff}')
def srd_fin(a, d, size):
    a(f's_and_b32 s{d+1}, s{d+1}, 0xffff')
    a(f's_mov_b32 s{d+2}, {size}')
    a(f's_mov_b32 s{d+3}, 0x20000')

def bf16_round(a, v, t):
    a(f'v_cvt_pk_bf16_f32 v{t}, v{v}, v{v}')
    a(f'v_lshlrev_b32 v{v}, 16, v{t}')
def bf16_round2(a, v0, v1, t):
    a(f'v_cvt_pk_bf16_f32 v{t}, v{v0}, v{v1}')
    a(f'v_lshlrev_b32 v{v0}, 16, v{t}')
    a(f'v_and_b32 v{v1}, 0xffff0000, v{t}')

def wave_allreduce(a, v, t, op):
    a(f'{op}_dpp v{v}, v{v}, v{v} quad_perm:[1,0,3,2] row_mask:0xf bank_mask:0xf')
    a(f'{op}_dpp v{v}, v{v}, v{v} quad_perm:[2,3,0,1] row_mask:0xf bank_mask:0xf')
    a(f'{op}_dpp v{v}, v{v}, v{v} row_half_mirror row_mask:0xf bank_mask:0xf')
    a(f'{op}_dpp v{v}, v{v}, v{v} row_mirror row_mask:0xf bank_mask:0xf')
    g_allreduce(a, v, t, op)
def g_allreduce(a, v, t, op):
    a(f'v_mov_b32 v{t}, v{v}')
    a(f'v_permlane16_swap_b32 v{v}, v{t}')
    a(f'{op} v{v}, v{v}, v{t}')
    a(f'v_mov_b32 v{t}, v{v}')
    a(f'v_permlane32_swap_b32 v{v}, v{t}')
    a(f'{op} v{v}, v{v}, v{t}')

kernels = []
launches = []
def finish(label, a, vgpr=512, accum=256):
    a('s_endpgm')
    a.fix_hazards()
    txt = f'.globl {label}\n.p2align 8\n.type {label},@function\n{label}:\n' + a.text()
    kernels.append((label, txt, kd(label, vgpr, accum)))

N_TR = 2304
N_PREP0 = N_TR + 2 + 32 + 32 + 64 + 12
N_PREP = N_PREP0 + 512
def gen_prep():
    L = 'prep_kernel'
    a = Asm()
    a('s_cmp_ge_u32 s2, %d' % N_PREP)
    a('s_cbranch_scc1 prep_end')
    srd(a, 4, 96, 0)
    a('s_load_dwordx4 s[20:23], s[0:1], 0')
    a('s_load_dwordx4 s[24:27], s[0:1], 16')
    a('s_load_dwordx4 s[28:31], s[0:1], 32')
    a('s_load_dwordx4 s[32:35], s[0:1], 64')
    a('s_waitcnt lgkmcnt(0)')
    srd_fin(a, 4, WS_SIZE)
    a('v_and_b32 v1, 63, v0')
    a('v_lshrrev_b32 v2, 6, v0')
    a('s_cmp_ge_u32 s2, %d' % N_PREP0)
    a('s_cbranch_scc1 prep_ln')
    a('s_cmp_ge_u32 s2, %d' % N_TR)
    a('s_cbranch_scc1 prep_init')
    a('s_mov_b32 s11, 0x20000')
    a('s_cmp_ge_u32 s2, 1536')
    a('s_cbranch_scc1 prep_t_wo')
    a('s_lshr_b32 s16, s2, 9')
    a('s_and_b32 s17, s2, 511')
    a('s_and_b32 s18, s17, 7')
    a('s_lshr_b32 s19, s17, 3')
    a('s_mov_b32 s8, s24'); a('s_mov_b32 s9, s25')
    a('s_cmp_eq_u32 s16, 1'); a('s_cselect_b32 s8, s26, s8'); a('s_cselect_b32 s9, s27, s9')
    a('s_cmp_eq_u32 s16, 2'); a('s_cselect_b32 s8, s28, s8'); a('s_cselect_b32 s9, s29, s9')
    a('s_and_b32 s9, s9, 0xffff')
    a('s_mov_b32 s10, 0x400000')
    a('s_mov_b32 s12, 8192')
    a('s_lshl_b32 s13, s18, 19')
    a('s_lshl_b32 s36, s19, 7')
    a('s_add_u32 s13, s13, s36')
    a('s_lshl_b32 s14, s16, 22')
    a('s_lshl_b32 s36, s19, 16')
    a('s_add_u32 s14, s14, s36')
    a('s_lshl_b32 s36, s18, 11')
    a('s_add_u32 s14, s14, s36')
    a('s_add_u32 s14, s14, %d' % WT)
    a('s_mov_b32 s15, 16384')
    a('s_branch prep_tr_plain')
    a.label('prep_t_wo')
    a('s_cmp_ge_u32 s2, 2048')
    a('s_cbranch_scc1 prep_t_bqkv')
    a('s_sub_u32 s17, s2, 1536')
    a('s_and_b32 s18, s17, 63')
    a('s_lshr_b32 s19, s17, 6')
    a('s_mov_b32 s8, s30'); a('s_and_b32 s9, s31, 0xffff'); a('s_mov_b32 s10, 0x400000')
    a('s_mov_b32 s12, 1024')
    a('s_lshl_b32 s13, s18, 16')
    a('s_lshl_b32 s36, s19, 7')
    a('s_add_u32 s13, s13, s36')
    a('s_lshl_b32 s14, s19, 19')
    a('s_lshl_b32 s36, s18, 11')
    a('s_add_u32 s14, s14, s36')
    a('s_add_u32 s14, s14, %d' % WOT)
    a('s_mov_b32 s15, 131072')
    a('s_branch prep_tr_perm')
    a.label('prep_t_bqkv')
    a('s_cmp_ge_u32 s2, 2240')
    a('s_cbranch_scc1 prep_t_bwo')
    a('s_sub_u32 s17, s2, 2048')
    a('s_and_b32 s18, s17, 7')
    a('s_lshr_b32 s19, s17, 3')
    a('s_mov_b32 s8, s32'); a('s_and_b32 s9, s33, 0xffff'); a('s_mov_b32 s10, 0x180000')
    a('s_mov_b32 s12, 3072')
    a('s_mul_i32 s13, s18, %d' % (64*3072))
    a('s_lshl_b32 s36, s19, 7')
    a('s_add_u32 s13, s13, s36')
    a('s_lshl_b32 s14, s19, 16')
    a('s_lshl_b32 s36, s18, 11')
    a('s_add_u32 s14, s14, s36')
    a('s_add_u32 s14, s14, %d' % BQKV)
    a('s_mov_b32 s15, 16384')
    a('s_branch prep_tr_plain')
    a.label('prep_t_bwo')
    a('s_sub_u32 s17, s2, 2240')
    a('s_and_b32 s18, s17, 7')
    a('s_lshr_b32 s19, s17, 3')
    a('s_mov_b32 s8, s34'); a('s_and_b32 s9, s35, 0xffff'); a('s_mov_b32 s10, 0x80000')
    a('s_mov_b32 s12, 1024')
    a('s_lshl_b32 s13, s18, 16')
    a('s_lshl_b32 s36, s19, 7')
    a('s_add_u32 s13, s13, s36')
    a('s_lshl_b32 s14, s19, 16')
    a('s_lshl_b32 s36, s18, 11')
    a('s_add_u32 s14, s14, s36')
    a('s_add_u32 s14, s14, %d' % BWO)
    a('s_mov_b32 s15, 16384')
    a('s_branch prep_tr_perm')
    for perm in (0, 1):
        a.label('prep_tr_perm' if perm else 'prep_tr_plain')
        a('v_lshrrev_b32 v3, 3, v0')
        a('v_and_b32 v4, 7, v0')
        a('v_mul_lo_u32 v5, v3, s12')
        a('v_lshl_add_u32 v5, v4, 4, v5')
        a('s_lshl_b32 s36, s12, 5')
        a('s_add_u32 s36, s36, s13')
        a('buffer_load_dwordx4 v[8:11], v5, s[8:11], s13 offen')
        a('buffer_load_dwordx4 v[12:15], v5, s[8:11], s36 offen')
        a('v_mul_u32_u24 v6, 144, v3')
        a('v_lshl_add_u32 v6, v4, 4, v6')
        a('s_waitcnt vmcnt(1)')
        a('ds_write_b128 v6, v[8:11]')
        a('s_waitcnt vmcnt(0)')
        a('ds_write_b128 v6, v[12:15] offset:%d' % (32*144))
        a('s_waitcnt lgkmcnt(0)')
        a('s_barrier')
        for i in range(2):
            a('v_add_u32 v16, %d, v2' % (4*i))
            if perm:
                a('v_lshrrev_b32 v17, 2, v16')
                a('v_and_b32 v18, 3, v16')
                a('v_lshlrev_b32 v17, 5, v17')
                a('v_lshl_add_u32 v17, v18, 2, v17')
                hi = 16
            else:
                a('v_lshlrev_b32 v17, 3, v16')
                hi = 4
            a('v_mul_u32_u24 v17, 144, v17')
            a('v_lshl_add_u32 v17, v1, 1, v17')
            for j in range(8):
                row = j if j < 4 else hi + j - 4
                a('ds_read_u16 v%d, v17 offset:%d' % (24 + j, row*144))
            a('v_lshrrev_b32 v19, 4, v1')
            a('v_mul_lo_u32 v19, v19, s15')
            a('v_lshrrev_b32 v18, 2, v16')
            a('v_lshl_add_u32 v19, v18, 10, v19')
            a('v_and_b32 v18, 3, v16')
            a('v_lshl_add_u32 v19, v18, 8, v19')
            a('v_and_b32 v18, 15, v1')
            a('v_lshl_add_u32 v19, v18, 4, v19')
            a('s_waitcnt lgkmcnt(0)')
            for j in range(4):
                a('v_lshl_or_b32 v%d, v%d, 16, v%d' % (20 + j, 25 + 2*j, 24 + 2*j))
            a('buffer_store_dwordx4 v[20:23], v19, s[4:7], s14 offen')
            a('s_nop 1')
        a('s_branch prep_end')
    a.label('prep_init')
    a('s_sub_u32 s17, s2, %d' % N_TR)
    a('s_cmp_ge_u32 s17, 2')
    a('s_cbranch_scc1 prep_fill')
    a('s_mov_b32 s8, s22'); a('s_and_b32 s9, s23, 0xffff'); a('s_mov_b32 s10, 8192'); a('s_mov_b32 s11, 0x20000')
    a('s_lshl_b32 s14, s17, 20')
    a('s_add_u32 s14, s14, %d' % MEMB)
    for i in range(2):
        a('v_add_u32 v3, %d, v0' % (256*i))
        a('v_lshrrev_b32 v4, 5, v3')
        a('v_bfe_u32 v5, v3, 3, 2')
        a('v_and_b32 v6, 7, v3')
        a('v_lshlrev_b32 v7, 10, v6')
        a('v_lshl_add_u32 v7, v4, 6, v7')
        a('v_lshl_add_u32 v7, v5, 4, v7')
        a('buffer_load_dwordx4 v[8:11], v7, s[8:11], 0 offen')
        a('v_lshlrev_b32 v12, 4, v3')
        a('s_waitcnt vmcnt(0)')
        a('buffer_store_dwordx4 v[8:11], v12, s[4:7], s14 offen')
        a('s_nop 1')
    a('s_branch prep_end')
    a.label('prep_fill')
    a('s_sub_u32 s17, s17, 2')
    a('s_mov_b32 s18, -1')
    a('s_mov_b32 s14, %d' % (MEMB + 8192))
    a('s_cmp_ge_u32 s17, 32')
    a('s_cselect_b32 s14, %d, s14' % (MEMB + 0x100000 + 8192 - 32*16384))
    a('s_cmp_ge_u32 s17, 64')
    a('s_cselect_b32 s14, %d, s14' % (PART - 64*16384))
    a('s_cmp_ge_u32 s17, 128')
    a('s_cselect_b32 s14, %d, s14' % (KVB - 128*16384))
    a('s_cselect_b32 s18, 0, s18')
    a('s_lshl_b32 s19, s17, 14')
    a('s_add_u32 s14, s14, s19')
    a('v_mov_b32 v8, s18'); a('v_mov_b32 v9, s18'); a('v_mov_b32 v10, s18'); a('v_mov_b32 v11, s18')
    a('v_lshlrev_b32 v3, 4, v0')
    for i in range(4):
        a('buffer_store_dwordx4 v[8:11], v3, s[4:7], s14 offen offset:%d' % 0 if i == 0 else
          'buffer_store_dwordx4 v[8:11], v3, s[4:7], s14 offen')
        if i < 3: a('s_add_u32 s14, s14, 4096')
    a('s_branch prep_end')
    a.label('prep_ln')
    a('s_sub_u32 s17, s2, %d' % N_PREP0)
    a('s_mov_b32 s8, s20'); a('s_and_b32 s9, s21, 0xffff'); a('s_mov_b32 s10, 0x200000'); a('s_mov_b32 s11, 0x20000')
    a('s_lshl_b32 s12, s17, 12')
    a('v_lshlrev_b32 v1, 4, v0')
    a('buffer_load_dwordx4 v[4:7], v1, s[8:11], s12 offen')
    a(f's_add_u32 s13, s12, {XS0}')
    a('s_waitcnt vmcnt(0)')
    a('buffer_store_dwordx4 v[4:7], v1, s[4:7], s13 offen')
    ln_core(a, 24)
    a('v_lshrrev_b32 v22, 6, v0')
    a('s_lshl_b32 s13, s17, 2')
    a('v_add_u32 v22, s13, v22')
    a('v_lshrrev_b32 v23, 4, v22')
    a('v_lshlrev_b32 v23, 14, v23')
    a('v_and_b32 v22, 15, v22')
    a('v_lshl_add_u32 v23, v22, 4, v23')
    a('v_bfe_u32 v22, v0, 2, 4')
    a('v_lshl_add_u32 v23, v22, 10, v23')
    a('v_and_b32 v22, 3, v0')
    a('v_lshl_add_u32 v23, v22, 8, v23')
    a(f's_mov_b32 s13, {XN}')
    a('buffer_store_dwordx4 v[24:27], v23, s[4:7], s13 offen')
    a.label('prep_end')
    finish(L, a, vgpr=32, accum=32)
    launches.append((L, N_PREP, 256, 64*144))

def ln_core(a, dreg):
    for i in range(4):
        a(f'v_lshlrev_b32 v{8+2*i}, 16, v{4+i}')
        a(f'v_and_b32 v{9+2*i}, 0xffff0000, v{4+i}')
    a('v_add_f32 v16, v8, v9')
    for i in range(2, 8): a(f'v_add_f32 v16, v16, v{8+i}')
    wave_allreduce(a, 16, 17, 'v_add_f32')
    a('v_mul_f32 v16, 0x3b000000, v16')
    a('v_mov_b32 v18, 0')
    for i in range(8):
        a(f'v_sub_f32 v17, v{8+i}, v16')
        a('v_fmac_f32 v18, v17, v17')
    wave_allreduce(a, 18, 17, 'v_add_f32')
    a('v_mul_f32 v18, 0x3b000000, v18')
    bf16_round(a, 18, 17)
    a('v_add_f32 v18, 0x3727c5ac, v18')
    bf16_round(a, 18, 17)
    a('v_sqrt_f32 v18, v18')
    bf16_round(a, 18, 17)
    bf16_round(a, 16, 17)
    a('v_rcp_f32 v19, v18')
    for i in range(0, 8, 2):
        a(f'v_sub_f32 v{8+i}, v{8+i}, v16')
        a(f'v_sub_f32 v{9+i}, v{9+i}, v16')
        bf16_round2(a, 8+i, 9+i, 17)
        for k in (8+i, 9+i):
            a(f'v_mul_f32 v20, v{k}, v19')
            a(f'v_fma_f32 v21, -v20, v18, v{k}')
            a(f'v_fma_f32 v{k}, v21, v19, v20')
        a(f'v_cvt_pk_bf16_f32 v{dreg+i//2}, v{8+i}, v{9+i}')

def body_lnb(a):
    a('v_and_b32 v1, 63, v0')
    a('v_lshlrev_b32 v2, 4, v1')
    a('s_lshl_b32 s46, s40, 14')
    a('s_lshl_b32 s47, s14, 12')
    a('s_add_u32 s46, s46, s47')
    a('s_lshl_b32 s47, s89, 22')
    a('s_add_u32 s46, s46, s47')
    a(f's_add_u32 s46, s46, {X1}')
    for r in range(4): a(f'buffer_load_dwordx4 v[{32+4*r}:{32+4*r+3}], v2, s[4:7], s46 offen offset:{r*1024} sc1')
    a('v_lshrrev_b32 v22, 2, v1')
    a('v_lshlrev_b32 v23, 10, v22')
    a('v_and_b32 v22, 3, v1')
    a('v_lshl_add_u32 v23, v22, 8, v23')
    a('s_lshl_b32 s46, s40, 14')
    a('s_lshl_b32 s47, s14, 6')
    a('s_add_u32 s46, s46, s47')
    a('s_add_u32 s46, s46, s88')
    a(f's_add_u32 s46, s46, {XNB}')
    for r in range(4):
        a('s_waitcnt vmcnt(3)')
        for i in range(4): a(f'v_mov_b32 v{4+i}, v{32+4*r+i}')
        ln_core(a, 48+4*r)
        a(f'buffer_store_dwordx4 v[{48+4*r}:{48+4*r+3}], v23, s[4:7], s46 offen offset:{r*16} sc1')

def gemm_loop(a, streams, nks, mfmas, bufs):
    L = a.uid('gl')
    n = len(streams); D = len(bufs)
    assert nks % D == 0
    def R(b):
        k, base = bufs[b]
        return lambda i: f'{k}[{base+4*i}:{base+4*i+3}]'
    def loads(b, off):
        sr = 's98'
        if off > 4095: sr = 's99'; off -= 4096
        for i, (va, sfx) in enumerate(streams):
            a(f'buffer_load_dwordx4 {R(b)(i)}, v{va}, s[4:7], {sr} offen offset:{off} {sfx}')
    a('s_mov_b32 s98, 0')
    a('s_mov_b32 s99, 4096')
    for j in range(D-1): loads(j, j*1024)
    a.label(L)
    for j in range(D):
        loads((j+D-1) % D, (j+D-1)*1024)
        a(f's_waitcnt vmcnt({(D-1)*n})')
        for m in mfmas(R(j)): a(m)
    a(f's_add_u32 s98, s98, {D*1024}')
    a(f's_add_u32 s99, s99, {D*1024}')
    a(f's_cmp_lt_u32 s98, {nks*1024}')
    a(f's_cbranch_scc1 {L}')
    a('s_waitcnt vmcnt(0)')

def body_t1(a, sfx, deep=False, wait_fn=None):
    a('s_lshr_b32 s41, s40, 5')
    a('s_and_b32 s42, s40, 31')
    a('v_and_b32 v1, 63, v0')
    a('v_lshrrev_b32 v2, 6, v0')
    a('v_readfirstlane_b32 s43, v2')
    a('s_lshr_b32 s44, s43, 1')
    a('s_and_b32 s45, s43, 1')
    a('v_lshlrev_b32 v3, 4, v1')
    a('s_lshl_b32 s46, s41, 17')
    a('s_lshl_b32 s47, s44, 16')
    a('s_add_u32 s46, s46, s47')
    a(f's_add_u32 s46, s46, {XN}')
    a('s_add_u32 s46, s46, s88')
    if wait_fn: wait_fn(a)
    for t in range(4):
        a(f'v_add_u32 v{4+t}, s46, v3')
        if t < 3: a('s_add_u32 s46, s46, 16384')
    a('s_lshl_b32 s46, s42, 17')
    a('s_lshl_b32 s47, s45, 16')
    a('s_add_u32 s46, s46, s47')
    a(f's_add_u32 s46, s46, {WT + 256*16384}')
    for t in range(4):
        a(f'v_add_u32 v{8+t}, s46, v3')
        a(f'v_add_u32 v{12+t}, {256*16384}, v{8+t}')
        if t < 3: a('s_add_u32 s46, s46, 16384')
    ACK = 128; ACV = 192
    for r in range(128, 256): a(f'v_mov_b32 v{r}, 0')
    def mf(f):
        o = []
        for et in range(4):
            for tt in range(4):
                d = ACK + (et*4+tt)*4
                o.append(f'v_mfma_f32_16x16x32_bf16 v[{d}:{d+3}], {f(4+et)}, {f(tt)}, v[{d}:{d+3}]')
        for tt in range(4):
            for et in range(4):
                d = ACV + (tt*4+et)*4
                o.append(f'v_mfma_f32_16x16x32_bf16 v[{d}:{d+3}], {f(tt)}, {f(8+et)}, v[{d}:{d+3}]')
        return o
    gemm_loop(a, [(4+i, 'sc1' if i < 4 else '') for i in range(12)], 16, mf, [('v',16), ('v',64)] + ([('a',0), ('a',48)] if deep else []))
    a('s_lshl_b32 s46, s42, 19')
    a('s_lshl_b32 s47, s41, 15')
    a('s_add_u32 s46, s46, s47')
    a('s_lshl_b32 s47, s44, 14')
    a('s_add_u32 s46, s46, s47')
    a('s_lshl_b32 s47, s45, 11')
    a('s_add_u32 s46, s46, s47')
    a(f's_add_u32 s46, s46, {KF}')
    a('s_add_u32 s46, s46, s88')
    k = 0
    for tt in range(4):
        if tt: a('s_add_u32 s46, s46, 4096')
        for mm in range(2):
            o = 16 + 4*(k % 8); k += 1
            d0 = ACK + ((2*mm)*4+tt)*4; d1 = ACK + ((2*mm+1)*4+tt)*4
            a(f'v_cvt_pk_bf16_f32 v{o}, v{d0}, v{d0+1}')
            a(f'v_cvt_pk_bf16_f32 v{o+1}, v{d0+2}, v{d0+3}')
            a(f'v_cvt_pk_bf16_f32 v{o+2}, v{d1}, v{d1+1}')
            a(f'v_cvt_pk_bf16_f32 v{o+3}, v{d1+2}, v{d1+3}')
            a(f'buffer_store_dwordx4 v[{o}:{o+3}], v3, s[4:7], s46 offen offset:{mm*1024} {sfx}')
    a('v_and_b32 v5, 15, v1')
    a('v_lshrrev_b32 v6, 4, v1')
    a('v_lshlrev_b32 v7, 6, v5')
    a('v_lshl_add_u32 v7, v6, 4, v7')
    a('s_lshl_b32 s46, s42, 19')
    a('s_lshl_b32 s47, s41, 15')
    a('s_add_u32 s46, s46, s47')
    a('s_lshl_b32 s47, s44, 14')
    a('s_add_u32 s46, s46, s47')
    a('s_lshl_b32 s47, s45, 12')
    a('s_add_u32 s46, s46, s47')
    a(f's_add_u32 s46, s46, {VF}')
    a('s_add_u32 s46, s46, s88')
    for sg in range(2):
        if sg: a('s_add_u32 s46, s46, 8192')
        for et in range(4):
            o = 48 + 4*(k % 8); k += 1
            d0 = ACV + ((2*sg)*4+et)*4; d1 = ACV + ((2*sg+1)*4+et)*4
            a(f'v_cvt_pk_bf16_f32 v{o}, v{d0}, v{d0+1}')
            a(f'v_cvt_pk_bf16_f32 v{o+1}, v{d0+2}, v{d0+3}')
            a(f'v_cvt_pk_bf16_f32 v{o+2}, v{d1}, v{d1+1}')
            a(f'v_cvt_pk_bf16_f32 v{o+3}, v{d1+2}, v{d1+3}')
            a(f'buffer_store_dwordx4 v[{o}:{o+3}], v7, s[4:7], s46 offen offset:{et*1024} {sfx}')

def gen_t1(L):
    a = Asm()
    a('s_cmp_ge_u32 s2, 512')
    a(f's_cbranch_scc1 {L}_end')
    srd(a, 4, 96, 0)
    a('s_waitcnt lgkmcnt(0)')
    srd_fin(a, 4, WS_SIZE)
    a('s_mov_b32 s40, s2')
    body_t1(a, '')
    a.label(f'{L}_end')
    finish(L, a, vgpr=256, accum=256)
    launches.append((L, 512, 256, 0))


LDS_SC = 131072
LDS_OB = LDS_SC + 6144
LDS_MS = LDS_OB + 2048
LDS_PF = LDS_MS + 8192
LDS_ROLE = LDS_SC
LDS_REC = LDS_PF + 16384
SPIN_MAX = 1 << 20

def interleave(a, mf, va, per=3):
    i = 0
    for m in mf:
        a(m)
        for _ in range(per):
            if i < len(va): a(va[i]); i += 1
    while i < len(va): a(va[i]); i += 1

def role_select(a, L):
    a('v_lshrrev_b32 v1, 6, v0')
    a('v_readfirstlane_b32 s14, v1')
    a('s_cmp_lg_u32 s14, 0')
    a(f's_cbranch_scc1 {L}_role_wait')
    a('s_getreg_b32 s26, hwreg(HW_REG_XCC_ID)')
    a('s_and_b32 s26, s26, 7')
    a('s_mov_b64 s[28:29], exec')
    a('s_mov_b64 exec, 1')
    a('s_lshl_b32 s27, s26, 2')
    a('v_mov_b32 v2, s27')
    a('v_mov_b32 v3, 1')
    a('buffer_atomic_add v3, v2, s[8:11], 0 offen sc0')
    a('s_waitcnt vmcnt(0)')
    a('v_readfirstlane_b32 s27, v3')
    a('s_mov_b32 s12, -1')
    a('s_cmp_ge_u32 s27, 32')
    a(f's_cbranch_scc1 {L}_role_done')
    a('v_mov_b32 v2, 32')
    a('s_add_u32 s26, s26, 1')
    a('s_cmp_lg_u32 s27, %d' % (99 if os.environ.get('FORCE_SLOW') else 31))
    a(f's_cbranch_scc1 {L}_role_poll0')
    a('v_mov_b32 v4, s26')
    a('v_mov_b32 v5, 0')
    a('buffer_atomic_cmpswap v[4:5], v2, s[8:11], 0 offen sc0')
    a('s_waitcnt vmcnt(0)')
    a.label(f'{L}_role_poll0')
    a('s_mov_b32 s36, 0')
    a.label(f'{L}_role_poll')
    a('buffer_load_dword v3, v2, s[8:11], 0 offen sc1')
    a('s_waitcnt vmcnt(0)')
    a('v_readfirstlane_b32 s37, v3')
    a('s_cmp_lg_u32 s37, 0')
    a(f's_cbranch_scc1 {L}_role_dec')
    a('s_sleep 4')
    a('s_add_u32 s36, s36, 1')
    a('s_cmp_lt_u32 s36, %d' % (20 if os.environ.get('FORCE_SLOW') else 4000))
    a(f's_cbranch_scc1 {L}_role_poll')
    a('v_mov_b32 v4, 100')
    a('v_mov_b32 v5, 0')
    a('buffer_atomic_cmpswap v[4:5], v2, s[8:11], 0 offen sc0')
    a('s_waitcnt vmcnt(0)')
    a(f's_branch {L}_role_poll0')
    a.label(f'{L}_role_dec')
    a('s_cmp_eq_u32 s37, s26')
    a('s_cselect_b32 s12, s27, s12')
    a('s_cmp_lg_u32 s37, 100')
    a(f's_cbranch_scc1 {L}_role_done')
    a('v_mov_b32 v2, 36')
    a('v_mov_b32 v3, 1')
    a('buffer_atomic_add v3, v2, s[8:11], 0 offen sc0')
    a('s_waitcnt vmcnt(0)')
    a('v_readfirstlane_b32 s27, v3')
    a('s_or_b32 s26, s27, 256')
    a('s_cmp_lt_u32 s27, 32')
    a('s_cselect_b32 s12, s26, s12')
    a.label(f'{L}_role_done')
    a('v_mov_b32 v2, %d' % LDS_ROLE)
    a('v_mov_b32 v3, s12')
    a('ds_write_b32 v2, v3')
    a('s_waitcnt lgkmcnt(0)')
    a('s_mov_b64 exec, s[28:29]')
    a.label(f'{L}_role_wait')
    a('s_barrier')
    a('v_mov_b32 v2, %d' % LDS_ROLE)
    a('ds_read_b32 v3, v2')
    a('s_waitcnt lgkmcnt(0)')
    a('v_readfirstlane_b32 s12, v3')

PROF = int(os.environ.get('PROF', '0'))
def stamp(a, i):
    if not PROF: return
    a('s_memtime s[50:51]')
    a('s_waitcnt lgkmcnt(0)')
    if i > 0:
        a('s_sub_u32 s52, s50, s53')
        a(f's_add_u32 s{60+i}, s{60+i}, s52')
    a('s_mov_b32 s53, s50')

def body_rec(a, L, layer, xs, merged=False):
    OOB = '0x7fffff00'
    a('s_lshr_b32 s13, s12, 8')
    a('s_and_b32 s12, s12, 31')
    a('v_and_b32 v0, 63, v0')
    a('v_and_b32 v12, 15, v0')
    a('v_lshrrev_b32 v13, 4, v0')
    a('v_and_b32 v14, 7, v0')
    a('v_cmp_gt_u32 s[30:31], 8, v12')
    a('v_cmp_gt_u32 s[32:33], 8, v0')
    a('v_cmp_gt_u32 s[34:35], 32, v0')
    a(f'v_mov_b32 v16, {OOB}')
    a('v_lshlrev_b32 v1, 7, v13')
    a('v_lshl_add_u32 v1, v14, 4, v1')
    a('s_lshl_b32 s26, s14, 10')
    a('v_lshlrev_b32 v2, 4, v0')
    a('v_add_u32 v2, s26, v2')
    a('s_lshl_b32 s26, s14, 11')
    a('v_lshlrev_b32 v3, 6, v12')
    a('v_lshl_add_u32 v3, v13, 4, v3')
    a('v_add_u32 v3, s26, v3')
    a('v_lshlrev_b32 v4, 6, v12')
    a('v_lshl_add_u32 v4, v13, 4, v4')
    a('v_cndmask_b32 v4, v16, v4, s[30:31]')
    a('s_lshl_b32 s26, s14, 7')
    a('v_lshrrev_b32 v5, 3, v0')
    a('v_lshlrev_b32 v5, 9, v5')
    a('v_lshl_add_u32 v5, v14, 4, v5')
    a('v_add_u32 v5, s26, v5')
    a('v_bfe_u32 v15, v0, 1, 1')
    a('v_lshlrev_b32 v6, 7, v15')
    a('v_bfe_u32 v15, v0, 2, 1')
    a('v_lshl_add_u32 v6, v15, 4, v6')
    a('v_and_b32 v15, 1, v0')
    a('v_lshl_add_u32 v6, v15, 3, v6')
    a('s_lshl_b32 s26, s14, 5')
    a('v_add_u32 v6, s26, v6')
    a('v_cndmask_b32 v6, v16, v6, s[32:33]')
    a('s_lshl_b32 s26, s14, 9')
    a('v_add_u32 v7, s26, v1')
    a('v_cndmask_b32 v7, v16, v7, s[30:31]')
    a('s_lshl_b32 s26, s14, 9')
    a('v_lshlrev_b32 v8, 4, v12')
    a('v_lshl_add_u32 v8, v13, 3, v8')
    a('v_add_u32 v8, s26, v8')
    a('v_cndmask_b32 v8, v16, v8, s[34:35]')
    a('v_lshlrev_b32 v9, 4, v0')
    a('s_lshl_b32 s26, s14, 15')
    a('v_add_u32 v10, s26, v9')
    a('s_lshl_b32 s26, s12, 17')
    a('s_lshl_b32 s27, s14, 15')
    a('s_add_u32 s26, s26, s27')
    a(f's_add_u32 s26, s26, {WT}')
    def wreg(which, et, ks):
        i = (et*16 + ks)*4
        if which == 0: return f'a[{i}:{i+3}]'
        if which == 1: return f'a[{128+i}:{128+i+3}]'
        return f'v[{128+i}:{128+i+3}]'
    for which in range(3):
        for et in range(2):
            for ks in range(16):
                if ks % 4 == 0: a(f's_add_u32 s27, s26, {which*256*16384 + et*16384 + ks*1024}')
                a(f'buffer_load_dwordx4 {wreg(which, et, ks)}, v9, s[4:7], s27 offen offset:{(ks%4)*1024}')
    a('s_lshl_b32 s26, s14, 20')
    a('s_lshl_b32 s27, s12, 12')
    a('s_add_u32 s26, s26, s27')
    a(f's_add_u32 s26, s26, {WOT}')
    a('s_lshl_b32 s27, s14, 15')
    for dt in range(8):
        a('s_mov_b32 m0, s27')
        for m in range(4):
            a(f'buffer_load_dwordx4 v9, s[4:7], s26 offen offset:{m*1024} lds')
        a('s_add_u32 s26, s26, 131072')
        a('s_add_u32 s27, s27, 4096')
    a(f'v_add_u32 v11, {LDS_PF}, v9')
    a('s_lshl_b32 s26, s14, 9')
    a(f'v_add_u32 v12, {LDS_SC}, v1')
    a('v_add_u32 v13, s26, v12')
    a(f'v_add_u32 v14, {LDS_OB}, v1')
    a('v_add_u32 v15, s26, v14')
    a('s_lshl_b32 s26, s14, 11')
    a('v_add_u32 v17, s26, v9')
    a(f'v_add_u32 v18, {LDS_MS}, v17')
    a(f'v_add_u32 v1, {LDS_MS}, v1')
    a('v_mov_b32 v9, v17')
    a('v_mov_b32 v0, v18')
    a('s_mov_b32 s89, 0')
    a('s_mov_b32 s88, 0')
    a.label(f'{L}_layer')
    a('s_lshl_b32 s16, s89, 20')
    a(f's_add_u32 s16, s16, {MEMB}')
    a('s_add_u32 s17, s16, 4096')
    a('s_lshr_b32 s26, s12, 1')
    a('s_lshl_b32 s26, s26, 9')
    a('s_and_b32 s27, s12, 1')
    a('s_lshl_b32 s27, s27, 8')
    a('s_add_u32 s18, s26, s27')
    a('s_add_u32 s18, s18, s16')
    a('s_add_u32 s18, s18, 8192')
    a('s_lshl_b32 s26, s12, 19')
    a('s_add_u32 s26, s26, s88')
    a(f's_add_u32 s19, s26, {KF}')
    a('s_add_u32 s20, s19, 4096')
    a(f's_add_u32 s21, s26, {VF}')
    a('s_lshl_b32 s26, s12, 9')
    a('s_lshl_b32 s27, s14, 17')
    a('s_add_u32 s22, s26, s27')
    a(f's_add_u32 s22, s22, {PART}')
    a('s_lshl_b32 s26, s12, 14')
    a(f's_add_u32 s23, s26, {PART}')
    a('s_lshl_b32 s26, s12, 17')
    a('s_add_u32 s26, s26, s88')
    a(f's_add_u32 s24, s26, {KMF}')
    a(f's_add_u32 s25, s26, {VMF}')
    a('s_mov_b32 s15, 0')
    a('s_lshl_b32 s38, s14, 11')
    a(f's_add_u32 s38, s38, {LDS_PF}')
    a('s_add_u32 s39, s38, 1024')
    def prefetch():
        o = ['s_mov_b32 m0, s38', f'buffer_load_dwordx4 v2, s[4:7], s19 offen {xs} lds',
             's_mov_b32 m0, s39', f'buffer_load_dwordx4 v2, s[4:7], s20 offen {xs} lds',
             's_add_u32 s19, s19, 8192', 's_add_u32 s20, s20, 8192',
             's_xor_b32 s38, s38, 0x2000', 's_xor_b32 s39, s39, 0x2000']
        return o
    a('s_mov_b32 s41, 0')
    a('s_lshl_b32 s42, s89, 12')
    a(f's_add_u32 s42, s42, {FLG}')
    a('s_lshl_b32 s43, s12, 2')
    a('s_add_u32 s43, s43, s42')
    a('s_add_u32 s43, s43, 512')
    def kvwait(LL, rbreg):
        LL2 = a.uid('kvw')
        a('s_cmp_lg_u32 s41, 0')
        a(f's_cbranch_scc1 {LL2}_ok')
        a('s_mov_b32 s46, 0')
        a.label(f'{LL2}_p')
        a(f's_lshl_b32 s44, {rbreg}, 2')
        a('v_mov_b32 v50, s44')
        a('v_mov_b32 v51, 128')
        a('buffer_load_dword v50, v50, s[4:7], s42 offen sc1')
        a('buffer_load_dword v51, v51, s[4:7], s42 offen sc1')
        a('s_waitcnt vmcnt(0)')
        a('v_readfirstlane_b32 s44, v50')
        a('v_readfirstlane_b32 s45, v51')
        a('s_cmp_ge_u32 s45, 512')
        a('s_cselect_b32 s41, 1, 0')
        a('s_cmp_ge_u32 s44, 32')
        a(f's_cbranch_scc1 {LL2}_ok')
        a('s_sleep 2')
        a('s_add_u32 s46, s46, 1')
        a(f's_cmp_le_u32 s46, {SPIN_MAX*4}')
        a(f's_cbranch_scc1 {LL2}_p')
        a.label(f'{LL2}_ok')
    if merged:
        a('s_mov_b32 s47, 0')
        kvwait(L, 's47')
    for x in prefetch(): a(x)
    a('s_waitcnt vmcnt(0)')
    a('s_barrier')
    if PROF:
        for i in range(60, 70): a(f's_mov_b32 s{i}, 0')
        a('s_memrealtime s[92:93]')
        a('s_waitcnt lgkmcnt(0)')
    a('s_xor_b32 s29, s23, 0x80000')
    a('s_add_u32 s26, s29, 4096'); a('s_add_u32 s27, s29, 8192'); a('s_add_u32 s28, s29, 12288')
    a('s_cmp_lg_u32 s13, 0')
    a(f's_cbranch_scc1 {L}_s_step')
    for mode in ('f', 's'):
        rec_loop(a, f'{L}_{mode}', 'sc1' if mode == 's' else '', xs, wreg, prefetch, kvwait if merged else None)
        if mode == 'f': a(f's_branch {L}_recdone')
    a.label(f'{L}_recdone')
    for i in range(4): a(f'v_mov_b32 v{92+i}, -1')
    for sr in ('s29', 's26', 's27', 's28'): a(f'buffer_store_dwordx4 v[92:95], v5, s[4:7], {sr} offen sc1')
    if merged:
        a('s_waitcnt vmcnt(0)')
        a('s_barrier')
        a('s_cmp_lg_u32 s14, 0')
        a(f's_cbranch_scc1 {L}_nopub')
        a('v_mov_b32 v56, 64')
        a('v_mov_b32 v57, 0')
        a('buffer_store_dword v56, v57, s[4:7], s43 offen sc1')
        a.label(f'{L}_nopub')
        if PROF:
            a('s_memrealtime s[94:95]')
            a('s_waitcnt lgkmcnt(0)')
            a('s_lshl_b32 s95, s89, 5')
            a('s_add_u32 s95, s95, 216')
            a('s_mov_b64 exec, 1')
            a('v_mov_b32 v20, s92')
            a('v_mov_b32 v21, s94')
            a('v_mov_b32 v22, s95')
            a('buffer_store_dwordx2 v[20:21], v22, s[8:11], 0 offen')
            a('s_mov_b64 exec, -1')
        a('s_add_u32 s89, s89, 1')
        a(f's_add_u32 s88, s88, {LSTR}')
        a('s_cmp_lt_u32 s89, 2')
        a(f's_cbranch_scc1 {L}_layer')
    if PROF:
        a('s_memrealtime s[94:95]')
        a('s_waitcnt lgkmcnt(0)')
        a('s_sub_u32 s92, s92, s90')
        a('s_sub_u32 s94, s94, s90')
        a('s_mov_b64 exec, 1')
        a('v_mov_b32 v20, s92')
        a('v_mov_b32 v21, s94')
        a('v_mov_b32 v22, 44')
        a('buffer_store_dwordx2 v[20:21], v22, s[8:11], 0 offen')
        a('s_mov_b64 exec, -1')
        a('s_cmp_lg_u32 s12, 5')
        a(f's_cbranch_scc1 {L}_pf')
        a('s_mul_i32 s26, s14, 0')
        a('s_add_u32 s26, s26, 60')
        a('s_mov_b64 exec, 1')
        for i in range(1, 10):
            a(f'v_mov_b32 v20, s{60+i}')
            a(f'v_mov_b32 v21, {4*i}')
            a('buffer_store_dword v20, v21, s[8:11], s26 offen')
        a('s_mov_b64 exec, -1')
        a.label(f'{L}_pf')

def rec_loop(a, L, rs, xs, wreg, prefetch, kvwait):
    a.label(f'{L}_step')
    stamp(a, 0)
    a('s_mov_b32 s36, 0')
    a.label(f'{L}_gpoll')
    a('buffer_load_dwordx4 v[64:67], v9, s[4:7], s16 offen sc1')
    a('buffer_load_dwordx4 v[68:71], v9, s[4:7], s16 offen offset:1024 sc1')
    a('s_waitcnt vmcnt(0)')
    a('v_max3_u32 v56, v64, v65, v66')
    a('v_max3_u32 v56, v56, v67, v68')
    a('v_max3_u32 v56, v56, v69, v70')
    a('v_max_u32 v56, v56, v71')
    a('v_cmp_eq_u32 vcc, -1, v56')
    a(f's_cbranch_vccz {L}_gok')
    a('s_add_u32 s36, s36, 1')
    a(f's_cmp_le_u32 s36, {SPIN_MAX}')
    a(f's_cbranch_scc1 {L}_gpoll')
    a.label(f'{L}_gok')
    a('ds_write_b128 v0, v[64:67]')
    a('ds_write_b128 v0, v[68:71] offset:1024')
    for i in range(4): a(f'v_mov_b32 v{92+i}, -1')
    for sr in ('s29', 's26', 's27', 's28'): a(f'buffer_store_dwordx4 v[92:95], v5, s[4:7], {sr} offen {rs}')
    if PROF: a('s_add_u32 s69, s69, s36')
    a('s_waitcnt lgkmcnt(0)')
    a('s_barrier')
    stamp(a, 7)
    for k in range(16): a(f'ds_read_b128 v[{64+4*k}:{64+4*k+3}], v1 offset:{k*512}')
    def proj(which, dbase):
        o = []
        for ks in range(16):
            mf = f'v[{64+4*ks}:{64+4*ks+3}]'
            for et in range(2):
                d = dbase + et*4
                c = '0' if ks == 0 else f'v[{d}:{d+3}]'
                if which < 2: o.append(f'v_mfma_f32_16x16x32_bf16 v[{d}:{d+3}], {wreg(which, et, ks)}, {mf}, {c}')
                else: o.append(f'v_mfma_f32_16x16x32_bf16 v[{d}:{d+3}], {mf}, {wreg(2, et, ks)}, {c}')
        return o
    qm = proj(0, 32)
    fill = [f'buffer_load_dwordx4 v[24:27], v3, s[4:7], s21 offen {xs}',
            f'buffer_load_dwordx4 v[28:31], v3, s[4:7], s21 offen offset:1024 {xs}',
            's_add_u32 s21, s21, 8192']
    for ks in range(16):
        a(f's_waitcnt lgkmcnt({15-ks})')
        a(qm[2*ks]); a(qm[2*ks+1])
        if ks >= 2 and fill: a(fill.pop(0))
    km = proj(1, 40)
    ki = 0
    def K(n):
        nonlocal ki
        for _ in range(n):
            a(km[ki]); ki += 1
    K(4)
    stamp(a, 1)
    for i in range(4): a(f'v_cvt_pk_bf16_f32 v{56+i}, v{32+2*i}, v{33+2*i}')
    a('ds_write_b128 v13, v[56:59]')
    K(2)
    if kvwait:
        a('s_and_b32 s44, s15, 3')
        a('s_cmp_lg_u32 s44, 0')
        a(f's_cbranch_scc1 {L}_np')
        a('s_cmp_lg_u32 s14, 0')
        a(f's_cbranch_scc1 {L}_np')
        a('v_mov_b32 v48, s15')
        a('v_mov_b32 v49, 0')
        a('buffer_store_dword v48, v49, s[4:7], s43 offen sc1')
        a.label(f'{L}_np')
        a('s_cmp_lg_u32 s44, 3')
        a(f's_cbranch_scc1 {L}_nk')
        a('s_add_u32 s47, s15, 1')
        a('s_lshr_b32 s47, s47, 2')
        a('s_min_u32 s47, s47, 15')
        kvwait(L, 's47')
        a.label(f'{L}_nk')
    pf = prefetch()
    for i in range(0, 8, 2):
        a(pf[i]); a(pf[i+1]); K(1)
    a('s_waitcnt lgkmcnt(0)')
    a('s_barrier')
    QF = [16, 20, 56, 60]
    for m in range(4): a(f'ds_read_b128 v[{QF[m]}:{QF[m]+3}], v12 offset:{m*512}')
    for m in range(4):
        a(f'ds_read_b128 v[48:51], v11 offset:{m*2048}')
        a(f'ds_read_b128 v[52:55], v11 offset:{m*2048+1024}')
        K(5 if m < 3 else 4)
        a('s_waitcnt lgkmcnt(0)')
        c0 = '0' if m == 0 else 'v[32:35]'; c1 = '0' if m == 0 else 'v[36:39]'
        a(f'v_mfma_f32_16x16x32_bf16 v[32:35], v[48:51], v[{QF[m]}:{QF[m]+3}], {c0}')
        a(f'v_mfma_f32_16x16x32_bf16 v[36:39], v[52:55], v[{QF[m]}:{QF[m]+3}], {c1}')
    K(32 - ki)
    a('v_xor_b32 v11, 0x2000, v11')
    stamp(a, 8)
    vm = proj(2, 40)
    a('s_nop 4')
    for i in range(4): a(f'v_cvt_pk_bf16_f32 v{48+i}, v{40+2*i}, v{41+2*i}')
    a('ds_write_b128 v13, v[48:51] offset:2048')
    a(f'buffer_store_dwordx4 v[48:51], v7, s[4:7], s24 offen {xs}')
    vi = 0
    def V(n):
        nonlocal vi
        for _ in range(n):
            a(vm[vi]); vi += 1
    V(8)
    a('s_waitcnt lgkmcnt(0)')
    a('s_barrier')
    for m in range(4): a(f'ds_read_b128 v[{64+4*m}:{64+4*m+3}], v12 offset:{2048+m*512}')
    a('v_max3_f32 v52, v32, v33, v34')
    a('v_max3_f32 v52, v52, v35, v36')
    a('v_max3_f32 v52, v52, v37, v38')
    a('v_max_f32 v52, v52, v39')
    V(4)
    a('s_waitcnt lgkmcnt(0)')
    for m in range(4):
        c = '0' if m == 0 else 'v[48:51]'
        a(f'v_mfma_f32_16x16x32_bf16 v[48:51], v[{64+4*m}:{64+4*m+3}], v[{QF[m]}:{QF[m]+3}], {c}')
    V(4)
    va = ['v_mov_b32 v17, 0xf149f2ca']
    for i in range(48, 52): va.append(f'v_cndmask_b32 v{i}, v17, v{i}, s[34:35]')
    va.append('v_max3_f32 v52, v52, v48, v49')
    va.append('v_max3_f32 v52, v52, v50, v51')
    for sw in ('v_permlane16_swap_b32', 'v_permlane32_swap_b32'):
        va += ['v_mov_b32 v53, v52', f'{sw} v52, v53', 'v_max_f32 v52, v52, v53']
    CS = '0x3e0293ee'
    va.append(f'v_mul_f32 v52, {CS}, v52')
    va.append(f'v_mov_b32 v17, {CS}')
    S = list(range(32, 40)) + [48, 49, 50, 51]
    for i in S: va.append(f'v_fma_f32 v{i}, v{i}, v17, -v52')
    for i in S: va.append(f'v_exp_f32 v{i}, v{i}')
    va.append('v_add_f32 v52, v32, v33')
    va.append('v_add_f32 v53, v34, v35')
    for i in range(4, 12, 2):
        va.append(f'v_add_f32 v52, v52, v{S[i]}')
        va.append(f'v_add_f32 v53, v53, v{S[i+1]}')
    va.append('v_add_f32 v52, v52, v53')
    for sw in ('v_permlane16_swap_b32', 'v_permlane32_swap_b32'):
        va += ['v_mov_b32 v53, v52', f'{sw} v52, v53', 'v_add_f32 v52, v52, v53']
    va.append('v_rcp_f32 v52, v52')
    for i in S: va.append(f'v_mul_f32 v{i}, v{i}, v52')
    for i in range(4): va.append(f'v_cvt_pk_bf16_f32 v{16+i}, v{32+2*i}, v{33+2*i}')
    va += ['v_cvt_pk_bf16_f32 v20, v48, v49', 'v_cvt_pk_bf16_f32 v21, v50, v51', 'v_mov_b32 v22, 0', 'v_mov_b32 v23, 0']
    interleave(a, vm[vi:], va, per=4)
    stamp(a, 2)
    for dt in range(4):
        for m in range(4):
            r = 64 + (dt*4+m)*4
            a(f'ds_read_b128 v[{r}:{r+3}], v10 offset:{(dt*4+m)*1024}')
    a('v_cvt_pk_bf16_f32 v56, v40, v41'); a('v_cvt_pk_bf16_f32 v57, v42, v43'); a('v_mov_b32 v58, 0'); a('v_mov_b32 v59, 0')
    a('v_cvt_pk_bf16_f32 v60, v44, v45'); a('v_cvt_pk_bf16_f32 v61, v46, v47'); a('v_mov_b32 v62, 0'); a('v_mov_b32 v63, 0')
    a('s_waitcnt vmcnt(3)')
    a('v_mfma_f32_16x16x32_bf16 v[32:35], v[24:27], v[16:19], 0')
    a('v_mfma_f32_16x16x32_bf16 v[36:39], v[28:31], v[16:19], 0')
    a('v_mfma_f32_16x16x32_bf16 v[32:35], v[56:59], v[20:23], v[32:35]')
    a('v_mfma_f32_16x16x32_bf16 v[36:39], v[60:63], v[20:23], v[36:39]')
    a(f'buffer_store_dwordx2 v[56:57], v8, s[4:7], s25 offen {xs}')
    a(f'buffer_store_dwordx2 v[60:61], v8, s[4:7], s25 offen offset:256 {xs}')
    for i in range(4): a(f'v_cvt_pk_bf16_f32 v{40+i}, v{32+2*i}, v{33+2*i}')
    a('ds_write_b128 v15, v[40:43]')
    a('s_waitcnt lgkmcnt(0)')
    a('s_barrier')
    for m in range(4): a(f'ds_read_b128 v[{44+4*m}:{44+4*m+3}], v14 offset:{m*512}')
    a('s_waitcnt lgkmcnt(0)')
    stamp(a, 3)
    def wacc(dt): return 16 + 4*dt if dt < 7 else 60
    a('s_mov_b32 s26, s22')
    def pstore(dt):
        d = wacc(dt)
        a(f'buffer_store_dwordx4 v[{d}:{d+3}], v4, s[4:7], s26 offen {rs}')
        a('s_add_u32 s26, s26, 16384')
    for dt in range(8):
        d = wacc(dt)
        if dt >= 4: a(f's_waitcnt lgkmcnt({12-4*(dt-4)})')
        for m in range(4):
            r = 64 + ((dt % 4)*4+m)*4
            c = '0' if m == 0 else f'v[{d}:{d+3}]'
            a(f'v_mfma_f32_16x16x32_bf16 v[{d}:{d+3}], v[{r}:{r+3}], v[{44+4*m}:{44+4*m+3}], {c}')
        if dt < 4:
            for m in range(4):
                r = 64 + (dt*4+m)*4
                a(f'ds_read_b128 v[{r}:{r+3}], v10 offset:{((dt+4)*4+m)*1024}')
        if dt >= 1: pstore(dt-1)
    pstore(7)
    a('s_add_u32 s24, s24, 2048'); a('s_add_u32 s25, s25, 2048')
    stamp(a, 4)
    a('s_add_u32 s26, s23, 4096'); a('s_add_u32 s27, s23, 8192'); a('s_add_u32 s28, s23, 12288')
    RS = ['s23', 's26', 's27', 's28']
    a('s_mov_b32 s36, 0')
    a.label(f'{L}_rpoll')
    for i in range(4): a(f'buffer_load_dwordx4 v[{64+4*i}:{64+4*i+3}], v5, s[4:7], {RS[i]} offen sc1')
    a('s_waitcnt vmcnt(0)')
    a('v_max3_u32 v80, v64, v65, v66')
    for i in range(3, 15, 2): a(f'v_max3_u32 v80, v80, v{64+i}, v{64+i+1}')
    a('v_max_u32 v80, v80, v79')
    a('v_cmp_eq_u32 vcc, -1, v80')
    a(f's_cbranch_vccz {L}_rok')
    a('s_add_u32 s36, s36, 1')
    a(f's_cmp_le_u32 s36, {SPIN_MAX}')
    a(f's_cbranch_scc1 {L}_rpoll')
    a.label(f'{L}_rok')
    stamp(a, 5)
    for i in range(4):
        a(f'v_add_f32 v{80+i}, v{64+i}, v{68+i}')
        a(f'v_add_f32 v{84+i}, v{72+i}, v{76+i}')
    for i in range(4): a(f'v_add_f32 v{80+i}, v{80+i}, v{84+i}')
    for i in range(4): a(f'v_add_f32_dpp v{80+i}, v{80+i}, v{80+i} row_ror:8 row_mask:0xf bank_mask:0xf')
    for sw in ('v_permlane16_swap_b32', 'v_permlane32_swap_b32'):
        for i in range(4): a(f'v_mov_b32 v{84+i}, v{80+i}')
        for i in range(4): a(f'{sw} v{80+i}, v{84+i}')
        for i in range(4): a(f'v_add_f32 v{80+i}, v{80+i}, v{84+i}')
    a('v_cvt_pk_bf16_f32 v88, v80, v81'); a('v_cvt_pk_bf16_f32 v89, v82, v83')
    a(f'buffer_store_dwordx2 v[88:89], v6, s[4:7], s18 offen {rs}')
    a('s_mov_b32 s29, s23')
    a('s_add_u32 s16, s16, 8192'); a('s_add_u32 s17, s17, 8192'); a('s_add_u32 s18, s18, 8192')
    a('s_xor_b32 s22, s22, 0x80000'); a('s_xor_b32 s23, s23, 0x80000')
    stamp(a, 6)
    a('s_add_u32 s15, s15, 1')
    a('s_cmp_lt_u32 s15, 64')
    a(f's_cbranch_scc1 {L}_step')

def gen_rec(L, layer):
    a = Asm()
    a('s_cmp_ge_u32 s2, 256')
    a(f's_cbranch_scc1 {L}_end')
    srd(a, 4, 96, 0)
    srd(a, 8, 88, 0)
    a('s_waitcnt lgkmcnt(0)')
    srd_fin(a, 4, WS_SIZE)
    srd_fin(a, 8, 256)
    role_select(a, L)
    a('s_cmp_eq_u32 s12, -1')
    a(f's_cbranch_scc1 {L}_end')
    body_rec(a, L, layer, '')
    a.label(f'{L}_end')
    finish(L, a, vgpr=512, accum=256)
    launches.append((L, 256, 256, LDS_REC))


def softmax_block(a, S, valid_fix, t0, t1, t2):
    n = len(S)
    for rnd in range(2):
        for i in range(0, n, 2):
            a(f'v_cvt_pk_bf16_f32 v{t0}, v{S[i]}, v{S[i+1]}'); a(f'v_lshlrev_b32 v{S[i]}, 16, v{t0}'); a(f'v_and_b32 v{S[i+1]}, 0xffff0000, v{t0}')
        if rnd == 0:
            for i in range(n): a(f'v_mul_f32 v{S[i]}, 0x3db504f3, v{S[i]}')
    valid_fix(a)
    a(f'v_max_f32 v{t1}, v{S[0]}, v{S[1]}')
    for i in range(2, n, 2): a(f'v_max3_f32 v{t1}, v{t1}, v{S[i]}, v{S[i+1]}')
    g_allreduce(a, t1, t2, 'v_max_f32')
    a(f'v_mul_f32 v{t1}, 0xbfb8aa3b, v{t1}')
    a(f'v_mov_b32 v{t0}, 0x3fb8aa3b')
    for i in range(n):
        a(f'v_fma_f32 v{S[i]}, v{S[i]}, v{t0}, v{t1}')
        a(f'v_exp_f32 v{S[i]}, v{S[i]}')
    a(f'v_add_f32 v{t1}, v{S[0]}, v{S[1]}')
    for i in range(2, n): a(f'v_add_f32 v{t1}, v{t1}, v{S[i]}')
    g_allreduce(a, t1, t2, 'v_add_f32')
    a(f'v_rcp_f32 v{t1}, v{t1}')
    for i in range(n): a(f'v_mul_f32 v{S[i]}, v{S[i]}, v{t1}')

def body_t2(a, ld, st, wait_fn=None, deep=False, pre_fn=None):
    a('s_lshr_b32 s41, s40, 5')
    a('s_and_b32 s42, s40, 31')
    a('v_and_b32 v1, 63, v0')
    a('v_lshrrev_b32 v2, 6, v0')
    a('v_readfirstlane_b32 s43, v2')
    a('s_lshl_b32 s44, s41, 2')
    a('s_add_u32 s44, s44, s43')
    a('v_and_b32 v3, 15, v1')
    a('v_lshrrev_b32 v4, 4, v1')
    a('v_lshlrev_b32 v5, 4, v1')
    a('s_lshl_b32 s46, s44, 15')
    a(f's_add_u32 s46, s46, {XN}')
    a('s_add_u32 s46, s46, s88')
    a('v_add_u32 v6, s46, v5')
    a('v_add_u32 v7, 16384, v6')
    a('s_lshl_b32 s46, s42, 17')
    a(f's_add_u32 s46, s46, {WT}')
    for t in range(8):
        a(f'v_add_u32 v{8+t}, s46, v5')
        if t < 7: a('s_add_u32 s46, s46, 16384')
    for r in range(128, 192): a(f'v_mov_b32 v{r}, 0')
    if pre_fn: pre_fn(a)
    def mf(f):
        o = []
        for et in range(8):
            for tt in range(2):
                d = 128 + (et*2+tt)*4
                o.append(f'v_mfma_f32_16x16x32_bf16 v[{d}:{d+3}], {f(2+et)}, {f(tt)}, v[{d}:{d+3}]')
        return o
    gemm_loop(a, [(6+i, 'sc1' if i < 2 else '') for i in range(10)], 16, mf, [('v',16), ('v',56)] + ([('a',0), ('a',40)] if deep else []))
    if wait_fn: wait_fn(a)
    a('v_and_b32 v7, 7, v1')
    a('v_lshlrev_b32 v7, 4, v7')
    a('v_lshl_add_u32 v7, v4, 7, v7')
    a('v_lshlrev_b32 v8, 6, v3')
    a('v_lshl_add_u32 v8, v4, 4, v8')
    a('v_and_b32 v9, 1, v4')
    a('v_lshlrev_b32 v9, 3, v9')
    a('v_lshl_add_u32 v9, v3, 4, v9')
    a('s_lshl_b32 s46, s42, 19')
    a('s_lshl_b32 s47, s44, 13')
    a('s_add_u32 s46, s46, s47')
    a('s_add_u32 s46, s46, s88')
    a(f's_add_u32 s60, s46, {KF}')
    a('s_add_u32 s61, s60, 4096')
    a(f's_add_u32 s62, s46, {VF}')
    a('s_add_u32 s63, s62, 4096')
    a('s_lshl_b32 s46, s42, 17')
    a('s_lshl_b32 s47, s44, 11')
    a('s_add_u32 s46, s46, s47')
    a('s_add_u32 s46, s46, s88')
    a(f's_add_u32 s64, s46, {KMF}')
    a(f's_add_u32 s65, s46, {VMF}')
    for kt in range(2):
        for m in range(4):
            r = 16 + (kt*4+m)*4
            a(f'buffer_load_dwordx4 v[{r}:{r+3}], v5, s[4:7], s{60+kt} offen offset:{m*1024} {ld}')
    for m in range(4):
        r = 48 + m*4
        a(f'buffer_load_dwordx4 v[{r}:{r+3}], v7, s[4:7], s64 offen offset:{m*512} {ld}')
    for et in range(8):
        r = 192 + et*4
        a(f'buffer_load_dwordx4 v[{r}:{r+3}], v8, s[4:7], s{62+et//4} offen offset:{(et%4)*1024} {ld}')
    for et in range(8):
        r = 224 + et*4
        a(f'buffer_load_dwordx2 v[{r}:{r+1}], v9, s[4:7], s65 offen offset:{et*256} {ld}')
        a(f'v_mov_b32 v{r+2}, 0'); a(f'v_mov_b32 v{r+3}, 0')
    for m in range(4):
        for tt in range(2):
            o = 96 + (m*2+tt)*4
            d0 = 128 + ((2*m)*2+tt)*4; d1 = 128 + ((2*m+1)*2+tt)*4
            a(f'v_cvt_pk_bf16_f32 v{o}, v{d0}, v{d0+1}'); a(f'v_cvt_pk_bf16_f32 v{o+1}, v{d0+2}, v{d0+3}')
            a(f'v_cvt_pk_bf16_f32 v{o+2}, v{d1}, v{d1+1}'); a(f'v_cvt_pk_bf16_f32 v{o+3}, v{d1+2}, v{d1+3}')
    a('v_lshlrev_b32 v10, 2, v4')
    for i in range(4):
        a(f'v_add_u32 v11, {i}, v10')
        a(f'v_cmp_le_u32 s[{66+2*i}:{67+2*i}], v11, v3')
    a('v_cmp_gt_u32 s[74:75], 2, v4')
    a('s_waitcnt vmcnt(16)')
    tiles = [(16, 0, 128), (16, 1, 132), (32, 1, 136), (48, 0, 140), (48, 1, 144)]
    for (kb, tt, d) in tiles:
        for m in range(4):
            c = '0' if m == 0 else f'v[{d}:{d+3}]'
            a(f'v_mfma_f32_16x16x32_bf16 v[{d}:{d+3}], v[{kb+4*m}:{kb+4*m+3}], v[{96+(m*2+tt)*4}:{96+(m*2+tt)*4+3}], {c}')
    a('v_mov_b32 v12, 0xf149f2ca')
    def fix0(a):
        for i in range(4): a(f'v_cndmask_b32 v{128+i}, v12, v{128+i}, s[{66+2*i}:{67+2*i}]')
        for i in range(4): a(f'v_cndmask_b32 v{140+i}, v12, v{140+i}, s[74:75]')
    def fix1(a):
        for i in range(4): a(f'v_cndmask_b32 v{136+i}, v12, v{136+i}, s[{66+2*i}:{67+2*i}]')
        for i in range(4): a(f'v_cndmask_b32 v{144+i}, v12, v{144+i}, s[74:75]')
    softmax_block(a, [128,129,130,131,140,141,142,143], fix0, 13, 14, 15)
    softmax_block(a, [132,133,134,135,136,137,138,139,144,145,146,147], fix1, 13, 14, 15)
    a('v_cvt_pk_bf16_f32 v80, v128, v129'); a('v_cvt_pk_bf16_f32 v81, v130, v131'); a('v_mov_b32 v82, 0'); a('v_mov_b32 v83, 0')
    a('v_cvt_pk_bf16_f32 v84, v140, v141'); a('v_cvt_pk_bf16_f32 v85, v142, v143'); a('v_mov_b32 v86, 0'); a('v_mov_b32 v87, 0')
    a('v_cvt_pk_bf16_f32 v88, v132, v133'); a('v_cvt_pk_bf16_f32 v89, v134, v135'); a('v_cvt_pk_bf16_f32 v90, v136, v137'); a('v_cvt_pk_bf16_f32 v91, v138, v139')
    a('v_cvt_pk_bf16_f32 v92, v144, v145'); a('v_cvt_pk_bf16_f32 v93, v146, v147'); a('v_mov_b32 v94, 0'); a('v_mov_b32 v95, 0')
    a('s_waitcnt vmcnt(0)')
    for et in range(8):
        for tt in range(2):
            d = 16 + (et*2+tt)*4
            a(f'v_mfma_f32_16x16x32_bf16 v[{d}:{d+3}], v[{192+4*et}:{192+4*et+3}], v[{80+8*tt}:{80+8*tt+3}], 0')
    for et in range(8):
        for tt in range(2):
            d = 16 + (et*2+tt)*4
            a(f'v_mfma_f32_16x16x32_bf16 v[{d}:{d+3}], v[{224+4*et}:{224+4*et+3}], v[{84+8*tt}:{84+8*tt+3}], v[{d}:{d+3}]')
    a('s_lshl_b32 s46, s44, 18')
    a('s_lshl_b32 s47, s42, 12')
    a('s_add_u32 s46, s46, s47')
    a(f's_add_u32 s46, s46, {OF}')
    a('s_add_u32 s46, s46, s88')
    a('s_add_u32 s47, s46, 131072')
    for m in range(4):
        for tt in range(2):
            o = 96 + (m*2+tt)*4
            d0 = 16 + ((2*m)*2+tt)*4; d1 = 16 + ((2*m+1)*2+tt)*4
            a(f'v_cvt_pk_bf16_f32 v{o}, v{d0}, v{d0+1}'); a(f'v_cvt_pk_bf16_f32 v{o+1}, v{d0+2}, v{d0+3}')
            a(f'v_cvt_pk_bf16_f32 v{o+2}, v{d1}, v{d1+1}'); a(f'v_cvt_pk_bf16_f32 v{o+3}, v{d1+2}, v{d1+3}')
            a(f'buffer_store_dwordx4 v[{o}:{o+3}], v5, s[4:7], s{46+tt} offen offset:{m*1024} {st}')

def gen_t2(L):
    a = Asm()
    a('s_cmp_ge_u32 s2, 512')
    a(f's_cbranch_scc1 {L}_end')
    srd(a, 4, 96, 0)
    a('s_waitcnt lgkmcnt(0)')
    srd_fin(a, 4, WS_SIZE)
    a('s_mov_b32 s40, s2')
    body_t2(a, '', '')
    a.label(f'{L}_end')
    finish(L, a, vgpr=256, accum=256)
    launches.append((L, 512, 256, 0))

def resid_store(a, acc, xr, t, voff, srd_x, sx, srd_o, so, off, ldx):
    a(f'v_cvt_pk_bf16_f32 v{t}, v{acc}, v{acc+1}'); a(f'v_lshlrev_b32 v{acc}, 16, v{t}'); a(f'v_and_b32 v{acc+1}, 0xffff0000, v{t}')
    a(f'v_cvt_pk_bf16_f32 v{t}, v{acc+2}, v{acc+3}'); a(f'v_lshlrev_b32 v{acc+2}, 16, v{t}'); a(f'v_and_b32 v{acc+3}, 0xffff0000, v{t}')
    a(f'v_lshlrev_b32 v{t}, 16, v{xr}'); a(f'v_add_f32 v{acc}, v{acc}, v{t}')
    a(f'v_and_b32 v{t}, 0xffff0000, v{xr}'); a(f'v_add_f32 v{acc+1}, v{acc+1}, v{t}')
    a(f'v_lshlrev_b32 v{t}, 16, v{xr+1}'); a(f'v_add_f32 v{acc+2}, v{acc+2}, v{t}')
    a(f'v_and_b32 v{t}, 0xffff0000, v{xr+1}'); a(f'v_add_f32 v{acc+3}, v{acc+3}, v{t}')
    a(f'v_cvt_pk_bf16_f32 v{xr}, v{acc}, v{acc+1}'); a(f'v_cvt_pk_bf16_f32 v{xr+1}, v{acc+2}, v{acc+3}')
    a(f'buffer_store_dwordx2 v[{xr}:{xr+1}], v{voff}, {srd_o}, {so} offen offset:{off} {ldx}')

def body_t3(a, xsrd, xoff, dst, ld, deep=False, wait_fn=None):
    a('s_lshr_b32 s41, s40, 4')
    a('s_and_b32 s42, s40, 15')
    a('v_and_b32 v1, 63, v0')
    a('v_lshrrev_b32 v2, 6, v0')
    a('v_readfirstlane_b32 s43, v2')
    a('v_and_b32 v3, 15, v1')
    a('v_lshrrev_b32 v4, 4, v1')
    a('v_lshlrev_b32 v5, 4, v1')
    a('s_lshl_b32 s46, s42, 18')
    a('s_lshl_b32 s47, s43, 15')
    a('s_add_u32 s46, s46, s47')
    a(f's_add_u32 s46, s46, {WOT}')
    for dt in range(2):
        for ks in range(32):
            if ks % 4 == 0: a(f's_add_u32 s48, s46, {dt*131072 + ks*1024}')
            r = (dt*32+ks)*4
            a(f'buffer_load_dwordx4 a[{r}:{r+3}], v5, s[4:7], s48 offen offset:{(ks%4)*1024}')
    a('s_lshl_b32 s46, s41, 18')
    a('s_add_u32 s46, s46, s47')
    a(f's_add_u32 s46, s46, {OF}')
    a('s_add_u32 s46, s46, s88')
    a('v_add_u32 v12, s46, v5')
    a('v_add_u32 v13, 131072, v12')
    a('v_lshlrev_b32 v6, 10, v3')
    a('v_lshl_add_u32 v6, v4, 3, v6')
    a('s_lshl_b32 s46, s41, 15')
    a('s_and_b32 s47, s43, 1')
    a('s_lshl_b32 s47, s47, 14')
    a('s_add_u32 s46, s46, s47')
    a('s_lshl_b32 s47, s42, 6')
    a('s_add_u32 s46, s46, s47')
    a('s_lshr_b32 s47, s43, 1')
    a('s_lshl_b32 s47, s47, 5')
    a('s_add_u32 s46, s46, s47')
    a('s_lshl_b32 s47, s89, 22')
    a('s_add_u32 s46, s46, s47')
    a(f's_add_u32 s47, s46, {X1}')
    a(f's_add_u32 s46, s46, {XS0}')
    if wait_fn: wait_fn(a)
    a(f'buffer_load_dwordx2 v[96:97], v6, s[4:7], s46 offen sc1')
    D = 6
    def ldb(ks):
        f = 16 + (ks % D)*8
        if ks % 4 == 0: a(f's_mov_b32 s98, {ks*1024}')
        a(f'buffer_load_dwordx4 v[{f}:{f+3}], v12, s[4:7], s98 offen offset:{(ks%4)*1024} {ld}')
        a(f'buffer_load_dwordx4 v[{f+4}:{f+7}], v13, s[4:7], s98 offen offset:{(ks%4)*1024} {ld}')
    for ks in range(D-1): ldb(ks)
    for ks in range(32):
        if ks + D - 1 < 32:
            ldb(ks + D - 1); a(f's_waitcnt vmcnt({2*(D-1)})')
        else:
            a(f's_waitcnt vmcnt({2*(31-ks)})')
        f = 16 + (ks % D)*8
        for dt in range(2):
            for tt in range(2):
                d = 128 + (dt*2+tt)*4
                c = '0' if ks == 0 else f'v[{d}:{d+3}]'
                r = (dt*32+ks)*4
                a(f'v_mfma_f32_16x16x32_bf16 v[{d}:{d+3}], a[{r}:{r+3}], v[{f+4*tt}:{f+4*tt+3}], {c}')
    a('s_lshl_b32 s44, s43, 12')
    a('v_add_u32 v8, s44, v5')
    for i in range(4): a(f'ds_write_b128 v8, v[{128+4*i}:{128+4*i+3}] offset:{i*1024}')
    a('s_waitcnt lgkmcnt(0)')
    a('s_barrier')
    a('s_lshl_b32 s44, s43, 10')
    a('v_add_u32 v8, s44, v5')
    for w2 in range(4): a(f'ds_read_b128 v[{16+4*w2}:{16+4*w2+3}], v8 offset:{w2*4096}')
    a('s_waitcnt lgkmcnt(0)')
    for i in range(4):
        a(f'v_add_f32 v{16+i}, v{16+i}, v{20+i}')
        a(f'v_add_f32 v{24+i}, v{24+i}, v{28+i}')
        a(f'v_add_f32 v{16+i}, v{16+i}, v{24+i}')
    resid_store(a, 16, 96, 9, 6, xsrd, 's46', 's[4:7]', 's47', 0, 'sc1')

def gen_t3(L, xoff, dst):
    a = Asm()
    a('s_cmp_ge_u32 s2, 256')
    a(f's_cbranch_scc1 {L}_end')
    srd(a, 4, 96, 0)
    srd(a, 76, 0, 0)
    a('s_waitcnt lgkmcnt(0)')
    srd_fin(a, 4, WS_SIZE)
    srd_fin(a, 76, 0x200000)
    a('s_mov_b32 s40, s2')
    if xoff is None: body_t3(a, 's[76:79]', 0, dst, '')
    else: body_t3(a, 's[4:7]', xoff, dst, '')
    a.label(f'{L}_end')
    finish(L, a, vgpr=256, accum=256)
    launches.append((L, 256, 256, 65536))

NTL = 512 + 16*128 + 128
def gen_mega(L):
    a = Asm()
    a('s_cmp_ge_u32 s2, 256')
    a(f's_cbranch_scc1 {L}_end')
    srd(a, 4, 96, 0)
    srd(a, 8, 88, 0)
    srd(a, 76, 80, 0)
    a('s_waitcnt lgkmcnt(0)')
    srd_fin(a, 4, WS_SIZE)
    srd_fin(a, 8, 256)
    srd_fin(a, 76, 0x200000)
    if PROF:
        a('s_memrealtime s[90:91]')
        a('s_waitcnt lgkmcnt(0)')
    role_select(a, L)
    a('s_cmp_eq_u32 s12, -1')
    a(f's_cbranch_scc1 {L}_worker')
    body_rec(a, L, 0, 'sc1', merged=True)
    a(f's_branch {L}_end')
    a.label(f'{L}_worker')
    a.label(f'{L}_next')
    a('v_mbcnt_lo_u32_b32 v0, -1, 0')
    a('v_mbcnt_hi_u32_b32 v0, -1, v0')
    a('s_lshl_b32 s81, s14, 6')
    a('v_add_u32 v0, s81, v0')
    a('s_barrier')
    a('s_cmp_lg_u32 s14, 0')
    a(f's_cbranch_scc1 {L}_tw')
    a('s_mov_b64 exec, 1')
    a('v_mov_b32 v2, 40')
    a('v_mov_b32 v3, 1')
    a('buffer_atomic_add v3, v2, s[8:11], 0 offen sc0')
    a('s_waitcnt vmcnt(0)')
    a(f'v_mov_b32 v2, {LDS_REC - 256}')
    a('ds_write_b32 v2, v3')
    a('s_waitcnt lgkmcnt(0)')
    a('s_mov_b64 exec, -1')
    a.label(f'{L}_tw')
    a('s_barrier')
    a(f'v_mov_b32 v2, {LDS_REC - 256}')
    a('ds_read_b32 v3, v2')
    a('s_waitcnt lgkmcnt(0)')
    a('v_readfirstlane_b32 s81, v3')
    a(f's_cmp_ge_u32 s81, {2*NTL}')
    a(f's_cbranch_scc1 {L}_end')
    a(f's_cmp_ge_u32 s81, {NTL}')
    a('s_cselect_b32 s89, 1, 0')
    a(f's_cselect_b32 s88, {LSTR}, 0')
    a(f's_cselect_b32 s82, {NTL}, 0')
    a('s_sub_u32 s81, s81, s82')
    a('s_lshl_b32 s80, s89, 12')
    a(f's_add_u32 s80, s80, {FLG}')
    def signal(extra=None, slot=None):
        a('s_waitcnt vmcnt(0)')
        a('s_barrier')
        LL = a.uid('sig')
        a('s_cmp_lg_u32 s14, 0')
        a(f's_cbranch_scc1 {LL}')
        a('s_mov_b64 exec, 1')
        a('v_mov_b32 v2, s82')
        a('v_mov_b32 v3, 1')
        a('buffer_atomic_add v3, v2, s[4:7], s80 offen')
        if extra is not None:
            a(f'v_mov_b32 v2, {extra}')
            a('buffer_atomic_add v3, v2, s[4:7], s80 offen')
        if PROF and slot is not None:
            a('s_memrealtime s[90:91]')
            a('s_waitcnt lgkmcnt(0)')
            a('s_lshl_b32 s91, s89, 5')
            a(f's_add_u32 s91, s91, {192 + 4*slot}')
            a('v_mov_b32 v2, s91')
            a('v_mov_b32 v3, s90')
            a('buffer_atomic_umax v3, v2, s[8:11], 0 offen')
        a('s_mov_b64 exec, -1')
        a.label(LL)
    def poll(a, off_s, thr_s, base='s80'):
        LL = a.uid('poll')
        a('s_mov_b32 s85, 0')
        a.label(LL)
        a(f'v_mov_b32 v254, {off_s}')
        a(f'buffer_load_dword v254, v254, s[4:7], {base} offen sc1')
        a('s_waitcnt vmcnt(0)')
        a('v_readfirstlane_b32 s84, v254')
        a(f's_cmp_ge_u32 s84, {thr_s}')
        a(f's_cbranch_scc1 {LL}_ok')
        a('s_sleep 8')
        a('s_add_u32 s85, s85, 1')
        a(f's_cmp_le_u32 s85, {SPIN_MAX*4}')
        a(f's_cbranch_scc1 {LL}')
        a.label(f'{LL}_ok')
    a('s_cmp_ge_u32 s81, 512')
    a(f's_cbranch_scc1 {L}_t23')
    a('s_mov_b32 s40, s81')
    def w1(a):
        LL = a.uid('w1')
        a('s_cmp_eq_u32 s89, 0')
        a(f's_cbranch_scc1 {LL}')
        a('s_lshl_b32 s86, s41, 2')
        a('s_add_u32 s86, s86, 1280')
        a(f's_mov_b32 s87, {FLG}')
        poll(a, 's86', '8', 's87')
        a.label(LL)
        a('s_cmp_lt_u32 s41, %d' % int(os.environ.get('T1PRI', '3')))
        a(f's_cbranch_scc1 {LL}_b')
        poll(a, '0', '32')
        a.label(f'{LL}_b')
    body_t1(a, 'sc1', deep=True, wait_fn=w1)
    a('s_lshl_b32 s82, s41, 2')
    signal(128, 0)
    a(f's_branch {L}_next')
    a.label(f'{L}_t23')
    a('s_sub_u32 s81, s81, 512')
    a('s_cmp_ge_u32 s81, 2048')
    a(f's_cbranch_scc1 {L}_b2')
    a('s_lshr_b32 s83, s81, 7')
    a('s_and_b32 s81, s81, 127')
    a('s_cmp_ge_u32 s81, 32')
    a(f's_cbranch_scc1 {L}_t3')
    a('s_lshl_b32 s40, s83, 5')
    a('s_add_u32 s40, s40, s81')
    def w2(a):
        a('s_lshl_b32 s86, s41, 2')
        poll(a, 's86', '32')
        a('s_lshl_b32 s86, s42, 2')
        a('s_add_u32 s86, s86, 512')
        a('s_lshl_b32 s87, s41, 2')
        a('s_add_u32 s87, s87, 4')
        poll(a, 's86', 's87')
    def w2a(a):
        a('s_lshl_b32 s86, s41, 2')
        poll(a, 's86', '32')
    body_t2(a, 'sc1', 'sc1', wait_fn=w2, deep=True, pre_fn=w2a)
    a('s_lshl_b32 s82, s41, 2')
    a('s_add_u32 s82, s82, 256')
    signal(None, 1)
    a(f's_branch {L}_next')
    a.label(f'{L}_t3')
    a('s_sub_u32 s81, s81, 32')
    a('s_cmp_ge_u32 s81, 64')
    a(f's_cbranch_scc1 {L}_lnb')
    a('s_lshl_b32 s40, s83, 6')
    a('s_add_u32 s40, s40, s81')
    def w3(a):
        a('s_lshl_b32 s86, s83, 2')
        a('s_add_u32 s86, s86, 256')
        poll(a, 's86', '32')
    body_t3(a, 's[4:7]', 0, 0, 'sc1', deep=True, wait_fn=w3)
    a('s_waitcnt vmcnt(0)')
    a('s_barrier')
    a('s_cmp_lg_u32 s14, 0')
    a(f's_cbranch_scc1 {L}_x1w')
    a('s_mov_b64 exec, 1')
    a('s_lshl_b32 s82, s41, 2')
    a('s_add_u32 s82, s82, 768')
    a('v_mov_b32 v2, s82')
    a('v_mov_b32 v3, 1')
    a('buffer_atomic_add v3, v2, s[4:7], s80 offen sc0')
    a('s_waitcnt vmcnt(0)')
    a(f'v_mov_b32 v2, {LDS_REC - 128}')
    a('ds_write_b32 v2, v3')
    a('s_waitcnt lgkmcnt(0)')
    a('s_mov_b64 exec, -1')
    a.label(f'{L}_x1w')
    a('s_barrier')
    a(f'v_mov_b32 v2, {LDS_REC - 128}')
    a('ds_read_b32 v3, v2')
    a('s_waitcnt lgkmcnt(0)')
    a('v_readfirstlane_b32 s82, v3')
    a('s_cmp_lg_u32 s82, 15')
    a(f's_cbranch_scc1 {L}_next')
    a('s_lshl_b32 s40, s41, 1')
    body_lnb(a)
    a('s_add_u32 s40, s40, 1')
    body_lnb(a)
    a('s_lshl_b32 s82, s83, 2')
    a('s_add_u32 s82, s82, 1024')
    signal(None, 3)
    a(f's_branch {L}_next')
    a.label(f'{L}_lnb')
    a('s_sub_u32 s81, s81, 64')
    a('s_lshl_b32 s40, s83, 5')
    a('s_add_u32 s40, s40, s81')
    def wb1(a):
        a('s_lshl_b32 s86, s83, 2')
        a('s_add_u32 s86, s86, 1024')
        poll(a, 's86', '4')
    body_b1(a, wb1)
    a('s_mov_b32 s82, 1152')
    signal(None, 4)
    a(f's_branch {L}_next')
    a.label(f'{L}_b2')
    a('s_sub_u32 s40, s81, 2048')
    def wb2(a):
        poll(a, '1152', '512')
    body_b2(a, wb2)
    a('s_lshr_b32 s82, s41, 3')
    a('s_lshl_b32 s82, s82, 2')
    a('s_add_u32 s82, s82, 1280')
    signal(None, 5)
    a(f's_branch {L}_next')
    a.label(f'{L}_end')
    finish(L, a, vgpr=512, accum=256)
    launches.append((L, 256, 256, LDS_REC))

def phi(a, r, t, t2):
    a(f'v_add_f32 v{t}, 1.0, v{r}')
    a(f'v_mul_f32 v{t2}, 0x3fb8aa3b, v{r}')
    a(f'v_exp_f32 v{t2}, v{t2}')
    a(f'v_cmp_lt_f32 vcc, 0, v{r}')
    a(f'v_cndmask_b32 v{r}, v{t2}, v{t}, vcc')
    bf16_round(a, r, t)
    a(f'v_add_f32 v{r}, 0x358637bd, v{r}')
    bf16_round(a, r, t)

def body_b1(a, wait_fn):
    a('s_lshr_b32 s41, s40, 5')
    a('s_and_b32 s42, s40, 31')
    a('v_and_b32 v1, 63, v0')
    a('v_lshrrev_b32 v2, 6, v0')
    a('v_readfirstlane_b32 s43, v2')
    a('v_and_b32 v3, 15, v1')
    a('v_lshrrev_b32 v4, 4, v1')
    a('v_lshlrev_b32 v5, 4, v1')
    a('s_lshl_b32 s44, s41, 3')
    a('s_lshl_b32 s45, s43, 1')
    a('s_add_u32 s44, s44, s45')
    a('s_lshl_b32 s46, s42, 14')
    a(f's_add_u32 s46, s46, {BQKV}')
    for c in range(3):
        for ks in range(16):
            if ks % 4 == 0: a(f's_add_u32 s48, s46, {c*32*16384 + ks*1024}')
            r = (c*16+ks)*4
            a(f'buffer_load_dwordx4 a[{r}:{r+3}], v5, s[4:7], s48 offen offset:{(ks%4)*1024}')
    a('s_lshl_b32 s46, s44, 14')
    a(f's_add_u32 s46, s46, {XNB}')
    a('s_add_u32 s46, s46, s88')
    wait_fn(a)
    for tt in range(2):
        for ks in range(16):
            if ks % 4 == 0: a(f's_add_u32 s48, s46, {tt*16384 + ks*1024}')
            r = 128 + (ks*2+tt)*4
            a(f'buffer_load_dwordx4 v[{r}:{r+3}], v5, s[4:7], s48 offen offset:{(ks%4)*1024} sc1')
    for ks in range(16):
        a(f's_waitcnt vmcnt({15-ks})')
        for tt in range(2):
            x = f'v[{128+(ks*2+tt)*4}:{128+(ks*2+tt)*4+3}]'
            for c in range(3):
                d = 64 + c*8 + tt*4
                w = f'a[{(c*16+ks)*4}:{(c*16+ks)*4+3}]'
                cc = '0' if ks == 0 else f'v[{d}:{d+3}]'
                if c == 0: a(f'v_mfma_f32_16x16x32_bf16 v[{d}:{d+3}], {w}, {x}, {cc}')
                else: a(f'v_mfma_f32_16x16x32_bf16 v[{d}:{d+3}], {x}, {w}, {cc}')
    for r in range(64, 80):
        bf16_round(a, r, 16 + (r & 1)*2)
        phi(a, r, 16 + (r & 1)*2, 17 + (r & 1)*2)
    a('v_lshlrev_b32 v14, 3, v1')
    a('s_lshl_b32 s46, s44, 14')
    a('s_lshl_b32 s47, s42, 9')
    a('s_add_u32 s46, s46, s47')
    a(f's_add_u32 s46, s46, {PQ}')
    a('s_add_u32 s46, s46, s88')
    a('s_add_u32 s47, s46, 16384')
    for tt in range(2):
        d = 64 + tt*4; o = 24 + tt*2
        a(f'v_cvt_pk_bf16_f32 v{o}, v{d}, v{d+1}'); a(f'v_cvt_pk_bf16_f32 v{o+1}, v{d+2}, v{d+3}')
        a(f'buffer_store_dwordx2 v[{o}:{o+1}], v14, s[4:7], s{46+tt} offen sc1')
    for c in range(2):
        o = 32 + c*4; d = 72 + c*8
        for i in range(4): a(f'v_cvt_pk_bf16_f32 v{o+i}, v{d+2*i}, v{d+2*i+1}')
    for i in range(4): a(f'v_mov_b32 v{48+i}, 0x3f803f80')
    a('v_mfma_f32_16x16x32_bf16 v[96:99], v[32:35], v[36:39], 0')
    a('v_mfma_f32_16x16x32_bf16 v[100:103], v[32:35], v[48:51], 0')
    a('s_lshl_b32 s46, s43, 11')
    a('v_add_u32 v15, s46, v5')
    for t in range(2): a(f'ds_write_b128 v15, v[{96+4*t}:{96+4*t+3}] offset:{t*1024}')
    a('s_waitcnt lgkmcnt(0)')
    a('s_barrier')
    LB = a.uid('b1e')
    a('s_cmp_ge_u32 s43, 2')
    a(f's_cbranch_scc1 {LB}')
    a('s_lshl_b32 s46, s43, 10')
    a('v_add_u32 v15, s46, v5')
    for w2 in range(4): a(f'ds_read_b128 v[{104+4*w2}:{104+4*w2+3}], v15 offset:{w2*2048}')
    a('s_waitcnt lgkmcnt(0)')
    for i in range(4):
        a(f'v_add_f32 v{104+i}, v{104+i}, v{108+i}')
        a(f'v_add_f32 v{112+i}, v{112+i}, v{116+i}')
        a(f'v_add_f32 v{104+i}, v{104+i}, v{112+i}')
    a('v_mul_u32_u24 v6, 272, v4')
    a('v_lshl_add_u32 v7, v3, 2, v6')
    a('v_add_u32 v6, 64, v6')
    a('v_mov_b32 v8, 0x7fffff00')
    a('v_cmp_eq_u32 vcc, 0, v3')
    a('v_cndmask_b32 v6, v8, v6, vcc')
    a('s_cmp_eq_u32 s43, 1')
    a('s_cselect_b64 vcc, -1, 0')
    a('v_cndmask_b32 v6, v7, v6, vcc')
    a('s_mul_i32 s46, s42, 1088')
    a(f's_add_u32 s46, s46, {KVB}')
    a('s_lshl_b32 s47, s89, 16')
    a('s_add_u32 s46, s46, s47')
    for i in range(4): a(f'buffer_atomic_add_f32 v{104+i}, v6, s[4:7], s46 offen offset:{i*68}')
    a.label(LB)

def body_b2(a, wait_fn):
    L = a.uid('b2')
    a('s_mov_b32 s41, s40')
    a('v_and_b32 v1, 63, v0')
    a('v_lshrrev_b32 v2, 6, v0')
    a('v_readfirstlane_b32 s43, v2')
    a('v_and_b32 v3, 15, v1')
    a('v_lshrrev_b32 v4, 4, v1')
    a('v_lshlrev_b32 v5, 4, v1')
    a('s_lshl_b32 s46, s43, 17')
    a(f's_add_u32 s46, s46, {BWO}')
    for t in range(8):
        for ks in range(8):
            if ks % 4 == 0: a(f's_add_u32 s48, s46, {t*16384 + ks*1024}')
            r = (ks*8+t)*4
            a(f'buffer_load_dwordx4 a[{r}:{r+3}], v5, s[4:7], s48 offen offset:{(ks%4)*1024}')
    wait_fn(a)
    a('v_mul_u32_u24 v6, 272, v4')
    a('v_lshl_add_u32 v7, v3, 2, v6')
    a('s_mul_i32 s46, s43, %d' % (8*1088))
    a(f's_add_u32 s46, s46, {KVB}')
    a('s_lshl_b32 s47, s89, 16')
    a('s_add_u32 s46, s46, s47')
    for hh in range(8):
        if hh == 3 or hh == 6: a('s_add_u32 s46, s46, %d' % (3*1088))
        ho = (hh % 3)*1088
        for j in range(4):
            a(f'buffer_load_dword v{192+8*hh+j}, v7, s[4:7], s46 offen offset:{ho + j*68} sc1')
            a(f'buffer_load_dword v{196+8*hh+j}, v6, s[4:7], s46 offen offset:{ho + j*68 + 64} sc1')
    a('v_lshlrev_b32 v8, 3, v1')
    a('s_lshl_b32 s46, s41, 14')
    a('s_lshl_b32 s47, s43, 12')
    a('s_add_u32 s46, s46, s47')
    a(f's_add_u32 s46, s46, {PQ}')
    a('s_add_u32 s46, s46, s88')
    for hh in range(8): a(f'buffer_load_dwordx2 v[{16+2*hh}:{17+2*hh}], v8, s[4:7], s46 offen offset:{hh*512} sc1')
    a('v_lshlrev_b32 v9, 10, v3')
    a('v_lshl_add_u32 v9, v4, 3, v9')
    a('s_lshl_b32 s46, s41, 14')
    a('s_lshl_b32 s47, s43, 8')
    a('s_add_u32 s48, s46, s47')
    a('s_lshl_b32 s47, s89, 22')
    a('s_add_u32 s46, s48, s47')
    a(f's_add_u32 s46, s46, {X1}')
    for dt in range(8): a(f'buffer_load_dwordx2 v[{32+2*dt}:{33+2*dt}], v9, s[4:7], s46 offen offset:{dt*32} sc1')
    a('s_lshl_b32 s46, s43, 17')
    a(f's_add_u32 s46, s46, {BWO}')
    for t in range(8):
        a(f'v_add_u32 v{48+t}, s46, v5')
        if t < 7: a('s_add_u32 s46, s46, 16384')
    a('s_waitcnt vmcnt(8)')
    for hh in range(8):
        b = 192 + 8*hh; o = 96 + 4*hh
        a(f'v_cvt_pk_bf16_f32 v{o}, v{b}, v{b+1}'); a(f'v_cvt_pk_bf16_f32 v{o+1}, v{b+2}, v{b+3}')
        a(f'v_cvt_pk_bf16_f32 v{o+2}, v{b+4}, v{b+5}'); a(f'v_cvt_pk_bf16_f32 v{o+3}, v{b+6}, v{b+7}')
    for hh in range(8):
        a(f'v_mfma_f32_16x16x16_bf16 v[{192+4*hh}:{192+4*hh+3}], v[{96+4*hh}:{97+4*hh}], v[{16+2*hh}:{17+2*hh}], 0')
        a(f'v_mfma_f32_16x16x16_bf16 v[{128+4*hh}:{128+4*hh+3}], v[{98+4*hh}:{99+4*hh}], v[{16+2*hh}:{17+2*hh}], 0')
    for i in range(8):
        dn = 128 + 4*i; nm = 192 + 4*i
        t = 10 + (i & 1)*3
        bf16_round(a, dn, t)
        a(f'v_add_f32 v{dn}, 0x358637bd, v{dn}')
        bf16_round(a, dn, t)
        a(f'v_rcp_f32 v{t+1}, v{dn}')
        bf16_round2(a, nm, nm+1, t); bf16_round2(a, nm+2, nm+3, t)
        for k in range(4):
            a(f'v_mul_f32 v{t}, v{nm+k}, v{t+1}')
            a(f'v_fma_f32 v{t+2}, -v{t}, v{dn}, v{nm+k}')
            a(f'v_fma_f32 v{nm+k}, v{t+2}, v{t+1}, v{t}')
    a('s_lshl_b32 s44, s43, 12')
    a('v_add_u32 v6, s44, v5')
    for bb in range(4):
        o = 16 + bb*4
        d0 = 192 + (2*bb)*4; d1 = 192 + (2*bb+1)*4
        a(f'v_cvt_pk_bf16_f32 v{o}, v{d0}, v{d0+1}'); a(f'v_cvt_pk_bf16_f32 v{o+1}, v{d0+2}, v{d0+3}')
        a(f'v_cvt_pk_bf16_f32 v{o+2}, v{d1}, v{d1+1}'); a(f'v_cvt_pk_bf16_f32 v{o+3}, v{d1+2}, v{d1+3}')
        a(f'ds_write_b128 v6, v[{o}:{o+3}] offset:{bb*1024}')
    a('s_waitcnt lgkmcnt(0)')
    a('s_barrier')
    for i in range(16): a(f'ds_read_b128 v[{192+4*i}:{192+4*i+3}], v5 offset:{i*1024}')
    for r in range(64, 96): a(f'v_mov_b32 v{r}, 0')
    BUF = [96, 128, 160]
    def ld(ks):
        f = BUF[ks % 3]
        a(f's_mov_b32 s98, {ks*1024}')
        for t in range(8): a(f'buffer_load_dwordx4 v[{f+4*t}:{f+4*t+3}], v{48+t}, s[4:7], s98 offen')
    ld(8); ld(9); ld(10)
    a('s_waitcnt lgkmcnt(0)')
    for ks in range(8):
        for dt in range(8):
            d = 64 + dt*4; r = (ks*8+dt)*4
            a(f'v_mfma_f32_16x16x32_bf16 v[{d}:{d+3}], a[{r}:{r+3}], v[{192+4*ks}:{192+4*ks+3}], v[{d}:{d+3}]')
    for ks in range(8, 16):
        a(f's_waitcnt vmcnt({16 if ks < 14 else (8 if ks == 14 else 0)})')
        f = BUF[ks % 3]
        for dt in range(8):
            d = 64 + dt*4
            a(f'v_mfma_f32_16x16x32_bf16 v[{d}:{d+3}], v[{f+4*dt}:{f+4*dt+3}], v[{192+4*ks}:{192+4*ks+3}], v[{d}:{d+3}]')
        if ks + 3 < 16: ld(ks+3)
    a('s_cmp_lg_u32 s89, 0')
    a(f's_cbranch_scc1 {L}_last')
    a(f's_add_u32 s62, s48, {X2}')
    for dt in range(8):
        resid_store(a, 64+4*dt, 32+2*dt, 10, 9, None, None, 's[4:7]', 's62', dt*32, 'sc1')
    if True:
        for dt in range(8):
            for h2 in range(2):
                a(f'v_lshlrev_b32 v{64+4*dt+2*h2}, 16, v{32+2*dt+h2}')
                a(f'v_and_b32 v{65+4*dt+2*h2}, 0xffff0000, v{32+2*dt+h2}')
        def xwave(v, slot):
            g_allreduce(a, v, 11, 'v_add_f32')
            a('s_lshl_b32 s44, s43, 8')
            a('v_lshlrev_b32 v12, 2, v1')
            a('v_add_u32 v13, s44, v12')
            a(f'ds_write_b32 v13, v{v} offset:{16384 + slot*1024}')
            a('s_waitcnt lgkmcnt(0)')
            a('s_barrier')
            for w2 in range(4): a(f'ds_read_b32 v{100+w2}, v12 offset:{16384 + slot*1024 + w2*256}')
            a('s_waitcnt lgkmcnt(0)')
            a('v_add_f32 v100, v100, v101'); a('v_add_f32 v102, v102, v103'); a(f'v_add_f32 v{v}, v100, v102')
        a('v_add_f32 v10, v64, v65')
        for r in range(66, 96): a(f'v_add_f32 v10, v10, v{r}')
        xwave(10, 0)
        a('v_mul_f32 v10, 0x3b000000, v10')
        a('v_mov_b32 v14, 0')
        for r in range(64, 96):
            a(f'v_sub_f32 v15, v{r}, v10')
            a('v_fmac_f32 v14, v15, v15')
        xwave(14, 1)
        a('v_mul_f32 v14, 0x3b000000, v14')
        bf16_round(a, 14, 15)
        a('v_add_f32 v14, 0x3727c5ac, v14')
        bf16_round(a, 14, 15)
        a('v_sqrt_f32 v14, v14')
        bf16_round(a, 14, 15)
        bf16_round(a, 10, 15)
        a('v_rcp_f32 v16, v14')
        a('v_lshrrev_b32 v17, 1, v4')
        a('v_lshlrev_b32 v17, 8, v17')
        a('v_lshl_add_u32 v17, v3, 4, v17')
        a('v_and_b32 v18, 1, v4')
        a('v_lshl_add_u32 v17, v18, 3, v17')
        a('s_lshl_b32 s46, s41, 14')
        a('s_lshl_b32 s47, s43, 12')
        a('s_add_u32 s46, s46, s47')
        a(f's_add_u32 s46, s46, {XN + LSTR}')
        for dt in range(8):
            for h2 in range(2):
                r = 64 + 4*dt + 2*h2
                a(f'v_sub_f32 v{r}, v{r}, v10'); a(f'v_sub_f32 v{r+1}, v{r+1}, v10')
                bf16_round2(a, r, r+1, 15)
                for k in (r, r+1):
                    a(f'v_mul_f32 v19, v{k}, v16')
                    a(f'v_fma_f32 v20, -v19, v14, v{k}')
                    a(f'v_fma_f32 v{k}, v20, v16, v19')
                a(f'v_cvt_pk_bf16_f32 v{104+2*dt+h2}, v{r}, v{r+1}')
            a(f'buffer_store_dwordx2 v[{104+2*dt}:{105+2*dt}], v17, s[4:7], s46 offen offset:{(dt>>1)*1024 + (dt&1)*512} sc1')
    a(f's_branch {L}_done')
    a.label(f'{L}_last')
    a('s_mov_b32 s62, s48')
    for dt in range(8):
        resid_store(a, 64+4*dt, 32+2*dt, 10, 9, None, None, 's[76:79]', 's62', dt*32, '')
    a.label(f'{L}_done')

def emit(path):
    hdr = open(os.path.join(os.path.dirname(__file__), '..', 'cdna_kernels', NAME + '.s.ref')).read().split('; Override')[0]
    s = hdr
    for (L, g, b, lds) in launches:
        s += f'; @launch kernel={L} grid=({g},1,1) block=({b},1,1) lds={lds}\n'
    s += '.amdgcn_target "amdgcn-amd-amdhsa--gfx950"\n.text\n'
    seen = set()
    for (L, t, k) in kernels:
        s += t
    s += '.section .rodata,"a"\n'
    for (L, t, k) in kernels:
        s += '.p2align 6\n' + k
    open(path, 'w').write(s)

if __name__ == '__main__':
    gen_prep()
    gen_mega('mega_kernel')
    emit(os.path.join(os.path.dirname(__file__), '..', 'cdna_kernels', NAME + '.s'))
```

```python
import sys, os
sys.path.insert(0, os.path.dirname(__file__))
from asmlib import Asm, kd

NAME = 'interleave_layers__memory_aug_recurrent_mem_tr__linear_attn_block__prompt'
WT   = 0x0000000
WOT  = 0x0C00000
BQKV = 0x1000000
BWO  = 0x1180000
XN   = 0x1200000
XS0  = 0x1400000
X1   = 0x1600000
X2   = 0x1800000
X3   = 0x1A00000
PQ   = 0x1C00000
XNB  = 0x1E00000
LSTR = 0x6000000
KF   = 0x2000000
VF   = 0x3000000
KMF  = 0x4000000
VMF  = 0x4400000
OF   = 0x5000000
MEMB = 0x6000000
PART = 0x6200000
KVB  = 0x6400000
FLG  = 0x6420000
WS_SIZE = 0x10000000

def srd(a, d, koff, size):
    a(f's_load_dwordx2 s[{d}:{d+1}], s[0:1], {koff}')
def srd_fin(a, d, size):
    a(f's_and_b32 s{d+1}, s{d+1}, 0xffff')
    a(f's_mov_b32 s{d+2}, {size}')
    a(f's_mov_b32 s{d+3}, 0x20000')

def bf16_round(a, v, t):
    a(f'v_cvt_pk_bf16_f32 v{t}, v{v}, v{v}')
    a(f'v_lshlrev_b32 v{v}, 16, v{t}')
def bf16_round2(a, v0, v1, t):
    a(f'v_cvt_pk_bf16_f32 v{t}, v{v0}, v{v1}')
    a(f'v_lshlrev_b32 v{v0}, 16, v{t}')
    a(f'v_and_b32 v{v1}, 0xffff0000, v{t}')

def wave_allreduce(a, v, t, op):
    a(f'{op}_dpp v{v}, v{v}, v{v} quad_perm:[1,0,3,2] row_mask:0xf bank_mask:0xf')
    a(f'{op}_dpp v{v}, v{v}, v{v} quad_perm:[2,3,0,1] row_mask:0xf bank_mask:0xf')
    a(f'{op}_dpp v{v}, v{v}, v{v} row_half_mirror row_mask:0xf bank_mask:0xf')
    a(f'{op}_dpp v{v}, v{v}, v{v} row_mirror row_mask:0xf bank_mask:0xf')
    g_allreduce(a, v, t, op)
def g_allreduce(a, v, t, op):
    a(f'v_mov_b32 v{t}, v{v}')
    a(f'v_permlane16_swap_b32 v{v}, v{t}')
    a(f'{op} v{v}, v{v}, v{t}')
    a(f'v_mov_b32 v{t}, v{v}')
    a(f'v_permlane32_swap_b32 v{v}, v{t}')
    a(f'{op} v{v}, v{v}, v{t}')

kernels = []
launches = []
def finish(label, a, vgpr=512, accum=256):
    a('s_endpgm')
    a.fix_hazards()
    txt = f'.globl {label}\n.p2align 8\n.type {label},@function\n{label}:\n' + a.text()
    kernels.append((label, txt, kd(label, vgpr, accum)))

N_TR = 2304
N_PREP0 = N_TR + 2 + 32 + 32 + 64 + 12
N_PREP = N_PREP0 + 512
def gen_prep():
    L = 'prep_kernel'
    a = Asm()
    a('s_cmp_ge_u32 s2, %d' % N_PREP)
    a('s_cbranch_scc1 prep_end')
    srd(a, 4, 96, 0)
    a('s_load_dwordx4 s[20:23], s[0:1], 0')
    a('s_load_dwordx4 s[24:27], s[0:1], 16')
    a('s_load_dwordx4 s[28:31], s[0:1], 32')
    a('s_load_dwordx4 s[32:35], s[0:1], 64')
    a('s_waitcnt lgkmcnt(0)')
    srd_fin(a, 4, WS_SIZE)
    a('v_and_b32 v1, 63, v0')
    a('v_lshrrev_b32 v2, 6, v0')
    a('s_cmp_ge_u32 s2, %d' % N_PREP0)
    a('s_cbranch_scc1 prep_ln')
    a('s_cmp_ge_u32 s2, %d' % N_TR)
    a('s_cbranch_scc1 prep_init')
    a('s_mov_b32 s11, 0x20000')
    a('s_cmp_ge_u32 s2, 1536')
    a('s_cbranch_scc1 prep_t_wo')
    a('s_lshr_b32 s16, s2, 9')
    a('s_and_b32 s17, s2, 511')
    a('s_and_b32 s18, s17, 7')
    a('s_lshr_b32 s19, s17, 3')
    a('s_mov_b32 s8, s24'); a('s_mov_b32 s9, s25')
    a('s_cmp_eq_u32 s16, 1'); a('s_cselect_b32 s8, s26, s8'); a('s_cselect_b32 s9, s27, s9')
    a('s_cmp_eq_u32 s16, 2'); a('s_cselect_b32 s8, s28, s8'); a('s_cselect_b32 s9, s29, s9')
    a('s_and_b32 s9, s9, 0xffff')
    a('s_mov_b32 s10, 0x400000')
    a('s_mov_b32 s12, 8192')
    a('s_lshl_b32 s13, s18, 19')
    a('s_lshl_b32 s36, s19, 7')
    a('s_add_u32 s13, s13, s36')
    a('s_lshl_b32 s14, s16, 22')
    a('s_lshl_b32 s36, s19, 16')
    a('s_add_u32 s14, s14, s36')
    a('s_lshl_b32 s36, s18, 11')
    a('s_add_u32 s14, s14, s36')
    a('s_add_u32 s14, s14, %d' % WT)
    a('s_mov_b32 s15, 16384')
    a('s_branch prep_tr_plain')
    a.label('prep_t_wo')
    a('s_cmp_ge_u32 s2, 2048')
    a('s_cbranch_scc1 prep_t_bqkv')
    a('s_sub_u32 s17, s2, 1536')
    a('s_and_b32 s18, s17, 63')
    a('s_lshr_b32 s19, s17, 6')
    a('s_mov_b32 s8, s30'); a('s_and_b32 s9, s31, 0xffff'); a('s_mov_b32 s10, 0x400000')
    a('s_mov_b32 s12, 1024')
    a('s_lshl_b32 s13, s18, 16')
    a('s_lshl_b32 s36, s19, 7')
    a('s_add_u32 s13, s13, s36')
    a('s_lshl_b32 s14, s19, 19')
    a('s_lshl_b32 s36, s18, 11')
    a('s_add_u32 s14, s14, s36')
    a('s_add_u32 s14, s14, %d' % WOT)
    a('s_mov_b32 s15, 131072')
    a('s_branch prep_tr_perm')
    a.label('prep_t_bqkv')
    a('s_cmp_ge_u32 s2, 2240')
    a('s_cbranch_scc1 prep_t_bwo')
    a('s_sub_u32 s17, s2, 2048')
    a('s_and_b32 s18, s17, 7')
    a('s_lshr_b32 s19, s17, 3')
    a('s_mov_b32 s8, s32'); a('s_and_b32 s9, s33, 0xffff'); a('s_mov_b32 s10, 0x180000')
    a('s_mov_b32 s12, 3072')
    a('s_mul_i32 s13, s18, %d' % (64*3072))
    a('s_lshl_b32 s36, s19, 7')
    a('s_add_u32 s13, s13, s36')
    a('s_lshl_b32 s14, s19, 16')
    a('s_lshl_b32 s36, s18, 11')
    a('s_add_u32 s14, s14, s36')
    a('s_add_u32 s14, s14, %d' % BQKV)
    a('s_mov_b32 s15, 16384')
    a('s_branch prep_tr_plain')
    a.label('prep_t_bwo')
    a('s_sub_u32 s17, s2, 2240')
    a('s_and_b32 s18, s17, 7')
    a('s_lshr_b32 s19, s17, 3')
    a('s_mov_b32 s8, s34'); a('s_and_b32 s9, s35, 0xffff'); a('s_mov_b32 s10, 0x80000')
    a('s_mov_b32 s12, 1024')
    a('s_lshl_b32 s13, s18, 16')
    a('s_lshl_b32 s36, s19, 7')
    a('s_add_u32 s13, s13, s36')
    a('s_lshl_b32 s14, s19, 16')
    a('s_lshl_b32 s36, s18, 11')
    a('s_add_u32 s14, s14, s36')
    a('s_add_u32 s14, s14, %d' % BWO)
    a('s_mov_b32 s15, 16384')
    a('s_branch prep_tr_perm')
    for perm in (0, 1):
        a.label('prep_tr_perm' if perm else 'prep_tr_plain')
        a('v_lshrrev_b32 v3, 3, v0')
        a('v_and_b32 v4, 7, v0')
        a('v_mul_lo_u32 v5, v3, s12')
        a('v_lshl_add_u32 v5, v4, 4, v5')
        a('s_lshl_b32 s36, s12, 5')
        a('s_add_u32 s36, s36, s13')
        a('buffer_load_dwordx4 v[8:11], v5, s[8:11], s13 offen')
        a('buffer_load_dwordx4 v[12:15], v5, s[8:11], s36 offen')
        a('v_mul_u32_u24 v6, 144, v3')
        a('v_lshl_add_u32 v6, v4, 4, v6')
        a('s_waitcnt vmcnt(1)')
        a('ds_write_b128 v6, v[8:11]')
        a('s_waitcnt vmcnt(0)')
        a('ds_write_b128 v6, v[12:15] offset:%d' % (32*144))
        a('s_waitcnt lgkmcnt(0)')
        a('s_barrier')
        for i in range(2):
            a('v_add_u32 v16, %d, v2' % (4*i))
            if perm:
                a('v_lshrrev_b32 v17, 2, v16')
                a('v_and_b32 v18, 3, v16')
                a('v_lshlrev_b32 v17, 5, v17')
                a('v_lshl_add_u32 v17, v18, 2, v17')
                hi = 16
            else:
                a('v_lshlrev_b32 v17, 3, v16')
                hi = 4
            a('v_mul_u32_u24 v17, 144, v17')
            a('v_lshl_add_u32 v17, v1, 1, v17')
            for j in range(8):
                row = j if j < 4 else hi + j - 4
                a('ds_read_u16 v%d, v17 offset:%d' % (24 + j, row*144))
            a('v_lshrrev_b32 v19, 4, v1')
            a('v_mul_lo_u32 v19, v19, s15')
            a('v_lshrrev_b32 v18, 2, v16')
            a('v_lshl_add_u32 v19, v18, 10, v19')
            a('v_and_b32 v18, 3, v16')
            a('v_lshl_add_u32 v19, v18, 8, v19')
            a('v_and_b32 v18, 15, v1')
            a('v_lshl_add_u32 v19, v18, 4, v19')
            a('s_waitcnt lgkmcnt(0)')
            for j in range(4):
                a('v_lshl_or_b32 v%d, v%d, 16, v%d' % (20 + j, 25 + 2*j, 24 + 2*j))
            a('buffer_store_dwordx4 v[20:23], v19, s[4:7], s14 offen')
            a('s_nop 1')
        a('s_branch prep_end')
    a.label('prep_init')
    a('s_sub_u32 s17, s2, %d' % N_TR)
    a('s_cmp_ge_u32 s17, 2')
    a('s_cbranch_scc1 prep_fill')
    a('s_mov_b32 s8, s22'); a('s_and_b32 s9, s23, 0xffff'); a('s_mov_b32 s10, 8192'); a('s_mov_b32 s11, 0x20000')
    a('s_lshl_b32 s14, s17, 20')
    a('s_add_u32 s14, s14, %d' % MEMB)
    for i in range(2):
        a('v_add_u32 v3, %d, v0' % (256*i))
        a('v_lshrrev_b32 v4, 5, v3')
        a('v_bfe_u32 v5, v3, 3, 2')
        a('v_and_b32 v6, 7, v3')
        a('v_lshlrev_b32 v7, 10, v6')
        a('v_lshl_add_u32 v7, v4, 6, v7')
        a('v_lshl_add_u32 v7, v5, 4, v7')
        a('buffer_load_dwordx4 v[8:11], v7, s[8:11], 0 offen')
        a('v_lshlrev_b32 v12, 4, v3')
        a('s_waitcnt vmcnt(0)')
        a('buffer_store_dwordx4 v[8:11], v12, s[4:7], s14 offen')
        a('s_nop 1')
    a('s_branch prep_end')
    a.label('prep_fill')
    a('s_sub_u32 s17, s17, 2')
    a('s_mov_b32 s18, -1')
    a('s_mov_b32 s14, %d' % (MEMB + 8192))
    a('s_cmp_ge_u32 s17, 32')
    a('s_cselect_b32 s14, %d, s14' % (MEMB + 0x100000 + 8192 - 32*16384))
    a('s_cmp_ge_u32 s17, 64')
    a('s_cselect_b32 s14, %d, s14' % (PART - 64*16384))
    a('s_cmp_ge_u32 s17, 128')
    a('s_cselect_b32 s14, %d, s14' % (KVB - 128*16384))
    a('s_cselect_b32 s18, 0, s18')
    a('s_lshl_b32 s19, s17, 14')
    a('s_add_u32 s14, s14, s19')
    a('v_mov_b32 v8, s18'); a('v_mov_b32 v9, s18'); a('v_mov_b32 v10, s18'); a('v_mov_b32 v11, s18')
    a('v_lshlrev_b32 v3, 4, v0')
    for i in range(4):
        a('buffer_store_dwordx4 v[8:11], v3, s[4:7], s14 offen offset:%d' % 0 if i == 0 else
          'buffer_store_dwordx4 v[8:11], v3, s[4:7], s14 offen')
        if i < 3: a('s_add_u32 s14, s14, 4096')
    a('s_branch prep_end')
    a.label('prep_ln')
    a('s_sub_u32 s17, s2, %d' % N_PREP0)
    a('s_mov_b32 s8, s20'); a('s_and_b32 s9, s21, 0xffff'); a('s_mov_b32 s10, 0x200000'); a('s_mov_b32 s11, 0x20000')
    a('s_lshl_b32 s12, s17, 12')
    a('v_lshlrev_b32 v1, 4, v0')
    a('buffer_load_dwordx4 v[4:7], v1, s[8:11], s12 offen')
    a(f's_add_u32 s13, s12, {XS0}')
    a('s_waitcnt vmcnt(0)')
    a('buffer_store_dwordx4 v[4:7], v1, s[4:7], s13 offen')
    ln_core(a, 24)
    a('v_lshrrev_b32 v22, 6, v0')
    a('s_lshl_b32 s13, s17, 2')
    a('v_add_u32 v22, s13, v22')
    a('v_lshrrev_b32 v23, 4, v22')
    a('v_lshlrev_b32 v23, 14, v23')
    a('v_and_b32 v22, 15, v22')
    a('v_lshl_add_u32 v23, v22, 4, v23')
    a('v_bfe_u32 v22, v0, 2, 4')
    a('v_lshl_add_u32 v23, v22, 10, v23')
    a('v_and_b32 v22, 3, v0')
    a('v_lshl_add_u32 v23, v22, 8, v23')
    a(f's_mov_b32 s13, {XN}')
    a('buffer_store_dwordx4 v[24:27], v23, s[4:7], s13 offen')
    a.label('prep_end')
    finish(L, a, vgpr=32, accum=32)
    launches.append((L, N_PREP, 256, 64*144))

def ln_core(a, dreg):
    for i in range(4):
        a(f'v_lshlrev_b32 v{8+2*i}, 16, v{4+i}')
        a(f'v_and_b32 v{9+2*i}, 0xffff0000, v{4+i}')
    a('v_add_f32 v16, v8, v9')
    for i in range(2, 8): a(f'v_add_f32 v16, v16, v{8+i}')
    wave_allreduce(a, 16, 17, 'v_add_f32')
    a('v_mul_f32 v16, 0x3b000000, v16')
    a('v_mov_b32 v18, 0')
    for i in range(8):
        a(f'v_sub_f32 v17, v{8+i}, v16')
        a('v_fmac_f32 v18, v17, v17')
    wave_allreduce(a, 18, 17, 'v_add_f32')
    a('v_mul_f32 v18, 0x3b000000, v18')
    bf16_round(a, 18, 17)
    a('v_add_f32 v18, 0x3727c5ac, v18')
    bf16_round(a, 18, 17)
    a('v_sqrt_f32 v18, v18')
    bf16_round(a, 18, 17)
    bf16_round(a, 16, 17)
    a('v_rcp_f32 v19, v18')
    for i in range(0, 8, 2):
        a(f'v_sub_f32 v{8+i}, v{8+i}, v16')
        a(f'v_sub_f32 v{9+i}, v{9+i}, v16')
        bf16_round2(a, 8+i, 9+i, 17)
        for k in (8+i, 9+i):
            a(f'v_mul_f32 v20, v{k}, v19')
            a(f'v_fma_f32 v21, -v20, v18, v{k}')
            a(f'v_fma_f32 v{k}, v21, v19, v20')
        a(f'v_cvt_pk_bf16_f32 v{dreg+i//2}, v{8+i}, v{9+i}')

def body_lnb(a):
    a('v_and_b32 v1, 63, v0')
    a('v_lshlrev_b32 v2, 4, v1')
    a('s_lshl_b32 s46, s40, 14')
    a('s_lshl_b32 s47, s14, 12')
    a('s_add_u32 s46, s46, s47')
    a('s_lshl_b32 s47, s89, 22')
    a('s_add_u32 s46, s46, s47')
    a(f's_add_u32 s46, s46, {X1}')
    for r in range(4): a(f'buffer_load_dwordx4 v[{32+4*r}:{32+4*r+3}], v2, s[4:7], s46 offen offset:{r*1024} sc1')
    a('v_lshrrev_b32 v22, 2, v1')
    a('v_lshlrev_b32 v23, 10, v22')
    a('v_and_b32 v22, 3, v1')
    a('v_lshl_add_u32 v23, v22, 8, v23')
    a('s_lshl_b32 s46, s40, 14')
    a('s_lshl_b32 s47, s14, 6')
    a('s_add_u32 s46, s46, s47')
    a('s_add_u32 s46, s46, s88')
    a(f's_add_u32 s46, s46, {XNB}')
    for r in range(4):
        a('s_waitcnt vmcnt(3)')
        for i in range(4): a(f'v_mov_b32 v{4+i}, v{32+4*r+i}')
        ln_core(a, 48+4*r)
        a(f'buffer_store_dwordx4 v[{48+4*r}:{48+4*r+3}], v23, s[4:7], s46 offen offset:{r*16} sc1')

def gemm_loop(a, streams, nks, mfmas, bufs):
    L = a.uid('gl')
    n = len(streams); D = len(bufs)
    assert nks % D == 0
    def R(b):
        k, base = bufs[b]
        return lambda i: f'{k}[{base+4*i}:{base+4*i+3}]'
    def loads(b, off):
        sr = 's98'
        if off > 4095: sr = 's99'; off -= 4096
        for i, (va, sfx) in enumerate(streams):
            a(f'buffer_load_dwordx4 {R(b)(i)}, v{va}, s[4:7], {sr} offen offset:{off} {sfx}')
    a('s_mov_b32 s98, 0')
    a('s_mov_b32 s99, 4096')
    for j in range(D-1): loads(j, j*1024)
    a.label(L)
    for j in range(D):
        loads((j+D-1) % D, (j+D-1)*1024)
        a(f's_waitcnt vmcnt({(D-1)*n})')
        for m in mfmas(R(j)): a(m)
    a(f's_add_u32 s98, s98, {D*1024}')
    a(f's_add_u32 s99, s99, {D*1024}')
    a(f's_cmp_lt_u32 s98, {nks*1024}')
    a(f's_cbranch_scc1 {L}')
    a('s_waitcnt vmcnt(0)')

def body_t1(a, sfx, deep=False, wait_fn=None):
    a('s_lshr_b32 s41, s40, 5')
    a('s_and_b32 s42, s40, 31')
    a('v_and_b32 v1, 63, v0')
    a('v_lshrrev_b32 v2, 6, v0')
    a('v_readfirstlane_b32 s43, v2')
    a('s_lshr_b32 s44, s43, 1')
    a('s_and_b32 s45, s43, 1')
    a('v_lshlrev_b32 v3, 4, v1')
    a('s_lshl_b32 s46, s41, 17')
    a('s_lshl_b32 s47, s44, 16')
    a('s_add_u32 s46, s46, s47')
    a(f's_add_u32 s46, s46, {XN}')
    a('s_add_u32 s46, s46, s88')
    if wait_fn: wait_fn(a)
    for t in range(4):
        a(f'v_add_u32 v{4+t}, s46, v3')
        if t < 3: a('s_add_u32 s46, s46, 16384')
    a('s_lshl_b32 s46, s42, 17')
    a('s_lshl_b32 s47, s45, 16')
    a('s_add_u32 s46, s46, s47')
    a(f's_add_u32 s46, s46, {WT + 256*16384}')
    for t in range(4):
        a(f'v_add_u32 v{8+t}, s46, v3')
        a(f'v_add_u32 v{12+t}, {256*16384}, v{8+t}')
        if t < 3: a('s_add_u32 s46, s46, 16384')
    ACK = 128; ACV = 192
    for r in range(128, 256): a(f'v_mov_b32 v{r}, 0')
    def mf(f):
        o = []
        for et in range(4):
            for tt in range(4):
                d = ACK + (et*4+tt)*4
                o.append(f'v_mfma_f32_16x16x32_bf16 v[{d}:{d+3}], {f(4+et)}, {f(tt)}, v[{d}:{d+3}]')
        for tt in range(4):
            for et in range(4):
                d = ACV + (tt*4+et)*4
                o.append(f'v_mfma_f32_16x16x32_bf16 v[{d}:{d+3}], {f(tt)}, {f(8+et)}, v[{d}:{d+3}]')
        return o
    gemm_loop(a, [(4+i, 'sc1' if i < 4 else '') for i in range(12)], 16, mf, [('v',16), ('v',64)] + ([('a',0), ('a',48)] if deep else []))
    a('s_lshl_b32 s46, s42, 19')
    a('s_lshl_b32 s47, s41, 15')
    a('s_add_u32 s46, s46, s47')
    a('s_lshl_b32 s47, s44, 14')
    a('s_add_u32 s46, s46, s47')
    a('s_lshl_b32 s47, s45, 11')
    a('s_add_u32 s46, s46, s47')
    a(f's_add_u32 s46, s46, {KF}')
    a('s_add_u32 s46, s46, s88')
    k = 0
    for tt in range(4):
        if tt: a('s_add_u32 s46, s46, 4096')
        for mm in range(2):
            o = 16 + 4*(k % 8); k += 1
            d0 = ACK + ((2*mm)*4+tt)*4; d1 = ACK + ((2*mm+1)*4+tt)*4
            a(f'v_cvt_pk_bf16_f32 v{o}, v{d0}, v{d0+1}')
            a(f'v_cvt_pk_bf16_f32 v{o+1}, v{d0+2}, v{d0+3}')
            a(f'v_cvt_pk_bf16_f32 v{o+2}, v{d1}, v{d1+1}')
            a(f'v_cvt_pk_bf16_f32 v{o+3}, v{d1+2}, v{d1+3}')
            a(f'buffer_store_dwordx4 v[{o}:{o+3}], v3, s[4:7], s46 offen offset:{mm*1024} {sfx}')
    a('v_and_b32 v5, 15, v1')
    a('v_lshrrev_b32 v6, 4, v1')
    a('v_lshlrev_b32 v7, 6, v5')
    a('v_lshl_add_u32 v7, v6, 4, v7')
    a('s_lshl_b32 s46, s42, 19')
    a('s_lshl_b32 s47, s41, 15')
    a('s_add_u32 s46, s46, s47')
    a('s_lshl_b32 s47, s44, 14')
    a('s_add_u32 s46, s46, s47')
    a('s_lshl_b32 s47, s45, 12')
    a('s_add_u32 s46, s46, s47')
    a(f's_add_u32 s46, s46, {VF}')
    a('s_add_u32 s46, s46, s88')
    for sg in range(2):
        if sg: a('s_add_u32 s46, s46, 8192')
        for et in range(4):
            o = 48 + 4*(k % 8); k += 1
            d0 = ACV + ((2*sg)*4+et)*4; d1 = ACV + ((2*sg+1)*4+et)*4
            a(f'v_cvt_pk_bf16_f32 v{o}, v{d0}, v{d0+1}')
            a(f'v_cvt_pk_bf16_f32 v{o+1}, v{d0+2}, v{d0+3}')
            a(f'v_cvt_pk_bf16_f32 v{o+2}, v{d1}, v{d1+1}')
            a(f'v_cvt_pk_bf16_f32 v{o+3}, v{d1+2}, v{d1+3}')
            a(f'buffer_store_dwordx4 v[{o}:{o+3}], v7, s[4:7], s46 offen offset:{et*1024} {sfx}')

def gen_t1(L):
    a = Asm()
    a('s_cmp_ge_u32 s2, 512')
    a(f's_cbranch_scc1 {L}_end')
    srd(a, 4, 96, 0)
    a('s_waitcnt lgkmcnt(0)')
    srd_fin(a, 4, WS_SIZE)
    a('s_mov_b32 s40, s2')
    body_t1(a, '')
    a.label(f'{L}_end')
    finish(L, a, vgpr=256, accum=256)
    launches.append((L, 512, 256, 0))


LDS_SC = 131072
LDS_OB = LDS_SC + 6144
LDS_MS = LDS_OB + 2048
LDS_PF = LDS_MS + 8192
LDS_ROLE = LDS_SC
LDS_REC = LDS_PF + 16384
SPIN_MAX = 1 << 20

def interleave(a, mf, va, per=3):
    i = 0
    for m in mf:
        a(m)
        for _ in range(per):
            if i < len(va): a(va[i]); i += 1
    while i < len(va): a(va[i]); i += 1

def role_select(a, L):
    a('v_lshrrev_b32 v1, 6, v0')
    a('v_readfirstlane_b32 s14, v1')
    a('s_cmp_lg_u32 s14, 0')
    a(f's_cbranch_scc1 {L}_role_wait')
    a('s_getreg_b32 s26, hwreg(HW_REG_XCC_ID)')
    a('s_and_b32 s26, s26, 7')
    a('s_mov_b64 s[28:29], exec')
    a('s_mov_b64 exec, 1')
    a('s_lshl_b32 s27, s26, 2')
    a('v_mov_b32 v2, s27')
    a('v_mov_b32 v3, 1')
    a('buffer_atomic_add v3, v2, s[8:11], 0 offen sc0')
    a('s_waitcnt vmcnt(0)')
    a('v_readfirstlane_b32 s27, v3')
    a('s_mov_b32 s12, -1')
    a('s_cmp_ge_u32 s27, 32')
    a(f's_cbranch_scc1 {L}_role_done')
    a('v_mov_b32 v2, 32')
    a('s_add_u32 s26, s26, 1')
    a('s_cmp_lg_u32 s27, 31')
    a(f's_cbranch_scc1 {L}_role_poll0')
    a('v_mov_b32 v4, s26')
    a('v_mov_b32 v5, 0')
    a('buffer_atomic_cmpswap v[4:5], v2, s[8:11], 0 offen sc0')
    a('s_waitcnt vmcnt(0)')
    a.label(f'{L}_role_poll0')
    a('s_mov_b32 s36, 0')
    a.label(f'{L}_role_poll')
    a('buffer_load_dword v3, v2, s[8:11], 0 offen sc1')
    a('s_waitcnt vmcnt(0)')
    a('v_readfirstlane_b32 s37, v3')
    a('s_cmp_lg_u32 s37, 0')
    a(f's_cbranch_scc1 {L}_role_dec')
    a('s_sleep 4')
    a('s_add_u32 s36, s36, 1')
    a('s_cmp_lt_u32 s36, 4000')
    a(f's_cbranch_scc1 {L}_role_poll')
    a('v_mov_b32 v4, 100')
    a('v_mov_b32 v5, 0')
    a('buffer_atomic_cmpswap v[4:5], v2, s[8:11], 0 offen sc0')
    a('s_waitcnt vmcnt(0)')
    a(f's_branch {L}_role_poll0')
    a.label(f'{L}_role_dec')
    a('s_cmp_eq_u32 s37, s26')
    a('s_cselect_b32 s12, s27, s12')
    a('s_cmp_lg_u32 s37, 100')
    a(f's_cbranch_scc1 {L}_role_done')
    a('v_mov_b32 v2, 36')
    a('v_mov_b32 v3, 1')
    a('buffer_atomic_add v3, v2, s[8:11], 0 offen sc0')
    a('s_waitcnt vmcnt(0)')
    a('v_readfirstlane_b32 s27, v3')
    a('s_or_b32 s26, s27, 256')
    a('s_cmp_lt_u32 s27, 32')
    a('s_cselect_b32 s12, s26, s12')
    a.label(f'{L}_role_done')
    a('v_mov_b32 v2, %d' % LDS_ROLE)
    a('v_mov_b32 v3, s12')
    a('ds_write_b32 v2, v3')
    a('s_waitcnt lgkmcnt(0)')
    a('s_mov_b64 exec, s[28:29]')
    a.label(f'{L}_role_wait')
    a('s_barrier')
    a('v_mov_b32 v2, %d' % LDS_ROLE)
    a('ds_read_b32 v3, v2')
    a('s_waitcnt lgkmcnt(0)')
    a('v_readfirstlane_b32 s12, v3')

PROF = int(os.environ.get('PROF', '0'))
def stamp(a, i):
    if not PROF: return
    a('s_memtime s[50:51]')
    a('s_waitcnt lgkmcnt(0)')
    if i > 0:
        a('s_sub_u32 s52, s50, s53')
        a(f's_add_u32 s{60+i}, s{60+i}, s52')
    a('s_mov_b32 s53, s50')

def body_rec(a, L, layer, xs, merged=False):
    OOB = '0x7fffff00'
    a('s_lshr_b32 s13, s12, 8')
    a('s_and_b32 s12, s12, 31')
    a('v_and_b32 v0, 63, v0')
    a('v_and_b32 v12, 15, v0')
    a('v_lshrrev_b32 v13, 4, v0')
    a('v_and_b32 v14, 7, v0')
    a('v_cmp_gt_u32 s[30:31], 8, v12')
    a('v_cmp_gt_u32 s[32:33], 8, v0')
    a('v_cmp_gt_u32 s[34:35], 32, v0')
    a(f'v_mov_b32 v16, {OOB}')
    a('v_lshlrev_b32 v1, 7, v13')
    a('v_lshl_add_u32 v1, v14, 4, v1')
    a('s_lshl_b32 s26, s14, 10')
    a('v_lshlrev_b32 v2, 4, v0')
    a('v_add_u32 v2, s26, v2')
    a('s_lshl_b32 s26, s14, 11')
    a('v_lshlrev_b32 v3, 6, v12')
    a('v_lshl_add_u32 v3, v13, 4, v3')
    a('v_add_u32 v3, s26, v3')
    a('v_lshlrev_b32 v4, 6, v12')
    a('v_lshl_add_u32 v4, v13, 4, v4')
    a('v_cndmask_b32 v4, v16, v4, s[30:31]')
    a('s_lshl_b32 s26, s14, 7')
    a('v_lshrrev_b32 v5, 3, v0')
    a('v_lshlrev_b32 v5, 9, v5')
    a('v_lshl_add_u32 v5, v14, 4, v5')
    a('v_add_u32 v5, s26, v5')
    a('v_bfe_u32 v15, v0, 1, 1')
    a('v_lshlrev_b32 v6, 7, v15')
    a('v_bfe_u32 v15, v0, 2, 1')
    a('v_lshl_add_u32 v6, v15, 4, v6')
    a('v_and_b32 v15, 1, v0')
    a('v_lshl_add_u32 v6, v15, 3, v6')
    a('v_lshl_add_u32 v6, v13, 2, v6')
    a('s_lshl_b32 s26, s14, 5')
    a('v_add_u32 v6, s26, v6')
    a('s_and_b64 s[32:33], s[30:31], s[34:35]')
    a('v_cndmask_b32 v6, v16, v6, s[32:33]')
    a('s_lshl_b32 s26, s14, 9')
    a('v_add_u32 v7, s26, v1')
    a('v_cndmask_b32 v7, v16, v7, s[30:31]')
    a('s_lshl_b32 s26, s14, 9')
    a('v_lshlrev_b32 v8, 4, v12')
    a('v_lshl_add_u32 v8, v13, 3, v8')
    a('v_add_u32 v8, s26, v8')
    a('v_cndmask_b32 v8, v16, v8, s[34:35]')
    a('v_lshlrev_b32 v9, 4, v0')
    a('s_lshl_b32 s26, s14, 15')
    a('v_add_u32 v10, s26, v9')
    a('s_lshl_b32 s26, s12, 17')
    a('s_lshl_b32 s27, s14, 15')
    a('s_add_u32 s26, s26, s27')
    a(f's_add_u32 s26, s26, {WT}')
    def wreg(which, et, ks):
        i = (et*16 + ks)*4
        if which == 0: return f'a[{i}:{i+3}]'
        if which == 1: return f'a[{128+i}:{128+i+3}]'
        return f'v[{128+i}:{128+i+3}]'
    for which in range(3):
        for et in range(2):
            for ks in range(16):
                if ks % 4 == 0: a(f's_add_u32 s27, s26, {which*256*16384 + et*16384 + ks*1024}')
                a(f'buffer_load_dwordx4 {wreg(which, et, ks)}, v9, s[4:7], s27 offen offset:{(ks%4)*1024}')
    a('s_lshl_b32 s26, s14, 20')
    a('s_lshl_b32 s27, s12, 12')
    a('s_add_u32 s26, s26, s27')
    a(f's_add_u32 s26, s26, {WOT}')
    a('s_lshl_b32 s27, s14, 15')
    for dt in range(8):
        a('s_mov_b32 m0, s27')
        for m in range(4):
            a(f'buffer_load_dwordx4 v9, s[4:7], s26 offen offset:{m*1024} lds')
        a('s_add_u32 s26, s26, 131072')
        a('s_add_u32 s27, s27, 4096')
    a(f'v_add_u32 v11, {LDS_PF}, v9')
    a('s_lshl_b32 s26, s14, 9')
    a(f'v_add_u32 v12, {LDS_SC}, v1')
    a('v_add_u32 v13, s26, v12')
    a(f'v_add_u32 v14, {LDS_OB}, v1')
    a('v_add_u32 v15, s26, v14')
    a(f'v_add_u32 v17, {LDS_MS}, v9')
    a('v_cndmask_b32 v15, v17, v15, s[30:31]')
    a('s_lshl_b32 s26, s14, 11')
    a('v_add_u32 v17, s26, v9')
    a(f'v_add_u32 v18, {LDS_MS}, v17')
    a(f'v_add_u32 v1, {LDS_MS}, v1')
    a('v_mov_b32 v9, v17')
    a('v_mov_b32 v0, v18')
    a('s_mov_b32 s89, 0')
    a('s_mov_b32 s88, 0')
    a.label(f'{L}_layer')
    a('s_lshl_b32 s16, s89, 20')
    a(f's_add_u32 s16, s16, {MEMB}')
    a('s_add_u32 s17, s16, 4096')
    a('s_lshr_b32 s26, s12, 1')
    a('s_lshl_b32 s26, s26, 9')
    a('s_and_b32 s27, s12, 1')
    a('s_lshl_b32 s27, s27, 8')
    a('s_add_u32 s18, s26, s27')
    a('s_add_u32 s18, s18, s16')
    a('s_add_u32 s18, s18, 8192')
    a('s_lshl_b32 s26, s12, 19')
    a('s_add_u32 s26, s26, s88')
    a(f's_add_u32 s19, s26, {KF}')
    a('s_add_u32 s20, s19, 4096')
    a(f's_add_u32 s21, s26, {VF}')
    a('s_lshl_b32 s26, s12, 9')
    a('s_lshl_b32 s27, s14, 17')
    a('s_add_u32 s22, s26, s27')
    a(f's_add_u32 s22, s22, {PART}')
    a('s_lshl_b32 s26, s12, 14')
    a(f's_add_u32 s23, s26, {PART}')
    a('s_lshl_b32 s26, s12, 17')
    a('s_add_u32 s26, s26, s88')
    a(f's_add_u32 s24, s26, {KMF}')
    a(f's_add_u32 s25, s26, {VMF}')
    a('s_mov_b32 s15, 0')
    a('s_lshl_b32 s38, s14, 11')
    a(f's_add_u32 s38, s38, {LDS_PF}')
    a('s_add_u32 s39, s38, 1024')
    def prefetch():
        o = ['s_mov_b32 m0, s38', f'buffer_load_dwordx4 v2, s[4:7], s19 offen {xs} lds',
             's_mov_b32 m0, s39', f'buffer_load_dwordx4 v2, s[4:7], s20 offen {xs} lds',
             's_add_u32 s19, s19, 8192', 's_add_u32 s20, s20, 8192',
             's_xor_b32 s38, s38, 0x2000', 's_xor_b32 s39, s39, 0x2000']
        return o
    a('s_mov_b32 s41, 0')
    a('s_lshl_b32 s42, s89, 12')
    a(f's_add_u32 s42, s42, {FLG}')
    a('s_lshl_b32 s43, s12, 2')
    a('s_add_u32 s43, s43, s42')
    a('s_add_u32 s43, s43, 512')
    def kvwait(LL, rbreg):
        LL2 = a.uid('kvw')
        a('s_cmp_lg_u32 s41, 0')
        a(f's_cbranch_scc1 {LL2}_ok')
        a('s_mov_b32 s46, 0')
        a.label(f'{LL2}_p')
        a(f's_lshl_b32 s44, {rbreg}, 2')
        a('v_mov_b32 v50, s44')
        a('v_mov_b32 v51, 128')
        a('buffer_load_dword v50, v50, s[4:7], s42 offen sc1')
        a('buffer_load_dword v51, v51, s[4:7], s42 offen sc1')
        a('s_waitcnt vmcnt(0)')
        a('v_readfirstlane_b32 s44, v50')
        a('v_readfirstlane_b32 s45, v51')
        a('s_cmp_ge_u32 s45, 512')
        a('s_cselect_b32 s41, 1, 0')
        a('s_cmp_ge_u32 s44, 32')
        a(f's_cbranch_scc1 {LL2}_ok')
        a('s_sleep 2')
        a('s_add_u32 s46, s46, 1')
        a(f's_cmp_le_u32 s46, {SPIN_MAX*4}')
        a(f's_cbranch_scc1 {LL2}_p')
        a.label(f'{LL2}_ok')
    if merged:
        a('s_mov_b32 s47, 0')
        kvwait(L, 's47')
    for x in prefetch(): a(x)
    a('s_waitcnt vmcnt(0)')
    a('s_barrier')
    if PROF:
        for i in range(60, 70): a(f's_mov_b32 s{i}, 0')
        a('s_memrealtime s[92:93]')
        a('s_waitcnt lgkmcnt(0)')
    a('s_xor_b32 s29, s23, 0x80000')
    a('s_add_u32 s26, s29, 4096'); a('s_add_u32 s27, s29, 8192'); a('s_add_u32 s28, s29, 12288')
    a('s_cmp_lg_u32 s13, 0')
    a(f's_cbranch_scc1 {L}_s_step')
    for mode in ('f', 's'):
        rec_loop(a, f'{L}_{mode}', 'sc1' if mode == 's' else '', xs, wreg, prefetch, kvwait if merged else None)
        if mode == 'f': a(f's_branch {L}_recdone')
    a.label(f'{L}_recdone')
    for i in range(4): a(f'v_mov_b32 v{92+i}, -1')
    for sr in ('s29', 's26', 's27', 's28'): a(f'buffer_store_dwordx4 v[92:95], v5, s[4:7], {sr} offen sc1')
    if merged:
        a('s_waitcnt vmcnt(0)')
        a('s_barrier')
        a('s_cmp_lg_u32 s14, 0')
        a(f's_cbranch_scc1 {L}_nopub')
        a('v_mov_b32 v56, 64')
        a('v_mov_b32 v57, 0')
        a('buffer_store_dword v56, v57, s[4:7], s43 offen sc1')
        a.label(f'{L}_nopub')
        if PROF:
            a('s_memrealtime s[94:95]')
            a('s_waitcnt lgkmcnt(0)')
            a('s_lshl_b32 s95, s89, 5')
            a('s_add_u32 s95, s95, 216')
            a('s_mov_b64 exec, 1')
            a('v_mov_b32 v20, s92')
            a('v_mov_b32 v21, s94')
            a('v_mov_b32 v22, s95')
            a('buffer_store_dwordx2 v[20:21], v22, s[8:11], 0 offen')
            a('s_mov_b64 exec, -1')
        a('s_add_u32 s89, s89, 1')
        a(f's_add_u32 s88, s88, {LSTR}')
        a('s_cmp_lt_u32 s89, 2')
        a(f's_cbranch_scc1 {L}_layer')
    if PROF:
        a('s_memrealtime s[94:95]')
        a('s_waitcnt lgkmcnt(0)')
        a('s_sub_u32 s92, s92, s90')
        a('s_sub_u32 s94, s94, s90')
        a('s_mov_b64 exec, 1')
        a('v_mov_b32 v20, s92')
        a('v_mov_b32 v21, s94')
        a('v_mov_b32 v22, 44')
        a('buffer_store_dwordx2 v[20:21], v22, s[8:11], 0 offen')
        a('s_mov_b64 exec, -1')
        a('s_cmp_lg_u32 s12, 5')
        a(f's_cbranch_scc1 {L}_pf')
        a('s_mul_i32 s26, s14, 0')
        a('s_add_u32 s26, s26, 60')
        a('s_mov_b64 exec, 1')
        for i in range(1, 10):
            a(f'v_mov_b32 v20, s{60+i}')
            a(f'v_mov_b32 v21, {4*i}')
            a('buffer_store_dword v20, v21, s[8:11], s26 offen')
        a('s_mov_b64 exec, -1')
        a.label(f'{L}_pf')

def rec_loop(a, L, rs, xs, wreg, prefetch, kvwait):
    a.label(f'{L}_step')
    stamp(a, 0)
    a('s_mov_b32 s36, 0')
    a.label(f'{L}_gpoll')
    a('buffer_load_dwordx4 v[64:67], v9, s[4:7], s16 offen sc1')
    a('buffer_load_dwordx4 v[68:71], v9, s[4:7], s16 offen offset:1024 sc1')
    a('s_waitcnt vmcnt(0)')
    a('v_max3_u32 v56, v64, v65, v66')
    a('v_max3_u32 v56, v56, v67, v68')
    a('v_max3_u32 v56, v56, v69, v70')
    a('v_max_u32 v56, v56, v71')
    a('v_cmp_eq_u32 vcc, -1, v56')
    a(f's_cbranch_vccz {L}_gok')
    a('s_add_u32 s36, s36, 1')
    a(f's_cmp_le_u32 s36, {SPIN_MAX}')
    a(f's_cbranch_scc1 {L}_gpoll')
    a.label(f'{L}_gok')
    a('ds_write_b128 v0, v[64:67]')
    a('ds_write_b128 v0, v[68:71] offset:1024')
    for i in range(4): a(f'v_mov_b32 v{92+i}, -1')
    for sr in ('s29', 's26', 's27', 's28'): a(f'buffer_store_dwordx4 v[92:95], v5, s[4:7], {sr} offen {rs}')
    if PROF: a('s_add_u32 s69, s69, s36')
    a('s_waitcnt lgkmcnt(0)')
    a('s_barrier')
    stamp(a, 7)
    for k in range(16): a(f'ds_read_b128 v[{64+4*k}:{64+4*k+3}], v1 offset:{k*512}')
    def proj(which, dbase):
        o = []
        for ks in range(16):
            mf = f'v[{64+4*ks}:{64+4*ks+3}]'
            for et in range(2):
                d = dbase + et*4
                c = '0' if ks == 0 else f'v[{d}:{d+3}]'
                if which < 2: o.append(f'v_mfma_f32_16x16x32_bf16 v[{d}:{d+3}], {wreg(which, et, ks)}, {mf}, {c}')
                else: o.append(f'v_mfma_f32_16x16x32_bf16 v[{d}:{d+3}], {mf}, {wreg(2, et, ks)}, {c}')
        return o
    qm = proj(0, 32)
    fill = [f'buffer_load_dwordx4 v[24:27], v3, s[4:7], s21 offen {xs}',
            f'buffer_load_dwordx4 v[28:31], v3, s[4:7], s21 offen offset:1024 {xs}',
            's_add_u32 s21, s21, 8192']
    for ks in range(16):
        a(f's_waitcnt lgkmcnt({15-ks})')
        a(qm[2*ks]); a(qm[2*ks+1])
        if ks >= 2 and fill: a(fill.pop(0))
    km = proj(1, 40)
    ki = 0
    def K(n):
        nonlocal ki
        for _ in range(n):
            a(km[ki]); ki += 1
    K(4)
    stamp(a, 1)
    for i in range(4): a(f'v_cvt_pk_bf16_f32 v{56+i}, v{32+2*i}, v{33+2*i}')
    a('ds_write_b128 v13, v[56:59]')
    K(2)
    if kvwait:
        a('s_and_b32 s44, s15, 3')
        a('s_cmp_lg_u32 s44, 0')
        a(f's_cbranch_scc1 {L}_np')
        a('s_cmp_lg_u32 s14, 0')
        a(f's_cbranch_scc1 {L}_np')
        a('v_mov_b32 v48, s15')
        a('v_mov_b32 v49, 0')
        a('buffer_store_dword v48, v49, s[4:7], s43 offen sc1')
        a.label(f'{L}_np')
        a('s_cmp_lg_u32 s44, 3')
        a(f's_cbranch_scc1 {L}_nk')
        a('s_add_u32 s47, s15, 1')
        a('s_lshr_b32 s47, s47, 2')
        a('s_min_u32 s47, s47, 15')
        kvwait(L, 's47')
        a.label(f'{L}_nk')
    pf = prefetch()
    for i in range(0, 8, 2):
        a(pf[i]); a(pf[i+1]); K(1)
    a('s_waitcnt lgkmcnt(0)')
    a('s_barrier')
    QF = [16, 20, 56, 60]
    for m in range(4): a(f'ds_read_b128 v[{QF[m]}:{QF[m]+3}], v12 offset:{m*512}')
    for m in range(4):
        a(f'ds_read_b128 v[48:51], v11 offset:{m*2048}')
        a(f'ds_read_b128 v[52:55], v11 offset:{m*2048+1024}')
        K(5 if m < 3 else 4)
        a('s_waitcnt lgkmcnt(0)')
        c0 = '0' if m == 0 else 'v[32:35]'; c1 = '0' if m == 0 else 'v[36:39]'
        a(f'v_mfma_f32_16x16x32_bf16 v[32:35], v[48:51], v[{QF[m]}:{QF[m]+3}], {c0}')
        a(f'v_mfma_f32_16x16x32_bf16 v[36:39], v[52:55], v[{QF[m]}:{QF[m]+3}], {c1}')
    K(32 - ki)
    a('v_xor_b32 v11, 0x2000, v11')
    stamp(a, 8)
    vm = proj(2, 40)
    a('s_nop 4')
    for i in range(4): a(f'v_cvt_pk_bf16_f32 v{48+i}, v{40+2*i}, v{41+2*i}')
    a('ds_write_b128 v13, v[48:51] offset:2048')
    a(f'buffer_store_dwordx4 v[48:51], v7, s[4:7], s24 offen {xs}')
    vi = 0
    def V(n):
        nonlocal vi
        for _ in range(n):
            a(vm[vi]); vi += 1
    V(8)
    a('s_waitcnt lgkmcnt(0)')
    a('s_barrier')
    for m in range(4): a(f'ds_read_b128 v[{64+4*m}:{64+4*m+3}], v12 offset:{2048+m*512}')
    for i in range(4): a(f'v_cndmask_b32 v{32+i}, v{36+i}, v{32+i}, s[30:31]')
    a('v_max3_f32 v52, v32, v33, v34')
    a('v_max_f32 v52, v52, v35')
    V(4)
    a('s_waitcnt lgkmcnt(0)')
    for m in range(4):
        c = '0' if m == 0 else 'v[48:51]'
        a(f'v_mfma_f32_16x16x32_bf16 v[48:51], v[{64+4*m}:{64+4*m+3}], v[{QF[m]}:{QF[m]+3}], {c}')
    V(4)
    CS = '0x3e0293ee'
    va = ['v_mov_b32 v17, 0xf149f2ca',
          'v_cndmask_b32 v36, v50, v48, s[30:31]', 'v_cndmask_b32 v37, v51, v49, s[30:31]',
          'v_cndmask_b32 v36, v17, v36, s[34:35]', 'v_cndmask_b32 v37, v17, v37, s[34:35]',
          'v_max3_f32 v52, v52, v36, v37',
          'v_max_f32_dpp v52, v52, v52 row_ror:8 row_mask:0xf bank_mask:0xf']
    for sw in ('v_permlane16_swap_b32', 'v_permlane32_swap_b32'):
        va += ['v_mov_b32 v53, v52', f'{sw} v52, v53', 'v_max_f32 v52, v52, v53']
    va.append(f'v_mul_f32 v52, {CS}, v52')
    va.append(f'v_mov_b32 v17, {CS}')
    S = list(range(32, 38))
    for i in S: va.append(f'v_fma_f32 v{i}, v{i}, v17, -v52')
    for i in S: va.append(f'v_exp_f32 v{i}, v{i}')
    va += ['v_add_f32 v52, v32, v33', 'v_add_f32 v53, v34, v35', 'v_add_f32 v52, v52, v36', 'v_add_f32 v53, v53, v37', 'v_add_f32 v52, v52, v53',
           'v_add_f32_dpp v52, v52, v52 row_ror:8 row_mask:0xf bank_mask:0xf']
    for sw in ('v_permlane16_swap_b32', 'v_permlane32_swap_b32'):
        va += ['v_mov_b32 v53, v52', f'{sw} v52, v53', 'v_add_f32 v52, v52, v53']
    va.append('v_rcp_f32 v52, v52')
    for i in S: va.append(f'v_mul_f32 v{i}, v{i}, v52')
    va += ['v_cvt_pk_bf16_f32 v16, v32, v33', 'v_cvt_pk_bf16_f32 v17, v34, v35', 'v_cvt_pk_bf16_f32 v20, v36, v37',
           'v_mov_b32_dpp v18, v16 row_ror:8 row_mask:0xf bank_mask:0xf',
           'v_mov_b32_dpp v19, v17 row_ror:8 row_mask:0xf bank_mask:0xf',
           'v_mov_b32_dpp v21, v20 row_ror:8 row_mask:0xf bank_mask:0xf']
    interleave(a, vm[vi:], va, per=3)
    stamp(a, 2)
    for dt in range(4):
        for m in range(4):
            r = 64 + (dt*4+m)*4
            a(f'ds_read_b128 v[{r}:{r+3}], v10 offset:{(dt*4+m)*1024}')
    a('v_cvt_pk_bf16_f32 v56, v40, v41'); a('v_cvt_pk_bf16_f32 v57, v42, v43')
    a('v_cvt_pk_bf16_f32 v60, v44, v45'); a('v_cvt_pk_bf16_f32 v61, v46, v47')
    a('s_waitcnt vmcnt(3)')
    a('v_mfma_f32_16x16x32_bf16 v[32:35], v[24:27], v[16:19], 0')
    a('v_mfma_f32_16x16x32_bf16 v[36:39], v[28:31], v[16:19], 0')
    a('v_mfma_f32_16x16x16_bf16 v[32:35], v[56:57], v[20:21], v[32:35]')
    a('v_mfma_f32_16x16x16_bf16 v[36:39], v[60:61], v[20:21], v[36:39]')
    a(f'buffer_store_dwordx2 v[56:57], v8, s[4:7], s25 offen {xs}')
    a(f'buffer_store_dwordx2 v[60:61], v8, s[4:7], s25 offen offset:256 {xs}')
    for i in range(4): a(f'v_cvt_pk_bf16_f32 v{40+i}, v{32+2*i}, v{33+2*i}')
    a('ds_write_b128 v15, v[40:43]')
    a('s_waitcnt lgkmcnt(0)')
    a('s_barrier')
    for m in range(4): a(f'ds_read_b128 v[{44+4*m}:{44+4*m+3}], v14 offset:{m*512}')
    a('s_waitcnt lgkmcnt(0)')
    stamp(a, 3)
    def wacc(dt): return 16 + 4*dt if dt < 7 else 60
    a('s_mov_b32 s26, s22')
    def pstore(dt):
        d = wacc(dt)
        a(f'buffer_store_dwordx4 v[{d}:{d+3}], v4, s[4:7], s26 offen {rs}')
        a('s_add_u32 s26, s26, 16384')
    for dt in range(8):
        d = wacc(dt)
        if dt >= 4: a(f's_waitcnt lgkmcnt({12-4*(dt-4)})')
        for m in range(4):
            r = 64 + ((dt % 4)*4+m)*4
            c = '0' if m == 0 else f'v[{d}:{d+3}]'
            a(f'v_mfma_f32_16x16x32_bf16 v[{d}:{d+3}], v[{r}:{r+3}], v[{44+4*m}:{44+4*m+3}], {c}')
        if dt < 4:
            for m in range(4):
                r = 64 + (dt*4+m)*4
                a(f'ds_read_b128 v[{r}:{r+3}], v10 offset:{((dt+4)*4+m)*1024}')
        if dt >= 1: pstore(dt-1)
    pstore(7)
    a('s_add_u32 s24, s24, 2048'); a('s_add_u32 s25, s25, 2048')
    stamp(a, 4)
    a('s_add_u32 s26, s23, 4096'); a('s_add_u32 s27, s23, 8192'); a('s_add_u32 s28, s23, 12288')
    RS = ['s23', 's26', 's27', 's28']
    a('s_mov_b32 s36, 0')
    a.label(f'{L}_rpoll')
    for i in range(4): a(f'buffer_load_dwordx4 v[{64+4*i}:{64+4*i+3}], v5, s[4:7], {RS[i]} offen sc1')
    a('s_waitcnt vmcnt(0)')
    a('v_max3_u32 v80, v64, v65, v66')
    for i in range(3, 15, 2): a(f'v_max3_u32 v80, v80, v{64+i}, v{64+i+1}')
    a('v_max_u32 v80, v80, v79')
    a('v_cmp_eq_u32 vcc, -1, v80')
    a(f's_cbranch_vccz {L}_rok')
    a('s_add_u32 s36, s36, 1')
    a(f's_cmp_le_u32 s36, {SPIN_MAX}')
    a(f's_cbranch_scc1 {L}_rpoll')
    a.label(f'{L}_rok')
    stamp(a, 5)
    for i in range(4):
        a(f'v_add_f32 v{80+i}, v{64+i}, v{68+i}')
        a(f'v_add_f32 v{84+i}, v{72+i}, v{76+i}')
    for i in range(4): a(f'v_add_f32 v{80+i}, v{80+i}, v{84+i}')
    for i in range(4): a(f'v_add_f32_dpp v{80+i}, v{80+i}, v{80+i} row_ror:8 row_mask:0xf bank_mask:0xf')
    a('v_permlane32_swap_b32 v80, v81')
    a('v_permlane32_swap_b32 v82, v83')
    a('v_add_f32 v80, v80, v81')
    a('v_add_f32 v82, v82, v83')
    a('v_permlane16_swap_b32 v80, v82')
    a('v_add_f32 v80, v80, v82')
    a('v_mov_b32 v81, v80')
    a('v_permlane32_swap_b32 v80, v81')
    a('v_cvt_pk_bf16_f32 v88, v80, v81')
    a(f'buffer_store_dword v88, v6, s[4:7], s18 offen {rs}')
    a('s_mov_b32 s29, s23')
    a('s_add_u32 s16, s16, 8192'); a('s_add_u32 s17, s17, 8192'); a('s_add_u32 s18, s18, 8192')
    a('s_xor_b32 s22, s22, 0x80000'); a('s_xor_b32 s23, s23, 0x80000')
    stamp(a, 6)
    a('s_add_u32 s15, s15, 1')
    a('s_cmp_lt_u32 s15, 64')
    a(f's_cbranch_scc1 {L}_step')

def gen_rec(L, layer):
    a = Asm()
    a('s_cmp_ge_u32 s2, 256')
    a(f's_cbranch_scc1 {L}_end')
    srd(a, 4, 96, 0)
    srd(a, 8, 88, 0)
    a('s_waitcnt lgkmcnt(0)')
    srd_fin(a, 4, WS_SIZE)
    srd_fin(a, 8, 256)
    role_select(a, L)
    a('s_cmp_eq_u32 s12, -1')
    a(f's_cbranch_scc1 {L}_end')
    body_rec(a, L, layer, '')
    a.label(f'{L}_end')
    finish(L, a, vgpr=512, accum=256)
    launches.append((L, 256, 256, LDS_REC))


def softmax_block(a, S, valid_fix, t0, t1, t2):
    n = len(S)
    for rnd in range(2):
        for i in range(0, n, 2):
            a(f'v_cvt_pk_bf16_f32 v{t0}, v{S[i]}, v{S[i+1]}'); a(f'v_lshlrev_b32 v{S[i]}, 16, v{t0}'); a(f'v_and_b32 v{S[i+1]}, 0xffff0000, v{t0}')
        if rnd == 0:
            for i in range(n): a(f'v_mul_f32 v{S[i]}, 0x3db504f3, v{S[i]}')
    valid_fix(a)
    a(f'v_max_f32 v{t1}, v{S[0]}, v{S[1]}')
    for i in range(2, n, 2): a(f'v_max3_f32 v{t1}, v{t1}, v{S[i]}, v{S[i+1]}')
    g_allreduce(a, t1, t2, 'v_max_f32')
    a(f'v_mul_f32 v{t1}, 0xbfb8aa3b, v{t1}')
    a(f'v_mov_b32 v{t0}, 0x3fb8aa3b')
    for i in range(n):
        a(f'v_fma_f32 v{S[i]}, v{S[i]}, v{t0}, v{t1}')
        a(f'v_exp_f32 v{S[i]}, v{S[i]}')
    a(f'v_add_f32 v{t1}, v{S[0]}, v{S[1]}')
    for i in range(2, n): a(f'v_add_f32 v{t1}, v{t1}, v{S[i]}')
    g_allreduce(a, t1, t2, 'v_add_f32')
    a(f'v_rcp_f32 v{t1}, v{t1}')
    for i in range(n): a(f'v_mul_f32 v{S[i]}, v{S[i]}, v{t1}')

def body_t2(a, ld, st, wait_fn=None, deep=False, pre_fn=None):
    a('s_lshr_b32 s41, s40, 5')
    a('s_and_b32 s42, s40, 31')
    a('v_and_b32 v1, 63, v0')
    a('v_lshrrev_b32 v2, 6, v0')
    a('v_readfirstlane_b32 s43, v2')
    a('s_lshl_b32 s44, s41, 2')
    a('s_add_u32 s44, s44, s43')
    a('v_and_b32 v3, 15, v1')
    a('v_lshrrev_b32 v4, 4, v1')
    a('v_lshlrev_b32 v5, 4, v1')
    a('s_lshl_b32 s46, s44, 15')
    a(f's_add_u32 s46, s46, {XN}')
    a('s_add_u32 s46, s46, s88')
    a('v_add_u32 v6, s46, v5')
    a('v_add_u32 v7, 16384, v6')
    a('s_lshl_b32 s46, s42, 17')
    a(f's_add_u32 s46, s46, {WT}')
    for t in range(8):
        a(f'v_add_u32 v{8+t}, s46, v5')
        if t < 7: a('s_add_u32 s46, s46, 16384')
    for r in range(128, 192): a(f'v_mov_b32 v{r}, 0')
    if pre_fn: pre_fn(a)
    def mf(f):
        o = []
        for et in range(8):
            for tt in range(2):
                d = 128 + (et*2+tt)*4
                o.append(f'v_mfma_f32_16x16x32_bf16 v[{d}:{d+3}], {f(2+et)}, {f(tt)}, v[{d}:{d+3}]')
        return o
    gemm_loop(a, [(6+i, 'sc1' if i < 2 else '') for i in range(10)], 16, mf, [('v',16), ('v',56)] + ([('a',0), ('a',40)] if deep else []))
    if wait_fn: wait_fn(a)
    a('v_and_b32 v7, 7, v1')
    a('v_lshlrev_b32 v7, 4, v7')
    a('v_lshl_add_u32 v7, v4, 7, v7')
    a('v_lshlrev_b32 v8, 6, v3')
    a('v_lshl_add_u32 v8, v4, 4, v8')
    a('v_and_b32 v9, 1, v4')
    a('v_lshlrev_b32 v9, 3, v9')
    a('v_lshl_add_u32 v9, v3, 4, v9')
    a('s_lshl_b32 s46, s42, 19')
    a('s_lshl_b32 s47, s44, 13')
    a('s_add_u32 s46, s46, s47')
    a('s_add_u32 s46, s46, s88')
    a(f's_add_u32 s60, s46, {KF}')
    a('s_add_u32 s61, s60, 4096')
    a(f's_add_u32 s62, s46, {VF}')
    a('s_add_u32 s63, s62, 4096')
    a('s_lshl_b32 s46, s42, 17')
    a('s_lshl_b32 s47, s44, 11')
    a('s_add_u32 s46, s46, s47')
    a('s_add_u32 s46, s46, s88')
    a(f's_add_u32 s64, s46, {KMF}')
    a(f's_add_u32 s65, s46, {VMF}')
    for kt in range(2):
        for m in range(4):
            r = 16 + (kt*4+m)*4
            a(f'buffer_load_dwordx4 v[{r}:{r+3}], v5, s[4:7], s{60+kt} offen offset:{m*1024} {ld}')
    for m in range(4):
        r = 48 + m*4
        a(f'buffer_load_dwordx4 v[{r}:{r+3}], v7, s[4:7], s64 offen offset:{m*512} {ld}')
    for et in range(8):
        r = 192 + et*4
        a(f'buffer_load_dwordx4 v[{r}:{r+3}], v8, s[4:7], s{62+et//4} offen offset:{(et%4)*1024} {ld}')
    for et in range(8):
        r = 224 + et*4
        a(f'buffer_load_dwordx2 v[{r}:{r+1}], v9, s[4:7], s65 offen offset:{et*256} {ld}')
        a(f'v_mov_b32 v{r+2}, 0'); a(f'v_mov_b32 v{r+3}, 0')
    for m in range(4):
        for tt in range(2):
            o = 96 + (m*2+tt)*4
            d0 = 128 + ((2*m)*2+tt)*4; d1 = 128 + ((2*m+1)*2+tt)*4
            a(f'v_cvt_pk_bf16_f32 v{o}, v{d0}, v{d0+1}'); a(f'v_cvt_pk_bf16_f32 v{o+1}, v{d0+2}, v{d0+3}')
            a(f'v_cvt_pk_bf16_f32 v{o+2}, v{d1}, v{d1+1}'); a(f'v_cvt_pk_bf16_f32 v{o+3}, v{d1+2}, v{d1+3}')
    a('v_lshlrev_b32 v10, 2, v4')
    for i in range(4):
        a(f'v_add_u32 v11, {i}, v10')
        a(f'v_cmp_le_u32 s[{66+2*i}:{67+2*i}], v11, v3')
    a('v_cmp_gt_u32 s[74:75], 2, v4')
    a('s_waitcnt vmcnt(16)')
    tiles = [(16, 0, 128), (16, 1, 132), (32, 1, 136), (48, 0, 140), (48, 1, 144)]
    for (kb, tt, d) in tiles:
        for m in range(4):
            c = '0' if m == 0 else f'v[{d}:{d+3}]'
            a(f'v_mfma_f32_16x16x32_bf16 v[{d}:{d+3}], v[{kb+4*m}:{kb+4*m+3}], v[{96+(m*2+tt)*4}:{96+(m*2+tt)*4+3}], {c}')
    a('v_mov_b32 v12, 0xf149f2ca')
    def fix0(a):
        for i in range(4): a(f'v_cndmask_b32 v{128+i}, v12, v{128+i}, s[{66+2*i}:{67+2*i}]')
        for i in range(4): a(f'v_cndmask_b32 v{140+i}, v12, v{140+i}, s[74:75]')
    def fix1(a):
        for i in range(4): a(f'v_cndmask_b32 v{136+i}, v12, v{136+i}, s[{66+2*i}:{67+2*i}]')
        for i in range(4): a(f'v_cndmask_b32 v{144+i}, v12, v{144+i}, s[74:75]')
    softmax_block(a, [128,129,130,131,140,141,142,143], fix0, 13, 14, 15)
    softmax_block(a, [132,133,134,135,136,137,138,139,144,145,146,147], fix1, 13, 14, 15)
    a('v_cvt_pk_bf16_f32 v80, v128, v129'); a('v_cvt_pk_bf16_f32 v81, v130, v131'); a('v_mov_b32 v82, 0'); a('v_mov_b32 v83, 0')
    a('v_cvt_pk_bf16_f32 v84, v140, v141'); a('v_cvt_pk_bf16_f32 v85, v142, v143'); a('v_mov_b32 v86, 0'); a('v_mov_b32 v87, 0')
    a('v_cvt_pk_bf16_f32 v88, v132, v133'); a('v_cvt_pk_bf16_f32 v89, v134, v135'); a('v_cvt_pk_bf16_f32 v90, v136, v137'); a('v_cvt_pk_bf16_f32 v91, v138, v139')
    a('v_cvt_pk_bf16_f32 v92, v144, v145'); a('v_cvt_pk_bf16_f32 v93, v146, v147'); a('v_mov_b32 v94, 0'); a('v_mov_b32 v95, 0')
    a('s_waitcnt vmcnt(0)')
    for et in range(8):
        for tt in range(2):
            d = 16 + (et*2+tt)*4
            a(f'v_mfma_f32_16x16x32_bf16 v[{d}:{d+3}], v[{192+4*et}:{192+4*et+3}], v[{80+8*tt}:{80+8*tt+3}], 0')
    for et in range(8):
        for tt in range(2):
            d = 16 + (et*2+tt)*4
            a(f'v_mfma_f32_16x16x32_bf16 v[{d}:{d+3}], v[{224+4*et}:{224+4*et+3}], v[{84+8*tt}:{84+8*tt+3}], v[{d}:{d+3}]')
    a('s_lshl_b32 s46, s44, 18')
    a('s_lshl_b32 s47, s42, 12')
    a('s_add_u32 s46, s46, s47')
    a(f's_add_u32 s46, s46, {OF}')
    a('s_add_u32 s46, s46, s88')
    a('s_add_u32 s47, s46, 131072')
    for m in range(4):
        for tt in range(2):
            o = 96 + (m*2+tt)*4
            d0 = 16 + ((2*m)*2+tt)*4; d1 = 16 + ((2*m+1)*2+tt)*4
            a(f'v_cvt_pk_bf16_f32 v{o}, v{d0}, v{d0+1}'); a(f'v_cvt_pk_bf16_f32 v{o+1}, v{d0+2}, v{d0+3}')
            a(f'v_cvt_pk_bf16_f32 v{o+2}, v{d1}, v{d1+1}'); a(f'v_cvt_pk_bf16_f32 v{o+3}, v{d1+2}, v{d1+3}')
            a(f'buffer_store_dwordx4 v[{o}:{o+3}], v5, s[4:7], s{46+tt} offen offset:{m*1024} {st}')

def gen_t2(L):
    a = Asm()
    a('s_cmp_ge_u32 s2, 512')
    a(f's_cbranch_scc1 {L}_end')
    srd(a, 4, 96, 0)
    a('s_waitcnt lgkmcnt(0)')
    srd_fin(a, 4, WS_SIZE)
    a('s_mov_b32 s40, s2')
    body_t2(a, '', '')
    a.label(f'{L}_end')
    finish(L, a, vgpr=256, accum=256)
    launches.append((L, 512, 256, 0))

def resid_store(a, acc, xr, t, voff, srd_x, sx, srd_o, so, off, ldx):
    a(f'v_cvt_pk_bf16_f32 v{t}, v{acc}, v{acc+1}'); a(f'v_lshlrev_b32 v{acc}, 16, v{t}'); a(f'v_and_b32 v{acc+1}, 0xffff0000, v{t}')
    a(f'v_cvt_pk_bf16_f32 v{t}, v{acc+2}, v{acc+3}'); a(f'v_lshlrev_b32 v{acc+2}, 16, v{t}'); a(f'v_and_b32 v{acc+3}, 0xffff0000, v{t}')
    a(f'v_lshlrev_b32 v{t}, 16, v{xr}'); a(f'v_add_f32 v{acc}, v{acc}, v{t}')
    a(f'v_and_b32 v{t}, 0xffff0000, v{xr}'); a(f'v_add_f32 v{acc+1}, v{acc+1}, v{t}')
    a(f'v_lshlrev_b32 v{t}, 16, v{xr+1}'); a(f'v_add_f32 v{acc+2}, v{acc+2}, v{t}')
    a(f'v_and_b32 v{t}, 0xffff0000, v{xr+1}'); a(f'v_add_f32 v{acc+3}, v{acc+3}, v{t}')
    a(f'v_cvt_pk_bf16_f32 v{xr}, v{acc}, v{acc+1}'); a(f'v_cvt_pk_bf16_f32 v{xr+1}, v{acc+2}, v{acc+3}')
    a(f'buffer_store_dwordx2 v[{xr}:{xr+1}], v{voff}, {srd_o}, {so} offen offset:{off} {ldx}')

def body_t3(a, xsrd, xoff, dst, ld, deep=False, wait_fn=None):
    a('s_lshr_b32 s41, s40, 4')
    a('s_and_b32 s42, s40, 15')
    a('v_and_b32 v1, 63, v0')
    a('v_lshrrev_b32 v2, 6, v0')
    a('v_readfirstlane_b32 s43, v2')
    a('v_and_b32 v3, 15, v1')
    a('v_lshrrev_b32 v4, 4, v1')
    a('v_lshlrev_b32 v5, 4, v1')
    a('s_lshl_b32 s46, s42, 18')
    a('s_lshl_b32 s47, s43, 15')
    a('s_add_u32 s46, s46, s47')
    a(f's_add_u32 s46, s46, {WOT}')
    for dt in range(2):
        for ks in range(32):
            if ks % 4 == 0: a(f's_add_u32 s48, s46, {dt*131072 + ks*1024}')
            r = (dt*32+ks)*4
            a(f'buffer_load_dwordx4 a[{r}:{r+3}], v5, s[4:7], s48 offen offset:{(ks%4)*1024}')
    a('s_lshl_b32 s46, s41, 18')
    a('s_add_u32 s46, s46, s47')
    a(f's_add_u32 s46, s46, {OF}')
    a('s_add_u32 s46, s46, s88')
    a('v_add_u32 v12, s46, v5')
    a('v_add_u32 v13, 131072, v12')
    a('v_lshlrev_b32 v6, 10, v3')
    a('v_lshl_add_u32 v6, v4, 3, v6')
    a('s_lshl_b32 s46, s41, 15')
    a('s_and_b32 s47, s43, 1')
    a('s_lshl_b32 s47, s47, 14')
    a('s_add_u32 s46, s46, s47')
    a('s_lshl_b32 s47, s42, 6')
    a('s_add_u32 s46, s46, s47')
    a('s_lshr_b32 s47, s43, 1')
    a('s_lshl_b32 s47, s47, 5')
    a('s_add_u32 s46, s46, s47')
    a('s_lshl_b32 s47, s89, 22')
    a('s_add_u32 s46, s46, s47')
    a(f's_add_u32 s47, s46, {X1}')
    a(f's_add_u32 s46, s46, {XS0}')
    if wait_fn: wait_fn(a)
    a(f'buffer_load_dwordx2 v[96:97], v6, s[4:7], s46 offen sc1')
    D = 6
    def ldb(ks):
        f = 16 + (ks % D)*8
        if ks % 4 == 0: a(f's_mov_b32 s98, {ks*1024}')
        a(f'buffer_load_dwordx4 v[{f}:{f+3}], v12, s[4:7], s98 offen offset:{(ks%4)*1024} {ld}')
        a(f'buffer_load_dwordx4 v[{f+4}:{f+7}], v13, s[4:7], s98 offen offset:{(ks%4)*1024} {ld}')
    for ks in range(D-1): ldb(ks)
    for ks in range(32):
        if ks + D - 1 < 32:
            ldb(ks + D - 1); a(f's_waitcnt vmcnt({2*(D-1)})')
        else:
            a(f's_waitcnt vmcnt({2*(31-ks)})')
        f = 16 + (ks % D)*8
        for dt in range(2):
            for tt in range(2):
                d = 128 + (dt*2+tt)*4
                c = '0' if ks == 0 else f'v[{d}:{d+3}]'
                r = (dt*32+ks)*4
                a(f'v_mfma_f32_16x16x32_bf16 v[{d}:{d+3}], a[{r}:{r+3}], v[{f+4*tt}:{f+4*tt+3}], {c}')
    a('s_lshl_b32 s44, s43, 12')
    a('v_add_u32 v8, s44, v5')
    for i in range(4): a(f'ds_write_b128 v8, v[{128+4*i}:{128+4*i+3}] offset:{i*1024}')
    a('s_waitcnt lgkmcnt(0)')
    a('s_barrier')
    a('s_lshl_b32 s44, s43, 10')
    a('v_add_u32 v8, s44, v5')
    for w2 in range(4): a(f'ds_read_b128 v[{16+4*w2}:{16+4*w2+3}], v8 offset:{w2*4096}')
    a('s_waitcnt lgkmcnt(0)')
    for i in range(4):
        a(f'v_add_f32 v{16+i}, v{16+i}, v{20+i}')
        a(f'v_add_f32 v{24+i}, v{24+i}, v{28+i}')
        a(f'v_add_f32 v{16+i}, v{16+i}, v{24+i}')
    resid_store(a, 16, 96, 9, 6, xsrd, 's46', 's[4:7]', 's47', 0, 'sc1')

def gen_t3(L, xoff, dst):
    a = Asm()
    a('s_cmp_ge_u32 s2, 256')
    a(f's_cbranch_scc1 {L}_end')
    srd(a, 4, 96, 0)
    srd(a, 76, 0, 0)
    a('s_waitcnt lgkmcnt(0)')
    srd_fin(a, 4, WS_SIZE)
    srd_fin(a, 76, 0x200000)
    a('s_mov_b32 s40, s2')
    if xoff is None: body_t3(a, 's[76:79]', 0, dst, '')
    else: body_t3(a, 's[4:7]', xoff, dst, '')
    a.label(f'{L}_end')
    finish(L, a, vgpr=256, accum=256)
    launches.append((L, 256, 256, 65536))

NTL = 512 + 16*128 + 128
def gen_mega(L):
    a = Asm()
    a('s_cmp_ge_u32 s2, 256')
    a(f's_cbranch_scc1 {L}_end')
    srd(a, 4, 96, 0)
    srd(a, 8, 88, 0)
    srd(a, 76, 80, 0)
    a('s_waitcnt lgkmcnt(0)')
    srd_fin(a, 4, WS_SIZE)
    srd_fin(a, 8, 256)
    srd_fin(a, 76, 0x200000)
    if PROF:
        a('s_memrealtime s[90:91]')
        a('s_waitcnt lgkmcnt(0)')
    role_select(a, L)
    a('s_cmp_eq_u32 s12, -1')
    a(f's_cbranch_scc1 {L}_worker')
    body_rec(a, L, 0, 'sc1', merged=True)
    a(f's_branch {L}_end')
    a.label(f'{L}_worker')
    a.label(f'{L}_next')
    a('v_mbcnt_lo_u32_b32 v0, -1, 0')
    a('v_mbcnt_hi_u32_b32 v0, -1, v0')
    a('s_lshl_b32 s81, s14, 6')
    a('v_add_u32 v0, s81, v0')
    a('s_barrier')
    a('s_cmp_lg_u32 s14, 0')
    a(f's_cbranch_scc1 {L}_tw')
    a('s_mov_b64 exec, 1')
    a('v_mov_b32 v2, 40')
    a('v_mov_b32 v3, 1')
    a('buffer_atomic_add v3, v2, s[8:11], 0 offen sc0')
    a('s_waitcnt vmcnt(0)')
    a(f'v_mov_b32 v2, {LDS_REC - 256}')
    a('ds_write_b32 v2, v3')
    a('s_waitcnt lgkmcnt(0)')
    a('s_mov_b64 exec, -1')
    a.label(f'{L}_tw')
    a('s_barrier')
    a(f'v_mov_b32 v2, {LDS_REC - 256}')
    a('ds_read_b32 v3, v2')
    a('s_waitcnt lgkmcnt(0)')
    a('v_readfirstlane_b32 s81, v3')
    a(f's_cmp_ge_u32 s81, {2*NTL}')
    a(f's_cbranch_scc1 {L}_end')
    a(f's_cmp_ge_u32 s81, {NTL}')
    a('s_cselect_b32 s89, 1, 0')
    a(f's_cselect_b32 s88, {LSTR}, 0')
    a(f's_cselect_b32 s82, {NTL}, 0')
    a('s_sub_u32 s81, s81, s82')
    a('s_lshl_b32 s80, s89, 12')
    a(f's_add_u32 s80, s80, {FLG}')
    def signal(extra=None, slot=None):
        a('s_waitcnt vmcnt(0)')
        a('s_barrier')
        LL = a.uid('sig')
        a('s_cmp_lg_u32 s14, 0')
        a(f's_cbranch_scc1 {LL}')
        a('s_mov_b64 exec, 1')
        a('v_mov_b32 v2, s82')
        a('v_mov_b32 v3, 1')
        a('buffer_atomic_add v3, v2, s[4:7], s80 offen')
        if extra is not None:
            a(f'v_mov_b32 v2, {extra}')
            a('buffer_atomic_add v3, v2, s[4:7], s80 offen')
        if PROF and slot is not None:
            a('s_memrealtime s[90:91]')
            a('s_waitcnt lgkmcnt(0)')
            a('s_lshl_b32 s91, s89, 5')
            a(f's_add_u32 s91, s91, {192 + 4*slot}')
            a('v_mov_b32 v2, s91')
            a('v_mov_b32 v3, s90')
            a('buffer_atomic_umax v3, v2, s[8:11], 0 offen')
        a('s_mov_b64 exec, -1')
        a.label(LL)
    def poll(a, off_s, thr_s, base='s80'):
        LL = a.uid('poll')
        a('s_mov_b32 s85, 0')
        a.label(LL)
        a(f'v_mov_b32 v254, {off_s}')
        a(f'buffer_load_dword v254, v254, s[4:7], {base} offen sc1')
        a('s_waitcnt vmcnt(0)')
        a('v_readfirstlane_b32 s84, v254')
        a(f's_cmp_ge_u32 s84, {thr_s}')
        a(f's_cbranch_scc1 {LL}_ok')
        a('s_sleep 8')
        a('s_add_u32 s85, s85, 1')
        a(f's_cmp_le_u32 s85, {SPIN_MAX*4}')
        a(f's_cbranch_scc1 {LL}')
        a.label(f'{LL}_ok')
    a('s_cmp_ge_u32 s81, 512')
    a(f's_cbranch_scc1 {L}_t23')
    a('s_mov_b32 s40, s81')
    def w1(a):
        LL = a.uid('w1')
        a('s_cmp_eq_u32 s89, 0')
        a(f's_cbranch_scc1 {LL}')
        a('s_lshl_b32 s86, s41, 2')
        a('s_add_u32 s86, s86, 1280')
        a(f's_mov_b32 s87, {FLG}')
        poll(a, 's86', '8', 's87')
        a.label(LL)
        a('s_cmp_lt_u32 s41, 16')
        a(f's_cbranch_scc1 {LL}_b')
        poll(a, '0', '32')
        a.label(f'{LL}_b')
    body_t1(a, 'sc1', deep=True, wait_fn=w1)
    a('s_lshl_b32 s82, s41, 2')
    signal(128, 0)
    a(f's_branch {L}_next')
    a.label(f'{L}_t23')
    a('s_sub_u32 s81, s81, 512')
    a('s_cmp_ge_u32 s81, 2048')
    a(f's_cbranch_scc1 {L}_b2')
    a('s_lshr_b32 s83, s81, 7')
    a('s_and_b32 s81, s81, 127')
    a('s_cmp_ge_u32 s81, 32')
    a(f's_cbranch_scc1 {L}_t3')
    a('s_lshl_b32 s40, s83, 5')
    a('s_add_u32 s40, s40, s81')
    def w2(a):
        a('s_lshl_b32 s86, s41, 2')
        poll(a, 's86', '32')
        a('s_lshl_b32 s86, s42, 2')
        a('s_add_u32 s86, s86, 512')
        a('s_lshl_b32 s87, s41, 2')
        a('s_add_u32 s87, s87, 4')
        poll(a, 's86', 's87')
    def w2a(a):
        a('s_lshl_b32 s86, s41, 2')
        poll(a, 's86', '32')
    body_t2(a, 'sc1', 'sc1', wait_fn=w2, deep=True, pre_fn=w2a)
    a('s_lshl_b32 s82, s41, 2')
    a('s_add_u32 s82, s82, 256')
    signal(None, 1)
    a(f's_branch {L}_next')
    a.label(f'{L}_t3')
    a('s_sub_u32 s81, s81, 32')
    a('s_cmp_ge_u32 s81, 64')
    a(f's_cbranch_scc1 {L}_lnb')
    a('s_lshl_b32 s40, s83, 6')
    a('s_add_u32 s40, s40, s81')
    def w3(a):
        a('s_lshl_b32 s86, s83, 2')
        a('s_add_u32 s86, s86, 256')
        poll(a, 's86', '32')
    body_t3(a, 's[4:7]', 0, 0, 'sc1', deep=True, wait_fn=w3)
    a('s_waitcnt vmcnt(0)')
    a('s_barrier')
    a('s_cmp_lg_u32 s14, 0')
    a(f's_cbranch_scc1 {L}_x1w')
    a('s_mov_b64 exec, 1')
    a('s_lshl_b32 s82, s41, 2')
    a('s_add_u32 s82, s82, 768')
    a('v_mov_b32 v2, s82')
    a('v_mov_b32 v3, 1')
    a('buffer_atomic_add v3, v2, s[4:7], s80 offen sc0')
    a('s_waitcnt vmcnt(0)')
    a(f'v_mov_b32 v2, {LDS_REC - 128}')
    a('ds_write_b32 v2, v3')
    a('s_waitcnt lgkmcnt(0)')
    a('s_mov_b64 exec, -1')
    a.label(f'{L}_x1w')
    a('s_barrier')
    a(f'v_mov_b32 v2, {LDS_REC - 128}')
    a('ds_read_b32 v3, v2')
    a('s_waitcnt lgkmcnt(0)')
    a('v_readfirstlane_b32 s82, v3')
    a('s_cmp_lg_u32 s82, 15')
    a(f's_cbranch_scc1 {L}_next')
    a('s_lshl_b32 s40, s41, 1')
    body_lnb(a)
    a('s_add_u32 s40, s40, 1')
    body_lnb(a)
    a('s_lshl_b32 s82, s83, 2')
    a('s_add_u32 s82, s82, 1024')
    signal(None, 3)
    a(f's_branch {L}_next')
    a.label(f'{L}_lnb')
    a('s_sub_u32 s81, s81, 64')
    a('s_lshl_b32 s40, s83, 5')
    a('s_add_u32 s40, s40, s81')
    def wb1(a):
        a('s_lshl_b32 s86, s83, 2')
        a('s_add_u32 s86, s86, 1024')
        poll(a, 's86', '4')
    body_b1(a, wb1)
    a('s_mov_b32 s82, 1152')
    signal(None, 4)
    a(f's_branch {L}_next')
    a.label(f'{L}_b2')
    a('s_sub_u32 s40, s81, 2048')
    def wb2(a):
        poll(a, '1152', '512')
    body_b2(a, wb2)
    a('s_lshr_b32 s82, s41, 3')
    a('s_lshl_b32 s82, s82, 2')
    a('s_add_u32 s82, s82, 1280')
    signal(None, 5)
    a(f's_branch {L}_next')
    a.label(f'{L}_end')
    finish(L, a, vgpr=512, accum=256)
    launches.append((L, 256, 256, LDS_REC))

def phi(a, r, t, t2):
    a(f'v_add_f32 v{t}, 1.0, v{r}')
    a(f'v_mul_f32 v{t2}, 0x3fb8aa3b, v{r}')
    a(f'v_exp_f32 v{t2}, v{t2}')
    a(f'v_cmp_lt_f32 vcc, 0, v{r}')
    a(f'v_cndmask_b32 v{r}, v{t2}, v{t}, vcc')
    bf16_round(a, r, t)
    a(f'v_add_f32 v{r}, 0x358637bd, v{r}')
    bf16_round(a, r, t)

def body_b1(a, wait_fn):
    a('s_lshr_b32 s41, s40, 5')
    a('s_and_b32 s42, s40, 31')
    a('v_and_b32 v1, 63, v0')
    a('v_lshrrev_b32 v2, 6, v0')
    a('v_readfirstlane_b32 s43, v2')
    a('v_and_b32 v3, 15, v1')
    a('v_lshrrev_b32 v4, 4, v1')
    a('v_lshlrev_b32 v5, 4, v1')
    a('s_lshl_b32 s44, s41, 3')
    a('s_lshl_b32 s45, s43, 1')
    a('s_add_u32 s44, s44, s45')
    a('s_lshl_b32 s46, s42, 14')
    a(f's_add_u32 s46, s46, {BQKV}')
    for c in range(3):
        for ks in range(16):
            if ks % 4 == 0: a(f's_add_u32 s48, s46, {c*32*16384 + ks*1024}')
            r = (c*16+ks)*4
            a(f'buffer_load_dwordx4 a[{r}:{r+3}], v5, s[4:7], s48 offen offset:{(ks%4)*1024}')
    a('s_lshl_b32 s46, s44, 14')
    a(f's_add_u32 s46, s46, {XNB}')
    a('s_add_u32 s46, s46, s88')
    wait_fn(a)
    for tt in range(2):
        for ks in range(16):
            if ks % 4 == 0: a(f's_add_u32 s48, s46, {tt*16384 + ks*1024}')
            r = 128 + (ks*2+tt)*4
            a(f'buffer_load_dwordx4 v[{r}:{r+3}], v5, s[4:7], s48 offen offset:{(ks%4)*1024} sc1')
    for ks in range(16):
        a(f's_waitcnt vmcnt({15-ks})')
        for tt in range(2):
            x = f'v[{128+(ks*2+tt)*4}:{128+(ks*2+tt)*4+3}]'
            for c in range(3):
                d = 64 + c*8 + tt*4
                w = f'a[{(c*16+ks)*4}:{(c*16+ks)*4+3}]'
                cc = '0' if ks == 0 else f'v[{d}:{d+3}]'
                if c == 0: a(f'v_mfma_f32_16x16x32_bf16 v[{d}:{d+3}], {w}, {x}, {cc}')
                else: a(f'v_mfma_f32_16x16x32_bf16 v[{d}:{d+3}], {x}, {w}, {cc}')
    for r in range(64, 80):
        bf16_round(a, r, 16 + (r & 1)*2)
        phi(a, r, 16 + (r & 1)*2, 17 + (r & 1)*2)
    a('v_lshlrev_b32 v14, 3, v1')
    a('s_lshl_b32 s46, s44, 14')
    a('s_lshl_b32 s47, s42, 9')
    a('s_add_u32 s46, s46, s47')
    a(f's_add_u32 s46, s46, {PQ}')
    a('s_add_u32 s46, s46, s88')
    a('s_add_u32 s47, s46, 16384')
    for tt in range(2):
        d = 64 + tt*4; o = 24 + tt*2
        a(f'v_cvt_pk_bf16_f32 v{o}, v{d}, v{d+1}'); a(f'v_cvt_pk_bf16_f32 v{o+1}, v{d+2}, v{d+3}')
        a(f'buffer_store_dwordx2 v[{o}:{o+1}], v14, s[4:7], s{46+tt} offen sc1')
    for c in range(2):
        o = 32 + c*4; d = 72 + c*8
        for i in range(4): a(f'v_cvt_pk_bf16_f32 v{o+i}, v{d+2*i}, v{d+2*i+1}')
    for i in range(4): a(f'v_mov_b32 v{48+i}, 0x3f803f80')
    a('v_mfma_f32_16x16x32_bf16 v[96:99], v[32:35], v[36:39], 0')
    a('v_mfma_f32_16x16x32_bf16 v[100:103], v[32:35], v[48:51], 0')
    a('s_lshl_b32 s46, s43, 11')
    a('v_add_u32 v15, s46, v5')
    for t in range(2): a(f'ds_write_b128 v15, v[{96+4*t}:{96+4*t+3}] offset:{t*1024}')
    a('s_waitcnt lgkmcnt(0)')
    a('s_barrier')
    LB = a.uid('b1e')
    a('s_cmp_ge_u32 s43, 2')
    a(f's_cbranch_scc1 {LB}')
    a('s_lshl_b32 s46, s43, 10')
    a('v_add_u32 v15, s46, v5')
    for w2 in range(4): a(f'ds_read_b128 v[{104+4*w2}:{104+4*w2+3}], v15 offset:{w2*2048}')
    a('s_waitcnt lgkmcnt(0)')
    for i in range(4):
        a(f'v_add_f32 v{104+i}, v{104+i}, v{108+i}')
        a(f'v_add_f32 v{112+i}, v{112+i}, v{116+i}')
        a(f'v_add_f32 v{104+i}, v{104+i}, v{112+i}')
    a('v_mul_u32_u24 v6, 272, v4')
    a('v_lshl_add_u32 v7, v3, 2, v6')
    a('v_add_u32 v6, 64, v6')
    a('v_mov_b32 v8, 0x7fffff00')
    a('v_cmp_eq_u32 vcc, 0, v3')
    a('v_cndmask_b32 v6, v8, v6, vcc')
    a('s_cmp_eq_u32 s43, 1')
    a('s_cselect_b64 vcc, -1, 0')
    a('v_cndmask_b32 v6, v7, v6, vcc')
    a('s_mul_i32 s46, s42, 1088')
    a(f's_add_u32 s46, s46, {KVB}')
    a('s_lshl_b32 s47, s89, 16')
    a('s_add_u32 s46, s46, s47')
    for i in range(4): a(f'buffer_atomic_add_f32 v{104+i}, v6, s[4:7], s46 offen offset:{i*68}')
    a.label(LB)

def body_b2(a, wait_fn):
    L = a.uid('b2')
    a('s_mov_b32 s41, s40')
    a('v_and_b32 v1, 63, v0')
    a('v_lshrrev_b32 v2, 6, v0')
    a('v_readfirstlane_b32 s43, v2')
    a('v_and_b32 v3, 15, v1')
    a('v_lshrrev_b32 v4, 4, v1')
    a('v_lshlrev_b32 v5, 4, v1')
    a('s_lshl_b32 s46, s43, 17')
    a(f's_add_u32 s46, s46, {BWO}')
    for t in range(8):
        for ks in range(8):
            if ks % 4 == 0: a(f's_add_u32 s48, s46, {t*16384 + ks*1024}')
            r = (ks*8+t)*4
            a(f'buffer_load_dwordx4 a[{r}:{r+3}], v5, s[4:7], s48 offen offset:{(ks%4)*1024}')
    wait_fn(a)
    a('v_mul_u32_u24 v6, 272, v4')
    a('v_lshl_add_u32 v7, v3, 2, v6')
    a('s_mul_i32 s46, s43, %d' % (8*1088))
    a(f's_add_u32 s46, s46, {KVB}')
    a('s_lshl_b32 s47, s89, 16')
    a('s_add_u32 s46, s46, s47')
    for hh in range(8):
        if hh == 3 or hh == 6: a('s_add_u32 s46, s46, %d' % (3*1088))
        ho = (hh % 3)*1088
        for j in range(4):
            a(f'buffer_load_dword v{192+8*hh+j}, v7, s[4:7], s46 offen offset:{ho + j*68} sc1')
            a(f'buffer_load_dword v{196+8*hh+j}, v6, s[4:7], s46 offen offset:{ho + j*68 + 64} sc1')
    a('v_lshlrev_b32 v8, 3, v1')
    a('s_lshl_b32 s46, s41, 14')
    a('s_lshl_b32 s47, s43, 12')
    a('s_add_u32 s46, s46, s47')
    a(f's_add_u32 s46, s46, {PQ}')
    a('s_add_u32 s46, s46, s88')
    for hh in range(8): a(f'buffer_load_dwordx2 v[{16+2*hh}:{17+2*hh}], v8, s[4:7], s46 offen offset:{hh*512} sc1')
    a('v_lshlrev_b32 v9, 10, v3')
    a('v_lshl_add_u32 v9, v4, 3, v9')
    a('s_lshl_b32 s46, s41, 14')
    a('s_lshl_b32 s47, s43, 8')
    a('s_add_u32 s48, s46, s47')
    a('s_lshl_b32 s47, s89, 22')
    a('s_add_u32 s46, s48, s47')
    a(f's_add_u32 s46, s46, {X1}')
    for dt in range(8): a(f'buffer_load_dwordx2 v[{32+2*dt}:{33+2*dt}], v9, s[4:7], s46 offen offset:{dt*32} sc1')
    a('s_lshl_b32 s46, s43, 17')
    a(f's_add_u32 s46, s46, {BWO}')
    for t in range(8):
        a(f'v_add_u32 v{48+t}, s46, v5')
        if t < 7: a('s_add_u32 s46, s46, 16384')
    a('s_waitcnt vmcnt(8)')
    for hh in range(8):
        b = 192 + 8*hh; o = 96 + 4*hh
        a(f'v_cvt_pk_bf16_f32 v{o}, v{b}, v{b+1}'); a(f'v_cvt_pk_bf16_f32 v{o+1}, v{b+2}, v{b+3}')
        a(f'v_cvt_pk_bf16_f32 v{o+2}, v{b+4}, v{b+5}'); a(f'v_cvt_pk_bf16_f32 v{o+3}, v{b+6}, v{b+7}')
    for hh in range(8):
        a(f'v_mfma_f32_16x16x16_bf16 v[{192+4*hh}:{192+4*hh+3}], v[{96+4*hh}:{97+4*hh}], v[{16+2*hh}:{17+2*hh}], 0')
        a(f'v_mfma_f32_16x16x16_bf16 v[{128+4*hh}:{128+4*hh+3}], v[{98+4*hh}:{99+4*hh}], v[{16+2*hh}:{17+2*hh}], 0')
    for i in range(8):
        dn = 128 + 4*i; nm = 192 + 4*i
        t = 10 + (i & 1)*3
        bf16_round(a, dn, t)
        a(f'v_add_f32 v{dn}, 0x358637bd, v{dn}')
        bf16_round(a, dn, t)
        a(f'v_rcp_f32 v{t+1}, v{dn}')
        bf16_round2(a, nm, nm+1, t); bf16_round2(a, nm+2, nm+3, t)
        for k in range(4):
            a(f'v_mul_f32 v{t}, v{nm+k}, v{t+1}')
            a(f'v_fma_f32 v{t+2}, -v{t}, v{dn}, v{nm+k}')
            a(f'v_fma_f32 v{nm+k}, v{t+2}, v{t+1}, v{t}')
    a('s_lshl_b32 s44, s43, 12')
    a('v_add_u32 v6, s44, v5')
    for bb in range(4):
        o = 16 + bb*4
        d0 = 192 + (2*bb)*4; d1 = 192 + (2*bb+1)*4
        a(f'v_cvt_pk_bf16_f32 v{o}, v{d0}, v{d0+1}'); a(f'v_cvt_pk_bf16_f32 v{o+1}, v{d0+2}, v{d0+3}')
        a(f'v_cvt_pk_bf16_f32 v{o+2}, v{d1}, v{d1+1}'); a(f'v_cvt_pk_bf16_f32 v{o+3}, v{d1+2}, v{d1+3}')
        a(f'ds_write_b128 v6, v[{o}:{o+3}] offset:{bb*1024}')
    a('s_waitcnt lgkmcnt(0)')
    a('s_barrier')
    for i in range(16): a(f'ds_read_b128 v[{192+4*i}:{192+4*i+3}], v5 offset:{i*1024}')
    for r in range(64, 96): a(f'v_mov_b32 v{r}, 0')
    BUF = [96, 128, 160]
    def ld(ks):
        f = BUF[ks % 3]
        a(f's_mov_b32 s98, {ks*1024}')
        for t in range(8): a(f'buffer_load_dwordx4 v[{f+4*t}:{f+4*t+3}], v{48+t}, s[4:7], s98 offen')
    ld(8); ld(9); ld(10)
    a('s_waitcnt lgkmcnt(0)')
    for ks in range(8):
        for dt in range(8):
            d = 64 + dt*4; r = (ks*8+dt)*4
            a(f'v_mfma_f32_16x16x32_bf16 v[{d}:{d+3}], a[{r}:{r+3}], v[{192+4*ks}:{192+4*ks+3}], v[{d}:{d+3}]')
    for ks in range(8, 16):
        a(f's_waitcnt vmcnt({16 if ks < 14 else (8 if ks == 14 else 0)})')
        f = BUF[ks % 3]
        for dt in range(8):
            d = 64 + dt*4
            a(f'v_mfma_f32_16x16x32_bf16 v[{d}:{d+3}], v[{f+4*dt}:{f+4*dt+3}], v[{192+4*ks}:{192+4*ks+3}], v[{d}:{d+3}]')
        if ks + 3 < 16: ld(ks+3)
    a('s_cmp_lg_u32 s89, 0')
    a(f's_cbranch_scc1 {L}_last')
    a(f's_add_u32 s62, s48, {X2}')
    for dt in range(8):
        resid_store(a, 64+4*dt, 32+2*dt, 10, 9, None, None, 's[4:7]', 's62', dt*32, 'sc1')
    if True:
        for dt in range(8):
            for h2 in range(2):
                a(f'v_lshlrev_b32 v{64+4*dt+2*h2}, 16, v{32+2*dt+h2}')
                a(f'v_and_b32 v{65+4*dt+2*h2}, 0xffff0000, v{32+2*dt+h2}')
        def xwave(v, slot):
            g_allreduce(a, v, 11, 'v_add_f32')
            a('s_lshl_b32 s44, s43, 8')
            a('v_lshlrev_b32 v12, 2, v1')
            a('v_add_u32 v13, s44, v12')
            a(f'ds_write_b32 v13, v{v} offset:{16384 + slot*1024}')
            a('s_waitcnt lgkmcnt(0)')
            a('s_barrier')
            for w2 in range(4): a(f'ds_read_b32 v{100+w2}, v12 offset:{16384 + slot*1024 + w2*256}')
            a('s_waitcnt lgkmcnt(0)')
            a('v_add_f32 v100, v100, v101'); a('v_add_f32 v102, v102, v103'); a(f'v_add_f32 v{v}, v100, v102')
        a('v_add_f32 v10, v64, v65')
        for r in range(66, 96): a(f'v_add_f32 v10, v10, v{r}')
        xwave(10, 0)
        a('v_mul_f32 v10, 0x3b000000, v10')
        a('v_mov_b32 v14, 0')
        for r in range(64, 96):
            a(f'v_sub_f32 v15, v{r}, v10')
            a('v_fmac_f32 v14, v15, v15')
        xwave(14, 1)
        a('v_mul_f32 v14, 0x3b000000, v14')
        bf16_round(a, 14, 15)
        a('v_add_f32 v14, 0x3727c5ac, v14')
        bf16_round(a, 14, 15)
        a('v_sqrt_f32 v14, v14')
        bf16_round(a, 14, 15)
        bf16_round(a, 10, 15)
        a('v_rcp_f32 v16, v14')
        a('v_lshrrev_b32 v17, 1, v4')
        a('v_lshlrev_b32 v17, 8, v17')
        a('v_lshl_add_u32 v17, v3, 4, v17')
        a('v_and_b32 v18, 1, v4')
        a('v_lshl_add_u32 v17, v18, 3, v17')
        a('s_lshl_b32 s46, s41, 14')
        a('s_lshl_b32 s47, s43, 12')
        a('s_add_u32 s46, s46, s47')
        a(f's_add_u32 s46, s46, {XN + LSTR}')
        for dt in range(8):
            for h2 in range(2):
                r = 64 + 4*dt + 2*h2
                a(f'v_sub_f32 v{r}, v{r}, v10'); a(f'v_sub_f32 v{r+1}, v{r+1}, v10')
                bf16_round2(a, r, r+1, 15)
                for k in (r, r+1):
                    a(f'v_mul_f32 v19, v{k}, v16')
                    a(f'v_fma_f32 v20, -v19, v14, v{k}')
                    a(f'v_fma_f32 v{k}, v20, v16, v19')
                a(f'v_cvt_pk_bf16_f32 v{104+2*dt+h2}, v{r}, v{r+1}')
            a(f'buffer_store_dwordx2 v[{104+2*dt}:{105+2*dt}], v17, s[4:7], s46 offen offset:{(dt>>1)*1024 + (dt&1)*512} sc1')
    a(f's_branch {L}_done')
    a.label(f'{L}_last')
    a('s_mov_b32 s62, s48')
    for dt in range(8):
        resid_store(a, 64+4*dt, 32+2*dt, 10, 9, None, None, 's[76:79]', 's62', dt*32, '')
    a.label(f'{L}_done')

def emit(path):
    hdr = open(os.path.join(os.path.dirname(__file__), '..', 'cdna_kernels', NAME + '.s.ref')).read().split('; Override')[0]
    s = hdr
    for (L, g, b, lds) in launches:
        s += f'; @launch kernel={L} grid=({g},1,1) block=({b},1,1) lds={lds}\n'
    s += '.amdgcn_target "amdgcn-amd-amdhsa--gfx950"\n.text\n'
    seen = set()
    for (L, t, k) in kernels:
        s += t
    s += '.section .rodata,"a"\n'
    for (L, t, k) in kernels:
        s += '.p2align 6\n' + k
    open(path, 'w').write(s)

if __name__ == '__main__':
    gen_prep()
    gen_mega('mega_kernel')
    emit(os.path.join(os.path.dirname(__file__), '..', 'cdna_kernels', NAME + '.s'))
```

```python
import sys, os
sys.path.insert(0, os.path.dirname(__file__))
from asmlib import Asm, kd

NAME = 'interleave_layers__memory_aug_recurrent_mem_tr__linear_attn_block__prompt'
WT   = 0x0000000
WOT  = 0x0C00000
BQKV = 0x1000000
BWO  = 0x1180000
XN   = 0x1200000
XS0  = 0x1400000
X1   = 0x1600000
X2   = 0x1800000
X3   = 0x1A00000
PQ   = 0x1C00000
XNB  = 0x1E00000
LSTR = 0x6000000
KF   = 0x2000000
VF   = 0x3000000
KMF  = 0x4000000
VMF  = 0x4400000
OF   = 0x5000000
MEMB = 0x6000000
PART = 0x6200000
KVB  = 0x6400000
FLG  = 0x6420000
WS_SIZE = 0x10000000

def srd(a, d, koff, size):
    a(f's_load_dwordx2 s[{d}:{d+1}], s[0:1], {koff}')
def srd_fin(a, d, size):
    a(f's_and_b32 s{d+1}, s{d+1}, 0xffff')
    a(f's_mov_b32 s{d+2}, {size}')
    a(f's_mov_b32 s{d+3}, 0x20000')

def bf16_round(a, v, t):
    a(f'v_cvt_pk_bf16_f32 v{t}, v{v}, v{v}')
    a(f'v_lshlrev_b32 v{v}, 16, v{t}')
def bf16_round2(a, v0, v1, t):
    a(f'v_cvt_pk_bf16_f32 v{t}, v{v0}, v{v1}')
    a(f'v_lshlrev_b32 v{v0}, 16, v{t}')
    a(f'v_and_b32 v{v1}, 0xffff0000, v{t}')

def wave_allreduce(a, v, t, op):
    a(f'{op}_dpp v{v}, v{v}, v{v} quad_perm:[1,0,3,2] row_mask:0xf bank_mask:0xf')
    a(f'{op}_dpp v{v}, v{v}, v{v} quad_perm:[2,3,0,1] row_mask:0xf bank_mask:0xf')
    a(f'{op}_dpp v{v}, v{v}, v{v} row_half_mirror row_mask:0xf bank_mask:0xf')
    a(f'{op}_dpp v{v}, v{v}, v{v} row_mirror row_mask:0xf bank_mask:0xf')
    g_allreduce(a, v, t, op)
def g_allreduce(a, v, t, op):
    a(f'v_mov_b32 v{t}, v{v}')
    a(f'v_permlane16_swap_b32 v{v}, v{t}')
    a(f'{op} v{v}, v{v}, v{t}')
    a(f'v_mov_b32 v{t}, v{v}')
    a(f'v_permlane32_swap_b32 v{v}, v{t}')
    a(f'{op} v{v}, v{v}, v{t}')

kernels = []
launches = []
def finish(label, a, vgpr=512, accum=256):
    a('s_endpgm')
    a.fix_hazards()
    txt = f'.globl {label}\n.p2align 8\n.type {label},@function\n{label}:\n' + a.text()
    kernels.append((label, txt, kd(label, vgpr, accum)))

N_TR = 2304
N_PREP0 = N_TR + 2 + 32 + 32 + 64 + 12
N_PREP = N_PREP0 + 512
def gen_prep():
    L = 'prep_kernel'
    a = Asm()
    a('s_cmp_ge_u32 s2, %d' % N_PREP)
    a('s_cbranch_scc1 prep_end')
    srd(a, 4, 96, 0)
    a('s_load_dwordx4 s[20:23], s[0:1], 0')
    a('s_load_dwordx4 s[24:27], s[0:1], 16')
    a('s_load_dwordx4 s[28:31], s[0:1], 32')
    a('s_load_dwordx4 s[32:35], s[0:1], 64')
    a('s_waitcnt lgkmcnt(0)')
    srd_fin(a, 4, WS_SIZE)
    a('v_and_b32 v1, 63, v0')
    a('v_lshrrev_b32 v2, 6, v0')
    a('s_cmp_ge_u32 s2, %d' % N_PREP0)
    a('s_cbranch_scc1 prep_ln')
    a('s_cmp_ge_u32 s2, %d' % N_TR)
    a('s_cbranch_scc1 prep_init')
    a('s_mov_b32 s11, 0x20000')
    a('s_cmp_ge_u32 s2, 1536')
    a('s_cbranch_scc1 prep_t_wo')
    a('s_lshr_b32 s16, s2, 9')
    a('s_and_b32 s17, s2, 511')
    a('s_and_b32 s18, s17, 7')
    a('s_lshr_b32 s19, s17, 3')
    a('s_mov_b32 s8, s24'); a('s_mov_b32 s9, s25')
    a('s_cmp_eq_u32 s16, 1'); a('s_cselect_b32 s8, s26, s8'); a('s_cselect_b32 s9, s27, s9')
    a('s_cmp_eq_u32 s16, 2'); a('s_cselect_b32 s8, s28, s8'); a('s_cselect_b32 s9, s29, s9')
    a('s_and_b32 s9, s9, 0xffff')
    a('s_mov_b32 s10, 0x400000')
    a('s_mov_b32 s12, 8192')
    a('s_lshl_b32 s13, s18, 19')
    a('s_lshl_b32 s36, s19, 7')
    a('s_add_u32 s13, s13, s36')
    a('s_lshl_b32 s14, s16, 22')
    a('s_lshl_b32 s36, s19, 16')
    a('s_add_u32 s14, s14, s36')
    a('s_lshl_b32 s36, s18, 11')
    a('s_add_u32 s14, s14, s36')
    a('s_add_u32 s14, s14, %d' % WT)
    a('s_mov_b32 s15, 16384')
    a('s_branch prep_tr_plain')
    a.label('prep_t_wo')
    a('s_cmp_ge_u32 s2, 2048')
    a('s_cbranch_scc1 prep_t_bqkv')
    a('s_sub_u32 s17, s2, 1536')
    a('s_and_b32 s18, s17, 63')
    a('s_lshr_b32 s19, s17, 6')
    a('s_mov_b32 s8, s30'); a('s_and_b32 s9, s31, 0xffff'); a('s_mov_b32 s10, 0x400000')
    a('s_mov_b32 s12, 1024')
    a('s_lshl_b32 s13, s18, 16')
    a('s_lshl_b32 s36, s19, 7')
    a('s_add_u32 s13, s13, s36')
    a('s_lshl_b32 s14, s19, 19')
    a('s_lshl_b32 s36, s18, 11')
    a('s_add_u32 s14, s14, s36')
    a('s_add_u32 s14, s14, %d' % WOT)
    a('s_mov_b32 s15, 131072')
    a('s_branch prep_tr_perm')
    a.label('prep_t_bqkv')
    a('s_cmp_ge_u32 s2, 2240')
    a('s_cbranch_scc1 prep_t_bwo')
    a('s_sub_u32 s17, s2, 2048')
    a('s_and_b32 s18, s17, 7')
    a('s_lshr_b32 s19, s17, 3')
    a('s_mov_b32 s8, s32'); a('s_and_b32 s9, s33, 0xffff'); a('s_mov_b32 s10, 0x180000')
    a('s_mov_b32 s12, 3072')
    a('s_mul_i32 s13, s18, %d' % (64*3072))
    a('s_lshl_b32 s36, s19, 7')
    a('s_add_u32 s13, s13, s36')
    a('s_lshl_b32 s14, s19, 16')
    a('s_lshl_b32 s36, s18, 11')
    a('s_add_u32 s14, s14, s36')
    a('s_add_u32 s14, s14, %d' % BQKV)
    a('s_mov_b32 s15, 16384')
    a('s_branch prep_tr_plain')
    a.label('prep_t_bwo')
    a('s_sub_u32 s17, s2, 2240')
    a('s_and_b32 s18, s17, 7')
    a('s_lshr_b32 s19, s17, 3')
    a('s_mov_b32 s8, s34'); a('s_and_b32 s9, s35, 0xffff'); a('s_mov_b32 s10, 0x80000')
    a('s_mov_b32 s12, 1024')
    a('s_lshl_b32 s13, s18, 16')
    a('s_lshl_b32 s36, s19, 7')
    a('s_add_u32 s13, s13, s36')
    a('s_lshl_b32 s14, s19, 16')
    a('s_lshl_b32 s36, s18, 11')
    a('s_add_u32 s14, s14, s36')
    a('s_add_u32 s14, s14, %d' % BWO)
    a('s_mov_b32 s15, 16384')
    a('s_branch prep_tr_perm')
    for perm in (0, 1):
        a.label('prep_tr_perm' if perm else 'prep_tr_plain')
        a('v_lshrrev_b32 v3, 3, v0')
        a('v_and_b32 v4, 7, v0')
        a('v_mul_lo_u32 v5, v3, s12')
        a('v_lshl_add_u32 v5, v4, 4, v5')
        a('s_lshl_b32 s36, s12, 5')
        a('s_add_u32 s36, s36, s13')
        a('buffer_load_dwordx4 v[8:11], v5, s[8:11], s13 offen')
        a('buffer_load_dwordx4 v[12:15], v5, s[8:11], s36 offen')
        a('v_mul_u32_u24 v6, 144, v3')
        a('v_lshl_add_u32 v6, v4, 4, v6')
        a('s_waitcnt vmcnt(1)')
        a('ds_write_b128 v6, v[8:11]')
        a('s_waitcnt vmcnt(0)')
        a('ds_write_b128 v6, v[12:15] offset:%d' % (32*144))
        a('s_waitcnt lgkmcnt(0)')
        a('s_barrier')
        for i in range(2):
            a('v_add_u32 v16, %d, v2' % (4*i))
            if perm:
                a('v_lshrrev_b32 v17, 2, v16')
                a('v_and_b32 v18, 3, v16')
                a('v_lshlrev_b32 v17, 5, v17')
                a('v_lshl_add_u32 v17, v18, 2, v17')
                hi = 16
            else:
                a('v_lshlrev_b32 v17, 3, v16')
                hi = 4
            a('v_mul_u32_u24 v17, 144, v17')
            a('v_lshl_add_u32 v17, v1, 1, v17')
            for j in range(8):
                row = j if j < 4 else hi + j - 4
                a('ds_read_u16 v%d, v17 offset:%d' % (24 + j, row*144))
            a('v_lshrrev_b32 v19, 4, v1')
            a('v_mul_lo_u32 v19, v19, s15')
            a('v_lshrrev_b32 v18, 2, v16')
            a('v_lshl_add_u32 v19, v18, 10, v19')
            a('v_and_b32 v18, 3, v16')
            a('v_lshl_add_u32 v19, v18, 8, v19')
            a('v_and_b32 v18, 15, v1')
            a('v_lshl_add_u32 v19, v18, 4, v19')
            a('s_waitcnt lgkmcnt(0)')
            for j in range(4):
                a('v_lshl_or_b32 v%d, v%d, 16, v%d' % (20 + j, 25 + 2*j, 24 + 2*j))
            a('buffer_store_dwordx4 v[20:23], v19, s[4:7], s14 offen')
            a('s_nop 1')
        a('s_branch prep_end')
    a.label('prep_init')
    a('s_sub_u32 s17, s2, %d' % N_TR)
    a('s_cmp_ge_u32 s17, 2')
    a('s_cbranch_scc1 prep_fill')
    a('s_mov_b32 s8, s22'); a('s_and_b32 s9, s23, 0xffff'); a('s_mov_b32 s10, 8192'); a('s_mov_b32 s11, 0x20000')
    a('s_lshl_b32 s14, s17, 20')
    a('s_add_u32 s14, s14, %d' % MEMB)
    for i in range(2):
        a('v_add_u32 v3, %d, v0' % (256*i))
        a('v_lshrrev_b32 v4, 5, v3')
        a('v_bfe_u32 v5, v3, 3, 2')
        a('v_and_b32 v6, 7, v3')
        a('v_lshlrev_b32 v7, 10, v6')
        a('v_lshl_add_u32 v7, v4, 6, v7')
        a('v_lshl_add_u32 v7, v5, 4, v7')
        a('buffer_load_dwordx4 v[8:11], v7, s[8:11], 0 offen')
        a('v_lshlrev_b32 v12, 4, v3')
        a('s_waitcnt vmcnt(0)')
        a('buffer_store_dwordx4 v[8:11], v12, s[4:7], s14 offen')
        a('s_nop 1')
    a('s_branch prep_end')
    a.label('prep_fill')
    a('s_sub_u32 s17, s17, 2')
    a('s_mov_b32 s18, -1')
    a('s_mov_b32 s14, %d' % (MEMB + 8192))
    a('s_cmp_ge_u32 s17, 32')
    a('s_cselect_b32 s14, %d, s14' % (MEMB + 0x100000 + 8192 - 32*16384))
    a('s_cmp_ge_u32 s17, 64')
    a('s_cselect_b32 s14, %d, s14' % (PART - 64*16384))
    a('s_cmp_ge_u32 s17, 128')
    a('s_cselect_b32 s14, %d, s14' % (KVB - 128*16384))
    a('s_cselect_b32 s18, 0, s18')
    a('s_lshl_b32 s19, s17, 14')
    a('s_add_u32 s14, s14, s19')
    a('v_mov_b32 v8, s18'); a('v_mov_b32 v9, s18'); a('v_mov_b32 v10, s18'); a('v_mov_b32 v11, s18')
    a('v_lshlrev_b32 v3, 4, v0')
    for i in range(4):
        a('buffer_store_dwordx4 v[8:11], v3, s[4:7], s14 offen offset:%d' % 0 if i == 0 else
          'buffer_store_dwordx4 v[8:11], v3, s[4:7], s14 offen')
        if i < 3: a('s_add_u32 s14, s14, 4096')
    a('s_branch prep_end')
    a.label('prep_ln')
    a('s_sub_u32 s17, s2, %d' % N_PREP0)
    a('s_mov_b32 s8, s20'); a('s_and_b32 s9, s21, 0xffff'); a('s_mov_b32 s10, 0x200000'); a('s_mov_b32 s11, 0x20000')
    a('s_lshl_b32 s12, s17, 12')
    a('v_lshlrev_b32 v1, 4, v0')
    a('buffer_load_dwordx4 v[4:7], v1, s[8:11], s12 offen')
    a(f's_add_u32 s13, s12, {XS0}')
    a('s_waitcnt vmcnt(0)')
    a('buffer_store_dwordx4 v[4:7], v1, s[4:7], s13 offen')
    ln_core(a, 24)
    a('v_lshrrev_b32 v22, 6, v0')
    a('s_lshl_b32 s13, s17, 2')
    a('v_add_u32 v22, s13, v22')
    a('v_lshrrev_b32 v23, 4, v22')
    a('v_lshlrev_b32 v23, 14, v23')
    a('v_and_b32 v22, 15, v22')
    a('v_lshl_add_u32 v23, v22, 4, v23')
    a('v_bfe_u32 v22, v0, 2, 4')
    a('v_lshl_add_u32 v23, v22, 10, v23')
    a('v_and_b32 v22, 3, v0')
    a('v_lshl_add_u32 v23, v22, 8, v23')
    a(f's_mov_b32 s13, {XN}')
    a('buffer_store_dwordx4 v[24:27], v23, s[4:7], s13 offen')
    a.label('prep_end')
    finish(L, a, vgpr=32, accum=32)
    launches.append((L, N_PREP, 256, 64*144))

def ln_core(a, dreg):
    for i in range(4):
        a(f'v_lshlrev_b32 v{8+2*i}, 16, v{4+i}')
        a(f'v_and_b32 v{9+2*i}, 0xffff0000, v{4+i}')
    a('v_add_f32 v16, v8, v9')
    for i in range(2, 8): a(f'v_add_f32 v16, v16, v{8+i}')
    wave_allreduce(a, 16, 17, 'v_add_f32')
    a('v_mul_f32 v16, 0x3b000000, v16')
    a('v_mov_b32 v18, 0')
    for i in range(8):
        a(f'v_sub_f32 v17, v{8+i}, v16')
        a('v_fmac_f32 v18, v17, v17')
    wave_allreduce(a, 18, 17, 'v_add_f32')
    a('v_mul_f32 v18, 0x3b000000, v18')
    bf16_round(a, 18, 17)
    a('v_add_f32 v18, 0x3727c5ac, v18')
    bf16_round(a, 18, 17)
    a('v_sqrt_f32 v18, v18')
    bf16_round(a, 18, 17)
    bf16_round(a, 16, 17)
    a('v_rcp_f32 v19, v18')
    for i in range(0, 8, 2):
        a(f'v_sub_f32 v{8+i}, v{8+i}, v16')
        a(f'v_sub_f32 v{9+i}, v{9+i}, v16')
        bf16_round2(a, 8+i, 9+i, 17)
        for k in (8+i, 9+i):
            a(f'v_mul_f32 v20, v{k}, v19')
            a(f'v_fma_f32 v21, -v20, v18, v{k}')
            a(f'v_fma_f32 v{k}, v21, v19, v20')
        a(f'v_cvt_pk_bf16_f32 v{dreg+i//2}, v{8+i}, v{9+i}')

def body_lnb(a):
    a('v_and_b32 v1, 63, v0')
    a('v_lshlrev_b32 v2, 4, v1')
    a('s_lshl_b32 s46, s40, 14')
    a('s_lshl_b32 s47, s14, 12')
    a('s_add_u32 s46, s46, s47')
    a('s_lshl_b32 s47, s89, 22')
    a('s_add_u32 s46, s46, s47')
    a(f's_add_u32 s46, s46, {X1}')
    for r in range(4): a(f'buffer_load_dwordx4 v[{32+4*r}:{32+4*r+3}], v2, s[4:7], s46 offen offset:{r*1024} sc1')
    a('v_lshrrev_b32 v22, 2, v1')
    a('v_lshlrev_b32 v23, 10, v22')
    a('v_and_b32 v22, 3, v1')
    a('v_lshl_add_u32 v23, v22, 8, v23')
    a('s_lshl_b32 s46, s40, 14')
    a('s_lshl_b32 s47, s14, 6')
    a('s_add_u32 s46, s46, s47')
    a('s_add_u32 s46, s46, s88')
    a(f's_add_u32 s46, s46, {XNB}')
    for r in range(4):
        a('s_waitcnt vmcnt(3)')
        for i in range(4): a(f'v_mov_b32 v{4+i}, v{32+4*r+i}')
        ln_core(a, 48+4*r)
        a(f'buffer_store_dwordx4 v[{48+4*r}:{48+4*r+3}], v23, s[4:7], s46 offen offset:{r*16} sc1')

def gemm_loop(a, streams, nks, mfmas, bufs):
    L = a.uid('gl')
    n = len(streams); D = len(bufs)
    assert nks % D == 0
    def R(b):
        k, base = bufs[b]
        return lambda i: f'{k}[{base+4*i}:{base+4*i+3}]'
    def loads(b, off):
        sr = 's98'
        if off > 4095: sr = 's99'; off -= 4096
        for i, (va, sfx) in enumerate(streams):
            a(f'buffer_load_dwordx4 {R(b)(i)}, v{va}, s[4:7], {sr} offen offset:{off} {sfx}')
    a('s_mov_b32 s98, 0')
    a('s_mov_b32 s99, 4096')
    for j in range(D-1): loads(j, j*1024)
    a.label(L)
    for j in range(D):
        loads((j+D-1) % D, (j+D-1)*1024)
        a(f's_waitcnt vmcnt({(D-1)*n})')
        for m in mfmas(R(j)): a(m)
    a(f's_add_u32 s98, s98, {D*1024}')
    a(f's_add_u32 s99, s99, {D*1024}')
    a(f's_cmp_lt_u32 s98, {nks*1024}')
    a(f's_cbranch_scc1 {L}')
    a('s_waitcnt vmcnt(0)')

def body_t1(a, sfx, deep=False, wait_fn=None):
    a('s_lshr_b32 s41, s40, 5')
    a('s_and_b32 s42, s40, 31')
    a('v_and_b32 v1, 63, v0')
    a('v_lshrrev_b32 v2, 6, v0')
    a('v_readfirstlane_b32 s43, v2')
    a('s_lshr_b32 s44, s43, 1')
    a('s_and_b32 s45, s43, 1')
    a('v_lshlrev_b32 v3, 4, v1')
    a('s_lshl_b32 s46, s41, 17')
    a(f's_add_u32 s46, s46, {XN}')
    a('s_add_u32 s46, s46, s88')
    a('s_lshl_b32 s47, s42, 17')
    a(f's_add_u32 s47, s47, {WT + 256*16384 - 8*16384}')
    a(f's_add_u32 s48, s47, {256*16384 - 8*16384}')
    a('s_mul_i32 s49, s43, 6')
    for i in range(6):
        a(f's_add_u32 s50, s49, {i}')
        a('s_cmp_ge_u32 s50, 8')
        a('s_cselect_b32 s51, s47, s46')
        a('s_cmp_ge_u32 s50, 16')
        a('s_cselect_b32 s51, s48, s51')
        a('s_lshl_b32 s50, s50, 14')
        a('s_add_u32 s51, s51, s50')
        a(f'v_add_u32 v{4+i}, s51, v3')
    a('s_mul_i32 s49, s43, 6144')
    a('s_lshl_b32 s50, s44, 12')
    a('v_add_u32 v10, s50, v3')
    a('s_lshl_b32 s50, s45, 12')
    a('s_add_u32 s50, s50, 8192')
    a('v_add_u32 v11, s50, v3')
    a('v_add_u32 v12, 49152, v10')
    a('v_add_u32 v13, 49152, v11')
    ACK = 128; ACV = 192
    for r in range(128, 256): a(f'v_mov_b32 v{r}, 0')
    if wait_fn: wait_fn(a)
    def dma(ks):
        a(f's_mov_b32 s98, {ks*1024}')
        for i in range(6):
            a(f's_add_u32 m0, s49, {(ks % 4)*24576 + i*1024}')
            a(f'buffer_load_dwordx4 v{4+i}, s[4:7], s98 offen sc1 lds')
    def rd(ks):
        f = 16 + (ks & 1)*48; sb = (ks % 2)*24576
        ra, rb_ = (10, 11) if (ks % 4) < 2 else (12, 13)
        for t in range(4): a(f'ds_read_b128 v[{f+4*t}:{f+4*t+3}], v{ra} offset:{sb + t*1024}')
        for t in range(4): a(f'ds_read_b128 v[{f+16+4*t}:{f+16+4*t+3}], v{rb_} offset:{sb + t*1024}')
        for t in range(4): a(f'ds_read_b128 v[{f+32+4*t}:{f+32+4*t+3}], v{rb_} offset:{sb + 8192 + t*1024}')
    def mf(ks):
        fb = 16 + (ks & 1)*48
        f = lambda i: f'v[{fb+4*i}:{fb+4*i+3}]'
        for et in range(4):
            for tt in range(4):
                d = ACK + (et*4+tt)*4
                a(f'v_mfma_f32_16x16x32_bf16 v[{d}:{d+3}], {f(4+et)}, {f(tt)}, v[{d}:{d+3}]')
        for tt in range(4):
            for et in range(4):
                d = ACV + (tt*4+et)*4
                a(f'v_mfma_f32_16x16x32_bf16 v[{d}:{d+3}], {f(tt)}, {f(8+et)}, v[{d}:{d+3}]')
    dma(0); dma(1); dma(2)
    for ks in range(16):
        out = min(2, 15 - ks)
        a(f's_waitcnt vmcnt({6*out}) lgkmcnt(0)')
        a('s_barrier')
        if ks + 3 < 16: dma(ks+3)
        rd(ks)
        if ks > 0: mf(ks-1)
    a('s_waitcnt lgkmcnt(0)')
    mf(15)
    a('s_lshl_b32 s46, s42, 19')
    a('s_lshl_b32 s47, s41, 15')
    a('s_add_u32 s46, s46, s47')
    a('s_lshl_b32 s47, s44, 14')
    a('s_add_u32 s46, s46, s47')
    a('s_lshl_b32 s47, s45, 11')
    a('s_add_u32 s46, s46, s47')
    a(f's_add_u32 s46, s46, {KF}')
    a('s_add_u32 s46, s46, s88')
    k = 0
    for tt in range(4):
        if tt: a('s_add_u32 s46, s46, 4096')
        for mm in range(2):
            o = 16 + 4*(k % 8); k += 1
            d0 = ACK + ((2*mm)*4+tt)*4; d1 = ACK + ((2*mm+1)*4+tt)*4
            a(f'v_cvt_pk_bf16_f32 v{o}, v{d0}, v{d0+1}')
            a(f'v_cvt_pk_bf16_f32 v{o+1}, v{d0+2}, v{d0+3}')
            a(f'v_cvt_pk_bf16_f32 v{o+2}, v{d1}, v{d1+1}')
            a(f'v_cvt_pk_bf16_f32 v{o+3}, v{d1+2}, v{d1+3}')
            a(f'buffer_store_dwordx4 v[{o}:{o+3}], v3, s[4:7], s46 offen offset:{mm*1024} {sfx}')
    a('v_and_b32 v5, 15, v1')
    a('v_lshrrev_b32 v6, 4, v1')
    a('v_lshlrev_b32 v7, 6, v5')
    a('v_lshl_add_u32 v7, v6, 4, v7')
    a('s_lshl_b32 s46, s42, 19')
    a('s_lshl_b32 s47, s41, 15')
    a('s_add_u32 s46, s46, s47')
    a('s_lshl_b32 s47, s44, 14')
    a('s_add_u32 s46, s46, s47')
    a('s_lshl_b32 s47, s45, 12')
    a('s_add_u32 s46, s46, s47')
    a(f's_add_u32 s46, s46, {VF}')
    a('s_add_u32 s46, s46, s88')
    for sg in range(2):
        if sg: a('s_add_u32 s46, s46, 8192')
        for et in range(4):
            o = 48 + 4*(k % 8); k += 1
            d0 = ACV + ((2*sg)*4+et)*4; d1 = ACV + ((2*sg+1)*4+et)*4
            a(f'v_cvt_pk_bf16_f32 v{o}, v{d0}, v{d0+1}')
            a(f'v_cvt_pk_bf16_f32 v{o+1}, v{d0+2}, v{d0+3}')
            a(f'v_cvt_pk_bf16_f32 v{o+2}, v{d1}, v{d1+1}')
            a(f'v_cvt_pk_bf16_f32 v{o+3}, v{d1+2}, v{d1+3}')
            a(f'buffer_store_dwordx4 v[{o}:{o+3}], v7, s[4:7], s46 offen offset:{et*1024} {sfx}')

def gen_t1(L):
    a = Asm()
    a('s_cmp_ge_u32 s2, 512')
    a(f's_cbranch_scc1 {L}_end')
    srd(a, 4, 96, 0)
    a('s_waitcnt lgkmcnt(0)')
    srd_fin(a, 4, WS_SIZE)
    a('s_mov_b32 s40, s2')
    body_t1(a, '')
    a.label(f'{L}_end')
    finish(L, a, vgpr=256, accum=256)
    launches.append((L, 512, 256, 0))


LDS_SC = 131072
LDS_OB = LDS_SC + 6144
LDS_MS = LDS_OB + 2048
LDS_PF = LDS_MS + 8192
LDS_ROLE = LDS_SC
LDS_REC = LDS_PF + 16384
SPIN_MAX = 1 << 20

def interleave(a, mf, va, per=3):
    i = 0
    for m in mf:
        a(m)
        for _ in range(per):
            if i < len(va): a(va[i]); i += 1
    while i < len(va): a(va[i]); i += 1

def role_select(a, L):
    a('v_lshrrev_b32 v1, 6, v0')
    a('v_readfirstlane_b32 s14, v1')
    a('s_cmp_lg_u32 s14, 0')
    a(f's_cbranch_scc1 {L}_role_wait')
    a('s_getreg_b32 s26, hwreg(HW_REG_XCC_ID)')
    a('s_and_b32 s26, s26, 7')
    a('s_mov_b64 s[28:29], exec')
    a('s_mov_b64 exec, 1')
    a('s_lshl_b32 s27, s26, 2')
    a('v_mov_b32 v2, s27')
    a('v_mov_b32 v3, 1')
    a('buffer_atomic_add v3, v2, s[8:11], 0 offen sc0')
    a('s_waitcnt vmcnt(0)')
    a('v_readfirstlane_b32 s27, v3')
    a('s_mov_b32 s12, -1')
    a('s_cmp_ge_u32 s27, 32')
    a(f's_cbranch_scc1 {L}_role_done')
    a('v_mov_b32 v2, 32')
    a('s_add_u32 s26, s26, 1')
    a('s_cmp_lg_u32 s27, 31')
    a(f's_cbranch_scc1 {L}_role_poll0')
    a('v_mov_b32 v4, s26')
    a('v_mov_b32 v5, 0')
    a('buffer_atomic_cmpswap v[4:5], v2, s[8:11], 0 offen sc0')
    a('s_waitcnt vmcnt(0)')
    a.label(f'{L}_role_poll0')
    a('s_mov_b32 s36, 0')
    a.label(f'{L}_role_poll')
    a('buffer_load_dword v3, v2, s[8:11], 0 offen sc1')
    a('s_waitcnt vmcnt(0)')
    a('v_readfirstlane_b32 s37, v3')
    a('s_cmp_lg_u32 s37, 0')
    a(f's_cbranch_scc1 {L}_role_dec')
    a('s_sleep 4')
    a('s_add_u32 s36, s36, 1')
    a('s_cmp_lt_u32 s36, 4000')
    a(f's_cbranch_scc1 {L}_role_poll')
    a('v_mov_b32 v4, 100')
    a('v_mov_b32 v5, 0')
    a('buffer_atomic_cmpswap v[4:5], v2, s[8:11], 0 offen sc0')
    a('s_waitcnt vmcnt(0)')
    a(f's_branch {L}_role_poll0')
    a.label(f'{L}_role_dec')
    a('s_cmp_eq_u32 s37, s26')
    a('s_cselect_b32 s12, s27, s12')
    a('s_cmp_lg_u32 s37, 100')
    a(f's_cbranch_scc1 {L}_role_done')
    a('v_mov_b32 v2, 36')
    a('v_mov_b32 v3, 1')
    a('buffer_atomic_add v3, v2, s[8:11], 0 offen sc0')
    a('s_waitcnt vmcnt(0)')
    a('v_readfirstlane_b32 s27, v3')
    a('s_or_b32 s26, s27, 256')
    a('s_cmp_lt_u32 s27, 32')
    a('s_cselect_b32 s12, s26, s12')
    a.label(f'{L}_role_done')
    a('v_mov_b32 v2, %d' % LDS_ROLE)
    a('v_mov_b32 v3, s12')
    a('ds_write_b32 v2, v3')
    a('s_waitcnt lgkmcnt(0)')
    a('s_mov_b64 exec, s[28:29]')
    a.label(f'{L}_role_wait')
    a('s_barrier')
    a('v_mov_b32 v2, %d' % LDS_ROLE)
    a('ds_read_b32 v3, v2')
    a('s_waitcnt lgkmcnt(0)')
    a('v_readfirstlane_b32 s12, v3')

PROF = int(os.environ.get('PROF', '0'))
def stamp(a, i):
    if not PROF: return
    a('s_memtime s[50:51]')
    a('s_waitcnt lgkmcnt(0)')
    if i > 0:
        a('s_sub_u32 s52, s50, s53')
        a(f's_add_u32 s{60+i}, s{60+i}, s52')
    a('s_mov_b32 s53, s50')

def body_rec(a, L, layer, xs, merged=False):
    OOB = '0x7fffff00'
    a('s_lshr_b32 s13, s12, 8')
    a('s_and_b32 s12, s12, 31')
    a('v_and_b32 v0, 63, v0')
    a('v_and_b32 v12, 15, v0')
    a('v_lshrrev_b32 v13, 4, v0')
    a('v_and_b32 v14, 7, v0')
    a('v_cmp_gt_u32 s[30:31], 8, v12')
    a('v_cmp_gt_u32 s[32:33], 8, v0')
    a('v_cmp_gt_u32 s[34:35], 32, v0')
    a(f'v_mov_b32 v16, {OOB}')
    a('v_lshlrev_b32 v1, 7, v13')
    a('v_lshl_add_u32 v1, v14, 4, v1')
    a('s_lshl_b32 s26, s14, 10')
    a('v_lshlrev_b32 v2, 4, v0')
    a('v_add_u32 v2, s26, v2')
    a('s_lshl_b32 s26, s14, 11')
    a('v_lshlrev_b32 v3, 6, v12')
    a('v_lshl_add_u32 v3, v13, 4, v3')
    a('v_add_u32 v3, s26, v3')
    a('v_lshlrev_b32 v4, 6, v12')
    a('v_lshl_add_u32 v4, v13, 4, v4')
    a('v_cndmask_b32 v4, v16, v4, s[30:31]')
    a('s_lshl_b32 s26, s14, 7')
    a('v_lshrrev_b32 v5, 3, v0')
    a('v_lshlrev_b32 v5, 9, v5')
    a('v_lshl_add_u32 v5, v14, 4, v5')
    a('v_add_u32 v5, s26, v5')
    a('v_bfe_u32 v15, v0, 1, 1')
    a('v_lshlrev_b32 v6, 7, v15')
    a('v_bfe_u32 v15, v0, 2, 1')
    a('v_lshl_add_u32 v6, v15, 4, v6')
    a('v_and_b32 v15, 1, v0')
    a('v_lshl_add_u32 v6, v15, 3, v6')
    a('v_lshl_add_u32 v6, v13, 2, v6')
    a('s_lshl_b32 s26, s14, 5')
    a('v_add_u32 v6, s26, v6')
    a('s_and_b64 s[32:33], s[30:31], s[34:35]')
    a('v_cndmask_b32 v6, v16, v6, s[32:33]')
    a('s_lshl_b32 s26, s14, 9')
    a('v_add_u32 v7, s26, v1')
    a('v_cndmask_b32 v7, v16, v7, s[30:31]')
    a('s_lshl_b32 s26, s14, 9')
    a('v_lshlrev_b32 v8, 4, v12')
    a('v_lshl_add_u32 v8, v13, 3, v8')
    a('v_add_u32 v8, s26, v8')
    a('v_cndmask_b32 v8, v16, v8, s[34:35]')
    a('v_lshlrev_b32 v9, 4, v0')
    a('s_lshl_b32 s26, s14, 15')
    a('v_add_u32 v10, s26, v9')
    a('s_lshl_b32 s26, s12, 17')
    a('s_lshl_b32 s27, s14, 15')
    a('s_add_u32 s26, s26, s27')
    a(f's_add_u32 s26, s26, {WT}')
    def wreg(which, et, ks):
        i = (et*16 + ks)*4
        if which == 0: return f'a[{i}:{i+3}]'
        if which == 1: return f'a[{128+i}:{128+i+3}]'
        return f'v[{128+i}:{128+i+3}]'
    for which in range(3):
        for et in range(2):
            for ks in range(16):
                if ks % 4 == 0: a(f's_add_u32 s27, s26, {which*256*16384 + et*16384 + ks*1024}')
                a(f'buffer_load_dwordx4 {wreg(which, et, ks)}, v9, s[4:7], s27 offen offset:{(ks%4)*1024}')
    a('s_lshl_b32 s26, s14, 20')
    a('s_lshl_b32 s27, s12, 12')
    a('s_add_u32 s26, s26, s27')
    a(f's_add_u32 s26, s26, {WOT}')
    a('s_lshl_b32 s27, s14, 15')
    for dt in range(8):
        a('s_mov_b32 m0, s27')
        for m in range(4):
            a(f'buffer_load_dwordx4 v9, s[4:7], s26 offen offset:{m*1024} lds')
        a('s_add_u32 s26, s26, 131072')
        a('s_add_u32 s27, s27, 4096')
    a(f'v_add_u32 v11, {LDS_PF}, v9')
    a('s_lshl_b32 s26, s14, 9')
    a(f'v_add_u32 v12, {LDS_SC}, v1')
    a('v_add_u32 v13, s26, v12')
    a(f'v_add_u32 v14, {LDS_OB}, v1')
    a('v_add_u32 v15, s26, v14')
    a(f'v_add_u32 v17, {LDS_MS}, v9')
    a('v_cndmask_b32 v15, v17, v15, s[30:31]')
    a('s_lshl_b32 s26, s14, 11')
    a('v_add_u32 v17, s26, v9')
    a(f'v_add_u32 v18, {LDS_MS}, v17')
    a(f'v_add_u32 v1, {LDS_MS}, v1')
    a('v_mov_b32 v9, v17')
    a('v_mov_b32 v0, v18')
    a('s_mov_b32 s89, 0')
    a('s_mov_b32 s88, 0')
    a.label(f'{L}_layer')
    a('s_lshl_b32 s16, s89, 20')
    a(f's_add_u32 s16, s16, {MEMB}')
    a('s_add_u32 s17, s16, 4096')
    a('s_lshr_b32 s26, s12, 1')
    a('s_lshl_b32 s26, s26, 9')
    a('s_and_b32 s27, s12, 1')
    a('s_lshl_b32 s27, s27, 8')
    a('s_add_u32 s18, s26, s27')
    a('s_add_u32 s18, s18, s16')
    a('s_add_u32 s18, s18, 8192')
    a('s_lshl_b32 s26, s12, 19')
    a('s_add_u32 s26, s26, s88')
    a(f's_add_u32 s19, s26, {KF}')
    a('s_add_u32 s20, s19, 4096')
    a(f's_add_u32 s21, s26, {VF}')
    a('s_lshl_b32 s26, s12, 9')
    a('s_lshl_b32 s27, s14, 17')
    a('s_add_u32 s22, s26, s27')
    a(f's_add_u32 s22, s22, {PART}')
    a('s_lshl_b32 s26, s12, 14')
    a(f's_add_u32 s23, s26, {PART}')
    a('s_lshl_b32 s26, s12, 17')
    a('s_add_u32 s26, s26, s88')
    a(f's_add_u32 s24, s26, {KMF}')
    a(f's_add_u32 s25, s26, {VMF}')
    a('s_mov_b32 s15, 0')
    a('s_lshl_b32 s38, s14, 11')
    a(f's_add_u32 s38, s38, {LDS_PF}')
    a('s_add_u32 s39, s38, 1024')
    def prefetch():
        o = ['s_mov_b32 m0, s38', f'buffer_load_dwordx4 v2, s[4:7], s19 offen {xs} lds',
             's_mov_b32 m0, s39', f'buffer_load_dwordx4 v2, s[4:7], s20 offen {xs} lds',
             's_add_u32 s19, s19, 8192', 's_add_u32 s20, s20, 8192',
             's_xor_b32 s38, s38, 0x2000', 's_xor_b32 s39, s39, 0x2000']
        return o
    a('s_mov_b32 s41, 0')
    a('s_lshl_b32 s42, s89, 12')
    a(f's_add_u32 s42, s42, {FLG}')
    a('s_lshl_b32 s43, s12, 2')
    a('s_add_u32 s43, s43, s42')
    a('s_add_u32 s43, s43, 512')
    def kvwait(LL, rbreg):
        LL2 = a.uid('kvw')
        a('s_cmp_lg_u32 s41, 0')
        a(f's_cbranch_scc1 {LL2}_ok')
        a('s_mov_b32 s46, 0')
        a.label(f'{LL2}_p')
        a(f's_lshl_b32 s44, {rbreg}, 2')
        a('v_mov_b32 v50, s44')
        a('v_mov_b32 v51, 128')
        a('buffer_load_dword v50, v50, s[4:7], s42 offen sc1')
        a('buffer_load_dword v51, v51, s[4:7], s42 offen sc1')
        a('s_waitcnt vmcnt(0)')
        a('v_readfirstlane_b32 s44, v50')
        a('v_readfirstlane_b32 s45, v51')
        a('s_cmp_ge_u32 s45, 512')
        a('s_cselect_b32 s41, 1, 0')
        a('s_cmp_ge_u32 s44, 32')
        a(f's_cbranch_scc1 {LL2}_ok')
        a('s_sleep 2')
        a('s_add_u32 s46, s46, 1')
        a(f's_cmp_le_u32 s46, {SPIN_MAX*4}')
        a(f's_cbranch_scc1 {LL2}_p')
        a.label(f'{LL2}_ok')
    if merged:
        a('s_mov_b32 s47, 0')
        kvwait(L, 's47')
    for x in prefetch(): a(x)
    a('s_waitcnt vmcnt(0)')
    a('s_barrier')
    if PROF:
        for i in range(60, 70): a(f's_mov_b32 s{i}, 0')
        a('s_memrealtime s[92:93]')
        a('s_waitcnt lgkmcnt(0)')
    a('s_xor_b32 s29, s23, 0x80000')
    a('s_add_u32 s26, s29, 4096'); a('s_add_u32 s27, s29, 8192'); a('s_add_u32 s28, s29, 12288')
    a('s_cmp_lg_u32 s13, 0')
    a(f's_cbranch_scc1 {L}_s_step')
    for mode in ('f', 's'):
        rec_loop(a, f'{L}_{mode}', 'sc1' if mode == 's' else '', xs, wreg, prefetch, kvwait if merged else None)
        if mode == 'f': a(f's_branch {L}_recdone')
    a.label(f'{L}_recdone')
    for i in range(4): a(f'v_mov_b32 v{92+i}, -1')
    for sr in ('s29', 's26', 's27', 's28'): a(f'buffer_store_dwordx4 v[92:95], v5, s[4:7], {sr} offen sc1')
    if merged:
        a('s_waitcnt vmcnt(0)')
        a('s_barrier')
        a('s_cmp_lg_u32 s14, 0')
        a(f's_cbranch_scc1 {L}_nopub')
        a('v_mov_b32 v56, 64')
        a('v_mov_b32 v57, 0')
        a('buffer_store_dword v56, v57, s[4:7], s43 offen sc1')
        a.label(f'{L}_nopub')
        if PROF:
            a('s_memrealtime s[94:95]')
            a('s_waitcnt lgkmcnt(0)')
            a('s_lshl_b32 s95, s89, 5')
            a('s_add_u32 s95, s95, 216')
            a('s_mov_b64 exec, 1')
            a('v_mov_b32 v20, s92')
            a('v_mov_b32 v21, s94')
            a('v_mov_b32 v22, s95')
            a('buffer_store_dwordx2 v[20:21], v22, s[8:11], 0 offen')
            a('s_mov_b64 exec, -1')
        a('s_add_u32 s89, s89, 1')
        a(f's_add_u32 s88, s88, {LSTR}')
        a('s_cmp_lt_u32 s89, 2')
        a(f's_cbranch_scc1 {L}_layer')
    if PROF:
        a('s_memrealtime s[94:95]')
        a('s_waitcnt lgkmcnt(0)')
        a('s_sub_u32 s92, s92, s90')
        a('s_sub_u32 s94, s94, s90')
        a('s_mov_b64 exec, 1')
        a('v_mov_b32 v20, s92')
        a('v_mov_b32 v21, s94')
        a('v_mov_b32 v22, 44')
        a('buffer_store_dwordx2 v[20:21], v22, s[8:11], 0 offen')
        a('s_mov_b64 exec, -1')
        a('s_cmp_lg_u32 s12, 5')
        a(f's_cbranch_scc1 {L}_pf')
        a('s_mul_i32 s26, s14, 0')
        a('s_add_u32 s26, s26, 60')
        a('s_mov_b64 exec, 1')
        for i in range(1, 10):
            a(f'v_mov_b32 v20, s{60+i}')
            a(f'v_mov_b32 v21, {4*i}')
            a('buffer_store_dword v20, v21, s[8:11], s26 offen')
        a('s_mov_b64 exec, -1')
        a.label(f'{L}_pf')

def rec_loop(a, L, rs, xs, wreg, prefetch, kvwait):
    a.label(f'{L}_step')
    stamp(a, 0)
    a('s_mov_b32 s36, 0')
    a.label(f'{L}_gpoll')
    a('buffer_load_dwordx4 v[64:67], v9, s[4:7], s16 offen sc1')
    a('buffer_load_dwordx4 v[68:71], v9, s[4:7], s16 offen offset:1024 sc1')
    a('s_waitcnt vmcnt(0)')
    a('v_max3_u32 v56, v64, v65, v66')
    a('v_max3_u32 v56, v56, v67, v68')
    a('v_max3_u32 v56, v56, v69, v70')
    a('v_max_u32 v56, v56, v71')
    a('v_cmp_eq_u32 vcc, -1, v56')
    a(f's_cbranch_vccz {L}_gok')
    a('s_add_u32 s36, s36, 1')
    a(f's_cmp_le_u32 s36, {SPIN_MAX}')
    a(f's_cbranch_scc1 {L}_gpoll')
    a.label(f'{L}_gok')
    a('ds_write_b128 v0, v[64:67]')
    a('ds_write_b128 v0, v[68:71] offset:1024')
    for i in range(4): a(f'v_mov_b32 v{92+i}, -1')
    for sr in ('s29', 's26', 's27', 's28'): a(f'buffer_store_dwordx4 v[92:95], v5, s[4:7], {sr} offen {rs}')
    if PROF: a('s_add_u32 s69, s69, s36')
    a('s_waitcnt lgkmcnt(0)')
    a('s_barrier')
    stamp(a, 7)
    for k in range(16): a(f'ds_read_b128 v[{64+4*k}:{64+4*k+3}], v1 offset:{k*512}')
    def proj(which, dbase):
        o = []
        for ks in range(16):
            mf = f'v[{64+4*ks}:{64+4*ks+3}]'
            for et in range(2):
                d = dbase + et*4
                c = '0' if ks == 0 else f'v[{d}:{d+3}]'
                if which < 2: o.append(f'v_mfma_f32_16x16x32_bf16 v[{d}:{d+3}], {wreg(which, et, ks)}, {mf}, {c}')
                else: o.append(f'v_mfma_f32_16x16x32_bf16 v[{d}:{d+3}], {mf}, {wreg(2, et, ks)}, {c}')
        return o
    qm = proj(0, 32)
    fill = [f'buffer_load_dwordx4 v[24:27], v3, s[4:7], s21 offen {xs}',
            f'buffer_load_dwordx4 v[28:31], v3, s[4:7], s21 offen offset:1024 {xs}',
            's_add_u32 s21, s21, 8192']
    for ks in range(16):
        a(f's_waitcnt lgkmcnt({15-ks})')
        a(qm[2*ks]); a(qm[2*ks+1])
        if ks >= 2 and fill: a(fill.pop(0))
    km = proj(1, 40)
    ki = 0
    def K(n):
        nonlocal ki
        for _ in range(n):
            a(km[ki]); ki += 1
    K(4)
    stamp(a, 1)
    for i in range(4): a(f'v_cvt_pk_bf16_f32 v{56+i}, v{32+2*i}, v{33+2*i}')
    a('ds_write_b128 v13, v[56:59]')
    K(2)
    if kvwait:
        a('s_and_b32 s44, s15, 3')
        a('s_cmp_lg_u32 s44, 0')
        a(f's_cbranch_scc1 {L}_np')
        a('s_cmp_lg_u32 s14, 0')
        a(f's_cbranch_scc1 {L}_np')
        a('v_mov_b32 v48, s15')
        a('v_mov_b32 v49, 0')
        a('buffer_store_dword v48, v49, s[4:7], s43 offen sc1')
        a.label(f'{L}_np')
        a('s_cmp_lg_u32 s44, 3')
        a(f's_cbranch_scc1 {L}_nk')
        a('s_add_u32 s47, s15, 1')
        a('s_lshr_b32 s47, s47, 2')
        a('s_min_u32 s47, s47, 15')
        kvwait(L, 's47')
        a.label(f'{L}_nk')
    pf = prefetch()
    for i in range(0, 8, 2):
        a(pf[i]); a(pf[i+1]); K(1)
    a('s_waitcnt lgkmcnt(0)')
    a('s_barrier')
    QF = [16, 20, 56, 60]
    for m in range(4): a(f'ds_read_b128 v[{QF[m]}:{QF[m]+3}], v12 offset:{m*512}')
    for m in range(4):
        a(f'ds_read_b128 v[48:51], v11 offset:{m*2048}')
        a(f'ds_read_b128 v[52:55], v11 offset:{m*2048+1024}')
        K(5 if m < 3 else 4)
        a('s_waitcnt lgkmcnt(0)')
        c0 = '0' if m == 0 else 'v[32:35]'; c1 = '0' if m == 0 else 'v[36:39]'
        a(f'v_mfma_f32_16x16x32_bf16 v[32:35], v[48:51], v[{QF[m]}:{QF[m]+3}], {c0}')
        a(f'v_mfma_f32_16x16x32_bf16 v[36:39], v[52:55], v[{QF[m]}:{QF[m]+3}], {c1}')
    K(32 - ki)
    a('v_xor_b32 v11, 0x2000, v11')
    stamp(a, 8)
    vm = proj(2, 40)
    a('s_nop 4')
    for i in range(4): a(f'v_cvt_pk_bf16_f32 v{48+i}, v{40+2*i}, v{41+2*i}')
    a('ds_write_b128 v13, v[48:51] offset:2048')
    a(f'buffer_store_dwordx4 v[48:51], v7, s[4:7], s24 offen {xs}')
    vi = 0
    def V(n):
        nonlocal vi
        for _ in range(n):
            a(vm[vi]); vi += 1
    V(8)
    a('s_waitcnt lgkmcnt(0)')
    a('s_barrier')
    for m in range(4): a(f'ds_read_b128 v[{64+4*m}:{64+4*m+3}], v12 offset:{2048+m*512}')
    for i in range(4): a(f'v_cndmask_b32 v{32+i}, v{36+i}, v{32+i}, s[30:31]')
    a('v_max3_f32 v52, v32, v33, v34')
    a('v_max_f32 v52, v52, v35')
    V(4)
    a('s_waitcnt lgkmcnt(0)')
    for m in range(4):
        c = '0' if m == 0 else 'v[48:51]'
        a(f'v_mfma_f32_16x16x32_bf16 v[48:51], v[{64+4*m}:{64+4*m+3}], v[{QF[m]}:{QF[m]+3}], {c}')
    V(4)
    CS = '0x3e0293ee'
    va = ['v_mov_b32 v17, 0xf149f2ca',
          'v_cndmask_b32 v36, v50, v48, s[30:31]', 'v_cndmask_b32 v37, v51, v49, s[30:31]',
          'v_cndmask_b32 v36, v17, v36, s[34:35]', 'v_cndmask_b32 v37, v17, v37, s[34:35]',
          'v_max3_f32 v52, v52, v36, v37',
          'v_max_f32_dpp v52, v52, v52 row_ror:8 row_mask:0xf bank_mask:0xf']
    for sw in ('v_permlane16_swap_b32', 'v_permlane32_swap_b32'):
        va += ['v_mov_b32 v53, v52', f'{sw} v52, v53', 'v_max_f32 v52, v52, v53']
    va.append(f'v_mul_f32 v52, {CS}, v52')
    va.append(f'v_mov_b32 v17, {CS}')
    S = list(range(32, 38))
    for i in S: va.append(f'v_fma_f32 v{i}, v{i}, v17, -v52')
    for i in S: va.append(f'v_exp_f32 v{i}, v{i}')
    va += ['v_add_f32 v52, v32, v33', 'v_add_f32 v53, v34, v35', 'v_add_f32 v52, v52, v36', 'v_add_f32 v53, v53, v37', 'v_add_f32 v52, v52, v53',
           'v_add_f32_dpp v52, v52, v52 row_ror:8 row_mask:0xf bank_mask:0xf']
    for sw in ('v_permlane16_swap_b32', 'v_permlane32_swap_b32'):
        va += ['v_mov_b32 v53, v52', f'{sw} v52, v53', 'v_add_f32 v52, v52, v53']
    va.append('v_rcp_f32 v52, v52')
    for i in S: va.append(f'v_mul_f32 v{i}, v{i}, v52')
    va += ['v_cvt_pk_bf16_f32 v16, v32, v33', 'v_cvt_pk_bf16_f32 v17, v34, v35', 'v_cvt_pk_bf16_f32 v20, v36, v37',
           'v_mov_b32_dpp v18, v16 row_ror:8 row_mask:0xf bank_mask:0xf',
           'v_mov_b32_dpp v19, v17 row_ror:8 row_mask:0xf bank_mask:0xf',
           'v_mov_b32_dpp v21, v20 row_ror:8 row_mask:0xf bank_mask:0xf']
    interleave(a, vm[vi:], va, per=3)
    stamp(a, 2)
    for dt in range(4):
        for m in range(4):
            r = 64 + (dt*4+m)*4
            a(f'ds_read_b128 v[{r}:{r+3}], v10 offset:{(dt*4+m)*1024}')
    a('v_cvt_pk_bf16_f32 v56, v40, v41'); a('v_cvt_pk_bf16_f32 v57, v42, v43')
    a('v_cvt_pk_bf16_f32 v60, v44, v45'); a('v_cvt_pk_bf16_f32 v61, v46, v47')
    a('s_waitcnt vmcnt(3)')
    a('v_mfma_f32_16x16x32_bf16 v[32:35], v[24:27], v[16:19], 0')
    a('v_mfma_f32_16x16x32_bf16 v[36:39], v[28:31], v[16:19], 0')
    a('v_mfma_f32_16x16x16_bf16 v[32:35], v[56:57], v[20:21], v[32:35]')
    a('v_mfma_f32_16x16x16_bf16 v[36:39], v[60:61], v[20:21], v[36:39]')
    a(f'buffer_store_dwordx2 v[56:57], v8, s[4:7], s25 offen {xs}')
    a(f'buffer_store_dwordx2 v[60:61], v8, s[4:7], s25 offen offset:256 {xs}')
    for i in range(4): a(f'v_cvt_pk_bf16_f32 v{40+i}, v{32+2*i}, v{33+2*i}')
    a('ds_write_b128 v15, v[40:43]')
    a('s_waitcnt lgkmcnt(0)')
    a('s_barrier')
    for m in range(4): a(f'ds_read_b128 v[{44+4*m}:{44+4*m+3}], v14 offset:{m*512}')
    a('s_waitcnt lgkmcnt(0)')
    stamp(a, 3)
    def wacc(dt): return 16 + 4*dt if dt < 7 else 60
    a('s_mov_b32 s26, s22')
    def pstore(dt):
        d = wacc(dt)
        a(f'buffer_store_dwordx4 v[{d}:{d+3}], v4, s[4:7], s26 offen {rs}')
        a('s_add_u32 s26, s26, 16384')
    for dt in range(8):
        d = wacc(dt)
        if dt >= 4: a(f's_waitcnt lgkmcnt({12-4*(dt-4)})')
        for m in range(4):
            r = 64 + ((dt % 4)*4+m)*4
            c = '0' if m == 0 else f'v[{d}:{d+3}]'
            a(f'v_mfma_f32_16x16x32_bf16 v[{d}:{d+3}], v[{r}:{r+3}], v[{44+4*m}:{44+4*m+3}], {c}')
        if dt < 4:
            for m in range(4):
                r = 64 + (dt*4+m)*4
                a(f'ds_read_b128 v[{r}:{r+3}], v10 offset:{((dt+4)*4+m)*1024}')
        if dt >= 1: pstore(dt-1)
    pstore(7)
    a('s_add_u32 s24, s24, 2048'); a('s_add_u32 s25, s25, 2048')
    stamp(a, 4)
    a('s_add_u32 s26, s23, 4096'); a('s_add_u32 s27, s23, 8192'); a('s_add_u32 s28, s23, 12288')
    RS = ['s23', 's26', 's27', 's28']
    a('s_mov_b32 s36, 0')
    a.label(f'{L}_rpoll')
    for i in range(4): a(f'buffer_load_dwordx4 v[{64+4*i}:{64+4*i+3}], v5, s[4:7], {RS[i]} offen sc1')
    a('s_waitcnt vmcnt(0)')
    a('v_max3_u32 v80, v64, v65, v66')
    for i in range(3, 15, 2): a(f'v_max3_u32 v80, v80, v{64+i}, v{64+i+1}')
    a('v_max_u32 v80, v80, v79')
    a('v_cmp_eq_u32 vcc, -1, v80')
    a(f's_cbranch_vccz {L}_rok')
    a('s_add_u32 s36, s36, 1')
    a(f's_cmp_le_u32 s36, {SPIN_MAX}')
    a(f's_cbranch_scc1 {L}_rpoll')
    a.label(f'{L}_rok')
    stamp(a, 5)
    for i in range(4):
        a(f'v_add_f32 v{80+i}, v{64+i}, v{68+i}')
        a(f'v_add_f32 v{84+i}, v{72+i}, v{76+i}')
    for i in range(4): a(f'v_add_f32 v{80+i}, v{80+i}, v{84+i}')
    for i in range(4): a(f'v_add_f32_dpp v{80+i}, v{80+i}, v{80+i} row_ror:8 row_mask:0xf bank_mask:0xf')
    a('v_permlane32_swap_b32 v80, v81')
    a('v_permlane32_swap_b32 v82, v83')
    a('v_add_f32 v80, v80, v81')
    a('v_add_f32 v82, v82, v83')
    a('v_permlane16_swap_b32 v80, v82')
    a('v_add_f32 v80, v80, v82')
    a('v_mov_b32 v81, v80')
    a('v_permlane32_swap_b32 v80, v81')
    a('v_cvt_pk_bf16_f32 v88, v80, v81')
    a(f'buffer_store_dword v88, v6, s[4:7], s18 offen {rs}')
    a('s_mov_b32 s29, s23')
    a('s_add_u32 s16, s16, 8192'); a('s_add_u32 s17, s17, 8192'); a('s_add_u32 s18, s18, 8192')
    a('s_xor_b32 s22, s22, 0x80000'); a('s_xor_b32 s23, s23, 0x80000')
    stamp(a, 6)
    a('s_add_u32 s15, s15, 1')
    a('s_cmp_lt_u32 s15, 64')
    a(f's_cbranch_scc1 {L}_step')

def gen_rec(L, layer):
    a = Asm()
    a('s_cmp_ge_u32 s2, 256')
    a(f's_cbranch_scc1 {L}_end')
    srd(a, 4, 96, 0)
    srd(a, 8, 88, 0)
    a('s_waitcnt lgkmcnt(0)')
    srd_fin(a, 4, WS_SIZE)
    srd_fin(a, 8, 256)
    role_select(a, L)
    a('s_cmp_eq_u32 s12, -1')
    a(f's_cbranch_scc1 {L}_end')
    body_rec(a, L, layer, '')
    a.label(f'{L}_end')
    finish(L, a, vgpr=512, accum=256)
    launches.append((L, 256, 256, LDS_REC))


def softmax_block(a, S, valid_fix, t0, t1, t2):
    n = len(S)
    for rnd in range(2):
        for i in range(0, n, 2):
            a(f'v_cvt_pk_bf16_f32 v{t0}, v{S[i]}, v{S[i+1]}'); a(f'v_lshlrev_b32 v{S[i]}, 16, v{t0}'); a(f'v_and_b32 v{S[i+1]}, 0xffff0000, v{t0}')
        if rnd == 0:
            for i in range(n): a(f'v_mul_f32 v{S[i]}, 0x3db504f3, v{S[i]}')
    valid_fix(a)
    a(f'v_max_f32 v{t1}, v{S[0]}, v{S[1]}')
    for i in range(2, n, 2): a(f'v_max3_f32 v{t1}, v{t1}, v{S[i]}, v{S[i+1]}')
    g_allreduce(a, t1, t2, 'v_max_f32')
    a(f'v_mul_f32 v{t1}, 0xbfb8aa3b, v{t1}')
    a(f'v_mov_b32 v{t0}, 0x3fb8aa3b')
    for i in range(n):
        a(f'v_fma_f32 v{S[i]}, v{S[i]}, v{t0}, v{t1}')
        a(f'v_exp_f32 v{S[i]}, v{S[i]}')
    a(f'v_add_f32 v{t1}, v{S[0]}, v{S[1]}')
    for i in range(2, n): a(f'v_add_f32 v{t1}, v{t1}, v{S[i]}')
    g_allreduce(a, t1, t2, 'v_add_f32')
    a(f'v_rcp_f32 v{t1}, v{t1}')
    for i in range(n): a(f'v_mul_f32 v{S[i]}, v{S[i]}, v{t1}')

def body_t2(a, ld, st, wait_fn=None, deep=False, pre_fn=None):
    a('s_lshr_b32 s41, s40, 5')
    a('s_and_b32 s42, s40, 31')
    a('v_and_b32 v1, 63, v0')
    a('v_lshrrev_b32 v2, 6, v0')
    a('v_readfirstlane_b32 s43, v2')
    a('s_lshl_b32 s44, s41, 2')
    a('s_add_u32 s44, s44, s43')
    a('v_and_b32 v3, 15, v1')
    a('v_lshrrev_b32 v4, 4, v1')
    a('v_lshlrev_b32 v5, 4, v1')
    a('s_lshl_b32 s46, s44, 15')
    a(f's_add_u32 s46, s46, {XN}')
    a('s_add_u32 s46, s46, s88')
    a('v_add_u32 v6, s46, v5')
    a('v_add_u32 v7, 16384, v6')
    a('s_lshl_b32 s46, s42, 17')
    a(f's_add_u32 s46, s46, {WT}')
    for t in range(8):
        a(f'v_add_u32 v{8+t}, s46, v5')
        if t < 7: a('s_add_u32 s46, s46, 16384')
    for r in range(128, 192): a(f'v_mov_b32 v{r}, 0')
    if pre_fn: pre_fn(a)
    def mf(f):
        o = []
        for et in range(8):
            for tt in range(2):
                d = 128 + (et*2+tt)*4
                o.append(f'v_mfma_f32_16x16x32_bf16 v[{d}:{d+3}], {f(2+et)}, {f(tt)}, v[{d}:{d+3}]')
        return o
    gemm_loop(a, [(6+i, 'sc1' if i < 2 else '') for i in range(10)], 16, mf, [('v',16), ('v',56)] + ([('a',0), ('a',40)] if deep else []))
    a('v_and_b32 v7, 7, v1')
    a('v_lshlrev_b32 v7, 4, v7')
    a('v_lshl_add_u32 v7, v4, 7, v7')
    a('v_lshlrev_b32 v8, 6, v3')
    a('v_lshl_add_u32 v8, v4, 4, v8')
    a('v_and_b32 v9, 1, v4')
    a('v_lshlrev_b32 v9, 3, v9')
    a('v_lshl_add_u32 v9, v3, 4, v9')
    a('s_lshl_b32 s46, s42, 19')
    a('s_lshl_b32 s47, s44, 13')
    a('s_add_u32 s46, s46, s47')
    a('s_add_u32 s46, s46, s88')
    a(f's_add_u32 s60, s46, {KF}')
    a('s_add_u32 s61, s60, 4096')
    a(f's_add_u32 s62, s46, {VF}')
    a('s_add_u32 s63, s62, 4096')
    a('s_lshl_b32 s46, s42, 17')
    a('s_lshl_b32 s47, s44, 11')
    a('s_add_u32 s46, s46, s47')
    a('s_add_u32 s46, s46, s88')
    a(f's_add_u32 s64, s46, {KMF}')
    a(f's_add_u32 s65, s46, {VMF}')
    for kt in range(2):
        for m in range(4):
            r = 16 + (kt*4+m)*4
            a(f'buffer_load_dwordx4 v[{r}:{r+3}], v5, s[4:7], s{60+kt} offen offset:{m*1024} {ld}')
    for et in range(8):
        r = 192 + et*4
        a(f'buffer_load_dwordx4 v[{r}:{r+3}], v8, s[4:7], s{62+et//4} offen offset:{(et%4)*1024} {ld}')
    for m in range(4):
        for tt in range(2):
            o = 96 + (m*2+tt)*4
            d0 = 128 + ((2*m)*2+tt)*4; d1 = 128 + ((2*m+1)*2+tt)*4
            a(f'v_cvt_pk_bf16_f32 v{o}, v{d0}, v{d0+1}'); a(f'v_cvt_pk_bf16_f32 v{o+1}, v{d0+2}, v{d0+3}')
            a(f'v_cvt_pk_bf16_f32 v{o+2}, v{d1}, v{d1+1}'); a(f'v_cvt_pk_bf16_f32 v{o+3}, v{d1+2}, v{d1+3}')
    a('v_lshlrev_b32 v10, 2, v4')
    for i in range(4):
        a(f'v_add_u32 v11, {i}, v10')
        a(f'v_cmp_le_u32 s[{66+2*i}:{67+2*i}], v11, v3')
    a('v_cmp_gt_u32 s[74:75], 2, v4')
    a('s_waitcnt vmcnt(8)')
    tiles = [(16, 0, 128), (16, 1, 132), (32, 1, 136), (48, 0, 140), (48, 1, 144)]
    def sc(ts):
        for (kb, tt, d) in ts:
            for m in range(4):
                c = '0' if m == 0 else f'v[{d}:{d+3}]'
                a(f'v_mfma_f32_16x16x32_bf16 v[{d}:{d+3}], v[{kb+4*m}:{kb+4*m+3}], v[{96+(m*2+tt)*4}:{96+(m*2+tt)*4+3}], {c}')
    sc(tiles[:3])
    if wait_fn: wait_fn(a)
    for m in range(4):
        r = 48 + m*4
        a(f'buffer_load_dwordx4 v[{r}:{r+3}], v7, s[4:7], s64 offen offset:{m*512} {ld}')
    for et in range(8):
        r = 224 + et*4
        a(f'buffer_load_dwordx2 v[{r}:{r+1}], v9, s[4:7], s65 offen offset:{et*256} {ld}')
        a(f'v_mov_b32 v{r+2}, 0'); a(f'v_mov_b32 v{r+3}, 0')
    a('s_waitcnt vmcnt(8)')
    sc(tiles[3:])
    a('v_mov_b32 v12, 0xf149f2ca')
    def fix0(a):
        for i in range(4): a(f'v_cndmask_b32 v{128+i}, v12, v{128+i}, s[{66+2*i}:{67+2*i}]')
        for i in range(4): a(f'v_cndmask_b32 v{140+i}, v12, v{140+i}, s[74:75]')
    def fix1(a):
        for i in range(4): a(f'v_cndmask_b32 v{136+i}, v12, v{136+i}, s[{66+2*i}:{67+2*i}]')
        for i in range(4): a(f'v_cndmask_b32 v{144+i}, v12, v{144+i}, s[74:75]')
    softmax_block(a, [128,129,130,131,140,141,142,143], fix0, 13, 14, 15)
    softmax_block(a, [132,133,134,135,136,137,138,139,144,145,146,147], fix1, 13, 14, 15)
    a('v_cvt_pk_bf16_f32 v80, v128, v129'); a('v_cvt_pk_bf16_f32 v81, v130, v131'); a('v_mov_b32 v82, 0'); a('v_mov_b32 v83, 0')
    a('v_cvt_pk_bf16_f32 v84, v140, v141'); a('v_cvt_pk_bf16_f32 v85, v142, v143'); a('v_mov_b32 v86, 0'); a('v_mov_b32 v87, 0')
    a('v_cvt_pk_bf16_f32 v88, v132, v133'); a('v_cvt_pk_bf16_f32 v89, v134, v135'); a('v_cvt_pk_bf16_f32 v90, v136, v137'); a('v_cvt_pk_bf16_f32 v91, v138, v139')
    a('v_cvt_pk_bf16_f32 v92, v144, v145'); a('v_cvt_pk_bf16_f32 v93, v146, v147'); a('v_mov_b32 v94, 0'); a('v_mov_b32 v95, 0')
    a('s_waitcnt vmcnt(0)')
    for et in range(8):
        for tt in range(2):
            d = 16 + (et*2+tt)*4
            a(f'v_mfma_f32_16x16x32_bf16 v[{d}:{d+3}], v[{192+4*et}:{192+4*et+3}], v[{80+8*tt}:{80+8*tt+3}], 0')
    for et in range(8):
        for tt in range(2):
            d = 16 + (et*2+tt)*4
            a(f'v_mfma_f32_16x16x32_bf16 v[{d}:{d+3}], v[{224+4*et}:{224+4*et+3}], v[{84+8*tt}:{84+8*tt+3}], v[{d}:{d+3}]')
    a('s_lshl_b32 s46, s44, 18')
    a('s_lshl_b32 s47, s42, 12')
    a('s_add_u32 s46, s46, s47')
    a(f's_add_u32 s46, s46, {OF}')
    a('s_add_u32 s46, s46, s88')
    a('s_add_u32 s47, s46, 131072')
    for m in range(4):
        for tt in range(2):
            o = 96 + (m*2+tt)*4
            d0 = 16 + ((2*m)*2+tt)*4; d1 = 16 + ((2*m+1)*2+tt)*4
            a(f'v_cvt_pk_bf16_f32 v{o}, v{d0}, v{d0+1}'); a(f'v_cvt_pk_bf16_f32 v{o+1}, v{d0+2}, v{d0+3}')
            a(f'v_cvt_pk_bf16_f32 v{o+2}, v{d1}, v{d1+1}'); a(f'v_cvt_pk_bf16_f32 v{o+3}, v{d1+2}, v{d1+3}')
            a(f'buffer_store_dwordx4 v[{o}:{o+3}], v5, s[4:7], s{46+tt} offen offset:{m*1024} {st}')

def gen_t2(L):
    a = Asm()
    a('s_cmp_ge_u32 s2, 512')
    a(f's_cbranch_scc1 {L}_end')
    srd(a, 4, 96, 0)
    a('s_waitcnt lgkmcnt(0)')
    srd_fin(a, 4, WS_SIZE)
    a('s_mov_b32 s40, s2')
    body_t2(a, '', '')
    a.label(f'{L}_end')
    finish(L, a, vgpr=256, accum=256)
    launches.append((L, 512, 256, 0))

def resid_store(a, acc, xr, t, voff, srd_x, sx, srd_o, so, off, ldx):
    a(f'v_cvt_pk_bf16_f32 v{t}, v{acc}, v{acc+1}'); a(f'v_lshlrev_b32 v{acc}, 16, v{t}'); a(f'v_and_b32 v{acc+1}, 0xffff0000, v{t}')
    a(f'v_cvt_pk_bf16_f32 v{t}, v{acc+2}, v{acc+3}'); a(f'v_lshlrev_b32 v{acc+2}, 16, v{t}'); a(f'v_and_b32 v{acc+3}, 0xffff0000, v{t}')
    a(f'v_lshlrev_b32 v{t}, 16, v{xr}'); a(f'v_add_f32 v{acc}, v{acc}, v{t}')
    a(f'v_and_b32 v{t}, 0xffff0000, v{xr}'); a(f'v_add_f32 v{acc+1}, v{acc+1}, v{t}')
    a(f'v_lshlrev_b32 v{t}, 16, v{xr+1}'); a(f'v_add_f32 v{acc+2}, v{acc+2}, v{t}')
    a(f'v_and_b32 v{t}, 0xffff0000, v{xr+1}'); a(f'v_add_f32 v{acc+3}, v{acc+3}, v{t}')
    a(f'v_cvt_pk_bf16_f32 v{xr}, v{acc}, v{acc+1}'); a(f'v_cvt_pk_bf16_f32 v{xr+1}, v{acc+2}, v{acc+3}')
    a(f'buffer_store_dwordx2 v[{xr}:{xr+1}], v{voff}, {srd_o}, {so} offen offset:{off} {ldx}')

def body_t3(a, xsrd, xoff, dst, ld, deep=False, wait_fn=None):
    a('s_lshr_b32 s41, s40, 4')
    a('s_and_b32 s42, s40, 15')
    a('v_and_b32 v1, 63, v0')
    a('v_lshrrev_b32 v2, 6, v0')
    a('v_readfirstlane_b32 s43, v2')
    a('v_and_b32 v3, 15, v1')
    a('v_lshrrev_b32 v4, 4, v1')
    a('v_lshlrev_b32 v5, 4, v1')
    a('s_lshl_b32 s46, s42, 18')
    a('s_lshl_b32 s47, s43, 15')
    a('s_add_u32 s46, s46, s47')
    a(f's_add_u32 s46, s46, {WOT}')
    for dt in range(2):
        for ks in range(32):
            if ks % 4 == 0: a(f's_add_u32 s48, s46, {dt*131072 + ks*1024}')
            r = (dt*32+ks)*4
            a(f'buffer_load_dwordx4 a[{r}:{r+3}], v5, s[4:7], s48 offen offset:{(ks%4)*1024}')
    a('s_lshl_b32 s46, s41, 18')
    a('s_add_u32 s46, s46, s47')
    a(f's_add_u32 s46, s46, {OF}')
    a('s_add_u32 s46, s46, s88')
    a('v_add_u32 v12, s46, v5')
    a('v_add_u32 v13, 131072, v12')
    a('v_lshlrev_b32 v6, 10, v3')
    a('v_lshl_add_u32 v6, v4, 3, v6')
    a('s_lshl_b32 s46, s41, 15')
    a('s_and_b32 s47, s43, 1')
    a('s_lshl_b32 s47, s47, 14')
    a('s_add_u32 s46, s46, s47')
    a('s_lshl_b32 s47, s42, 6')
    a('s_add_u32 s46, s46, s47')
    a('s_lshr_b32 s47, s43, 1')
    a('s_lshl_b32 s47, s47, 5')
    a('s_add_u32 s46, s46, s47')
    a('s_lshl_b32 s47, s89, 22')
    a('s_add_u32 s46, s46, s47')
    a(f's_add_u32 s47, s46, {X1}')
    a(f's_add_u32 s46, s46, {XS0}')
    if wait_fn: wait_fn(a)
    a(f'buffer_load_dwordx2 v[96:97], v6, s[4:7], s46 offen sc1')
    D = 6
    def ldb(ks):
        f = 16 + (ks % D)*8
        if ks % 4 == 0: a(f's_mov_b32 s98, {ks*1024}')
        a(f'buffer_load_dwordx4 v[{f}:{f+3}], v12, s[4:7], s98 offen offset:{(ks%4)*1024} {ld}')
        a(f'buffer_load_dwordx4 v[{f+4}:{f+7}], v13, s[4:7], s98 offen offset:{(ks%4)*1024} {ld}')
    for ks in range(D-1): ldb(ks)
    for ks in range(32):
        if ks + D - 1 < 32:
            ldb(ks + D - 1); a(f's_waitcnt vmcnt({2*(D-1)})')
        else:
            a(f's_waitcnt vmcnt({2*(31-ks)})')
        f = 16 + (ks % D)*8
        for dt in range(2):
            for tt in range(2):
                d = 128 + (dt*2+tt)*4
                c = '0' if ks == 0 else f'v[{d}:{d+3}]'
                r = (dt*32+ks)*4
                a(f'v_mfma_f32_16x16x32_bf16 v[{d}:{d+3}], a[{r}:{r+3}], v[{f+4*tt}:{f+4*tt+3}], {c}')
    a('s_lshl_b32 s44, s43, 12')
    a('v_add_u32 v8, s44, v5')
    for i in range(4): a(f'ds_write_b128 v8, v[{128+4*i}:{128+4*i+3}] offset:{i*1024}')
    a('s_waitcnt lgkmcnt(0)')
    a('s_barrier')
    a('s_lshl_b32 s44, s43, 10')
    a('v_add_u32 v8, s44, v5')
    for w2 in range(4): a(f'ds_read_b128 v[{16+4*w2}:{16+4*w2+3}], v8 offset:{w2*4096}')
    a('s_waitcnt lgkmcnt(0)')
    for i in range(4):
        a(f'v_add_f32 v{16+i}, v{16+i}, v{20+i}')
        a(f'v_add_f32 v{24+i}, v{24+i}, v{28+i}')
        a(f'v_add_f32 v{16+i}, v{16+i}, v{24+i}')
    resid_store(a, 16, 96, 9, 6, xsrd, 's46', 's[4:7]', 's47', 0, 'sc1')

def gen_t3(L, xoff, dst):
    a = Asm()
    a('s_cmp_ge_u32 s2, 256')
    a(f's_cbranch_scc1 {L}_end')
    srd(a, 4, 96, 0)
    srd(a, 76, 0, 0)
    a('s_waitcnt lgkmcnt(0)')
    srd_fin(a, 4, WS_SIZE)
    srd_fin(a, 76, 0x200000)
    a('s_mov_b32 s40, s2')
    if xoff is None: body_t3(a, 's[76:79]', 0, dst, '')
    else: body_t3(a, 's[4:7]', xoff, dst, '')
    a.label(f'{L}_end')
    finish(L, a, vgpr=256, accum=256)
    launches.append((L, 256, 256, 65536))

NTL = 512 + 16*128 + 128
def gen_mega(L):
    a = Asm()
    a('s_cmp_ge_u32 s2, 256')
    a(f's_cbranch_scc1 {L}_end')
    srd(a, 4, 96, 0)
    srd(a, 8, 88, 0)
    srd(a, 76, 80, 0)
    a('s_waitcnt lgkmcnt(0)')
    srd_fin(a, 4, WS_SIZE)
    srd_fin(a, 8, 256)
    srd_fin(a, 76, 0x200000)
    if PROF:
        a('s_memrealtime s[90:91]')
        a('s_waitcnt lgkmcnt(0)')
    role_select(a, L)
    a('s_cmp_eq_u32 s12, -1')
    a(f's_cbranch_scc1 {L}_worker')
    body_rec(a, L, 0, 'sc1', merged=True)
    a(f's_branch {L}_end')
    a.label(f'{L}_worker')
    a.label(f'{L}_next')
    a('v_mbcnt_lo_u32_b32 v0, -1, 0')
    a('v_mbcnt_hi_u32_b32 v0, -1, v0')
    a('s_lshl_b32 s81, s14, 6')
    a('v_add_u32 v0, s81, v0')
    a('s_barrier')
    a('s_cmp_lg_u32 s14, 0')
    a(f's_cbranch_scc1 {L}_tw')
    a('s_mov_b64 exec, 1')
    a('v_mov_b32 v2, 40')
    a('v_mov_b32 v3, 1')
    a('buffer_atomic_add v3, v2, s[8:11], 0 offen sc0')
    a('s_waitcnt vmcnt(0)')
    a(f'v_mov_b32 v2, {LDS_REC - 256}')
    a('ds_write_b32 v2, v3')
    a('s_waitcnt lgkmcnt(0)')
    a('s_mov_b64 exec, -1')
    a.label(f'{L}_tw')
    a('s_barrier')
    a(f'v_mov_b32 v2, {LDS_REC - 256}')
    a('ds_read_b32 v3, v2')
    a('s_waitcnt lgkmcnt(0)')
    a('v_readfirstlane_b32 s81, v3')
    a(f's_cmp_ge_u32 s81, {2*NTL}')
    a(f's_cbranch_scc1 {L}_end')
    a(f's_cmp_ge_u32 s81, {NTL}')
    a('s_cselect_b32 s89, 1, 0')
    a(f's_cselect_b32 s88, {LSTR}, 0')
    a(f's_cselect_b32 s82, {NTL}, 0')
    a('s_sub_u32 s81, s81, s82')
    a('s_lshl_b32 s80, s89, 12')
    a(f's_add_u32 s80, s80, {FLG}')
    def signal(extra=None, slot=None):
        a('s_waitcnt vmcnt(0)')
        a('s_barrier')
        LL = a.uid('sig')
        a('s_cmp_lg_u32 s14, 0')
        a(f's_cbranch_scc1 {LL}')
        a('s_mov_b64 exec, 1')
        a('v_mov_b32 v2, s82')
        a('v_mov_b32 v3, 1')
        a('buffer_atomic_add v3, v2, s[4:7], s80 offen')
        if extra is not None:
            a(f'v_mov_b32 v2, {extra}')
            a('buffer_atomic_add v3, v2, s[4:7], s80 offen')
        if PROF and slot is not None:
            a('s_memrealtime s[90:91]')
            a('s_waitcnt lgkmcnt(0)')
            a('s_lshl_b32 s91, s89, 5')
            a(f's_add_u32 s91, s91, {192 + 4*slot}')
            a('v_mov_b32 v2, s91')
            a('v_mov_b32 v3, s90')
            a('buffer_atomic_umax v3, v2, s[8:11], 0 offen')
        a('s_mov_b64 exec, -1')
        a.label(LL)
    def poll(a, off_s, thr_s, base='s80'):
        LL = a.uid('poll')
        a('s_mov_b32 s85, 0')
        a.label(LL)
        a(f'v_mov_b32 v254, {off_s}')
        a(f'buffer_load_dword v254, v254, s[4:7], {base} offen sc1')
        a('s_waitcnt vmcnt(0)')
        a('v_readfirstlane_b32 s84, v254')
        a(f's_cmp_ge_u32 s84, {thr_s}')
        a(f's_cbranch_scc1 {LL}_ok')
        a('s_sleep 8')
        a('s_add_u32 s85, s85, 1')
        a(f's_cmp_le_u32 s85, {SPIN_MAX*4}')
        a(f's_cbranch_scc1 {LL}')
        a.label(f'{LL}_ok')
    a('s_cmp_ge_u32 s81, 512')
    a(f's_cbranch_scc1 {L}_t23')
    a('s_mov_b32 s40, s81')
    def w1(a):
        LL = a.uid('w1')
        a('s_cmp_eq_u32 s89, 0')
        a(f's_cbranch_scc1 {LL}')
        a('s_lshl_b32 s86, s41, 2')
        a('s_add_u32 s86, s86, 1280')
        a(f's_mov_b32 s87, {FLG}')
        poll(a, 's86', '8', 's87')
        a.label(LL)
        a('s_cmp_lt_u32 s41, 16')
        a(f's_cbranch_scc1 {LL}_b')
        poll(a, '0', '32')
        a.label(f'{LL}_b')
    body_t1(a, 'sc1', deep=True, wait_fn=w1)
    a('s_lshl_b32 s82, s41, 2')
    signal(128, 0)
    a(f's_branch {L}_next')
    a.label(f'{L}_t23')
    a('s_sub_u32 s81, s81, 512')
    a('s_cmp_ge_u32 s81, 2048')
    a(f's_cbranch_scc1 {L}_b2')
    a('s_lshr_b32 s83, s81, 7')
    a('s_and_b32 s81, s81, 127')
    a('s_cmp_ge_u32 s81, 32')
    a(f's_cbranch_scc1 {L}_t3')
    a('s_lshl_b32 s40, s83, 5')
    a('s_add_u32 s40, s40, s81')
    def w2(a):
        a('s_lshl_b32 s86, s41, 2')
        poll(a, 's86', '32')
        a('s_lshl_b32 s86, s42, 2')
        a('s_add_u32 s86, s86, 512')
        a('s_lshl_b32 s87, s41, 2')
        a('s_add_u32 s87, s87, 4')
        poll(a, 's86', 's87')
    def w2a(a):
        a('s_lshl_b32 s86, s41, 2')
        poll(a, 's86', '32')
    body_t2(a, 'sc1', 'sc1', wait_fn=w2, deep=True, pre_fn=w2a)
    a('s_lshl_b32 s82, s41, 2')
    a('s_add_u32 s82, s82, 256')
    signal(None, 1)
    a(f's_branch {L}_next')
    a.label(f'{L}_t3')
    a('s_sub_u32 s81, s81, 32')
    a('s_cmp_ge_u32 s81, 64')
    a(f's_cbranch_scc1 {L}_lnb')
    a('s_lshl_b32 s40, s83, 6')
    a('s_add_u32 s40, s40, s81')
    def w3(a):
        a('s_lshl_b32 s86, s83, 2')
        a('s_add_u32 s86, s86, 256')
        poll(a, 's86', '32')
    body_t3(a, 's[4:7]', 0, 0, 'sc1', deep=True, wait_fn=w3)
    a('s_waitcnt vmcnt(0)')
    a('s_barrier')
    a('s_cmp_lg_u32 s14, 0')
    a(f's_cbranch_scc1 {L}_x1w')
    a('s_mov_b64 exec, 1')
    a('s_lshl_b32 s82, s41, 2')
    a('s_add_u32 s82, s82, 768')
    a('v_mov_b32 v2, s82')
    a('v_mov_b32 v3, 1')
    a('buffer_atomic_add v3, v2, s[4:7], s80 offen sc0')
    a('s_waitcnt vmcnt(0)')
    a(f'v_mov_b32 v2, {LDS_REC - 128}')
    a('ds_write_b32 v2, v3')
    a('s_waitcnt lgkmcnt(0)')
    a('s_mov_b64 exec, -1')
    a.label(f'{L}_x1w')
    a('s_barrier')
    a(f'v_mov_b32 v2, {LDS_REC - 128}')
    a('ds_read_b32 v3, v2')
    a('s_waitcnt lgkmcnt(0)')
    a('v_readfirstlane_b32 s82, v3')
    a('s_cmp_lg_u32 s82, 15')
    a(f's_cbranch_scc1 {L}_next')
    a('s_lshl_b32 s40, s41, 1')
    body_lnb(a)
    a('s_add_u32 s40, s40, 1')
    body_lnb(a)
    a('s_lshl_b32 s82, s83, 2')
    a('s_add_u32 s82, s82, 1024')
    signal(None, 3)
    a(f's_branch {L}_next')
    a.label(f'{L}_lnb')
    a('s_sub_u32 s81, s81, 64')
    a('s_lshl_b32 s40, s83, 5')
    a('s_add_u32 s40, s40, s81')
    def wb1(a):
        a('s_lshl_b32 s86, s83, 2')
        a('s_add_u32 s86, s86, 1024')
        poll(a, 's86', '4')
    body_b1(a, wb1)
    a('s_mov_b32 s82, 1152')
    signal(None, 4)
    a(f's_branch {L}_next')
    a.label(f'{L}_b2')
    a('s_sub_u32 s40, s81, 2048')
    def wb2(a):
        poll(a, '1152', '512')
    body_b2(a, wb2)
    a('s_lshr_b32 s82, s41, 3')
    a('s_lshl_b32 s82, s82, 2')
    a('s_add_u32 s82, s82, 1280')
    signal(None, 5)
    a(f's_branch {L}_next')
    a.label(f'{L}_end')
    finish(L, a, vgpr=512, accum=256)
    launches.append((L, 256, 256, LDS_REC))

def phi(a, r, t, t2):
    a(f'v_add_f32 v{t}, 1.0, v{r}')
    a(f'v_mul_f32 v{t2}, 0x3fb8aa3b, v{r}')
    a(f'v_exp_f32 v{t2}, v{t2}')
    a(f'v_cmp_lt_f32 vcc, 0, v{r}')
    a(f'v_cndmask_b32 v{r}, v{t2}, v{t}, vcc')
    bf16_round(a, r, t)
    a(f'v_add_f32 v{r}, 0x358637bd, v{r}')
    bf16_round(a, r, t)

def body_b1(a, wait_fn):
    a('s_lshr_b32 s41, s40, 5')
    a('s_and_b32 s42, s40, 31')
    a('v_and_b32 v1, 63, v0')
    a('v_lshrrev_b32 v2, 6, v0')
    a('v_readfirstlane_b32 s43, v2')
    a('v_and_b32 v3, 15, v1')
    a('v_lshrrev_b32 v4, 4, v1')
    a('v_lshlrev_b32 v5, 4, v1')
    a('s_lshl_b32 s44, s41, 3')
    a('s_lshl_b32 s45, s43, 1')
    a('s_add_u32 s44, s44, s45')
    a('s_lshl_b32 s46, s42, 14')
    a(f's_add_u32 s46, s46, {BQKV}')
    for c in range(3):
        for ks in range(16):
            if ks % 4 == 0: a(f's_add_u32 s48, s46, {c*32*16384 + ks*1024}')
            r = (c*16+ks)*4
            a(f'buffer_load_dwordx4 a[{r}:{r+3}], v5, s[4:7], s48 offen offset:{(ks%4)*1024}')
    a('s_lshl_b32 s46, s44, 14')
    a(f's_add_u32 s46, s46, {XNB}')
    a('s_add_u32 s46, s46, s88')
    wait_fn(a)
    for tt in range(2):
        for ks in range(16):
            if ks % 4 == 0: a(f's_add_u32 s48, s46, {tt*16384 + ks*1024}')
            r = 128 + (ks*2+tt)*4
            a(f'buffer_load_dwordx4 v[{r}:{r+3}], v5, s[4:7], s48 offen offset:{(ks%4)*1024} sc1')
    for ks in range(16):
        a(f's_waitcnt vmcnt({15-ks})')
        for tt in range(2):
            x = f'v[{128+(ks*2+tt)*4}:{128+(ks*2+tt)*4+3}]'
            for c in range(3):
                d = 64 + c*8 + tt*4
                w = f'a[{(c*16+ks)*4}:{(c*16+ks)*4+3}]'
                cc = '0' if ks == 0 else f'v[{d}:{d+3}]'
                if c == 0: a(f'v_mfma_f32_16x16x32_bf16 v[{d}:{d+3}], {w}, {x}, {cc}')
                else: a(f'v_mfma_f32_16x16x32_bf16 v[{d}:{d+3}], {x}, {w}, {cc}')
    for r in range(64, 80):
        bf16_round(a, r, 16 + (r & 1)*2)
        phi(a, r, 16 + (r & 1)*2, 17 + (r & 1)*2)
    a('v_lshlrev_b32 v14, 3, v1')
    a('s_lshl_b32 s46, s44, 14')
    a('s_lshl_b32 s47, s42, 9')
    a('s_add_u32 s46, s46, s47')
    a(f's_add_u32 s46, s46, {PQ}')
    a('s_add_u32 s46, s46, s88')
    a('s_add_u32 s47, s46, 16384')
    for tt in range(2):
        d = 64 + tt*4; o = 24 + tt*2
        a(f'v_cvt_pk_bf16_f32 v{o}, v{d}, v{d+1}'); a(f'v_cvt_pk_bf16_f32 v{o+1}, v{d+2}, v{d+3}')
        a(f'buffer_store_dwordx2 v[{o}:{o+1}], v14, s[4:7], s{46+tt} offen sc1')
    for c in range(2):
        o = 32 + c*4; d = 72 + c*8
        for i in range(4): a(f'v_cvt_pk_bf16_f32 v{o+i}, v{d+2*i}, v{d+2*i+1}')
    for i in range(4): a(f'v_mov_b32 v{48+i}, 0x3f803f80')
    a('v_mfma_f32_16x16x32_bf16 v[96:99], v[32:35], v[36:39], 0')
    a('v_mfma_f32_16x16x32_bf16 v[100:103], v[32:35], v[48:51], 0')
    a('s_lshl_b32 s46, s43, 11')
    a('v_add_u32 v15, s46, v5')
    for t in range(2): a(f'ds_write_b128 v15, v[{96+4*t}:{96+4*t+3}] offset:{t*1024}')
    a('s_waitcnt lgkmcnt(0)')
    a('s_barrier')
    LB = a.uid('b1e')
    a('s_cmp_ge_u32 s43, 2')
    a(f's_cbranch_scc1 {LB}')
    a('s_lshl_b32 s46, s43, 10')
    a('v_add_u32 v15, s46, v5')
    for w2 in range(4): a(f'ds_read_b128 v[{104+4*w2}:{104+4*w2+3}], v15 offset:{w2*2048}')
    a('s_waitcnt lgkmcnt(0)')
    for i in range(4):
        a(f'v_add_f32 v{104+i}, v{104+i}, v{108+i}')
        a(f'v_add_f32 v{112+i}, v{112+i}, v{116+i}')
        a(f'v_add_f32 v{104+i}, v{104+i}, v{112+i}')
    a('v_mul_u32_u24 v6, 272, v4')
    a('v_lshl_add_u32 v7, v3, 2, v6')
    a('v_add_u32 v6, 64, v6')
    a('v_mov_b32 v8, 0x7fffff00')
    a('v_cmp_eq_u32 vcc, 0, v3')
    a('v_cndmask_b32 v6, v8, v6, vcc')
    a('s_cmp_eq_u32 s43, 1')
    a('s_cselect_b64 vcc, -1, 0')
    a('v_cndmask_b32 v6, v7, v6, vcc')
    a('s_mul_i32 s46, s42, 1088')
    a(f's_add_u32 s46, s46, {KVB}')
    a('s_lshl_b32 s47, s89, 16')
    a('s_add_u32 s46, s46, s47')
    for i in range(4): a(f'buffer_atomic_add_f32 v{104+i}, v6, s[4:7], s46 offen offset:{i*68}')
    a.label(LB)

def body_b2(a, wait_fn):
    L = a.uid('b2')
    a('s_mov_b32 s41, s40')
    a('v_and_b32 v1, 63, v0')
    a('v_lshrrev_b32 v2, 6, v0')
    a('v_readfirstlane_b32 s43, v2')
    a('v_and_b32 v3, 15, v1')
    a('v_lshrrev_b32 v4, 4, v1')
    a('v_lshlrev_b32 v5, 4, v1')
    a('s_lshl_b32 s46, s43, 17')
    a(f's_add_u32 s46, s46, {BWO}')
    for t in range(8):
        for ks in range(8):
            if ks % 4 == 0: a(f's_add_u32 s48, s46, {t*16384 + ks*1024}')
            r = (ks*8+t)*4
            a(f'buffer_load_dwordx4 a[{r}:{r+3}], v5, s[4:7], s48 offen offset:{(ks%4)*1024}')
    wait_fn(a)
    a('v_mul_u32_u24 v6, 272, v4')
    a('v_lshl_add_u32 v7, v3, 2, v6')
    a('s_mul_i32 s46, s43, %d' % (8*1088))
    a(f's_add_u32 s46, s46, {KVB}')
    a('s_lshl_b32 s47, s89, 16')
    a('s_add_u32 s46, s46, s47')
    for hh in range(8):
        if hh == 3 or hh == 6: a('s_add_u32 s46, s46, %d' % (3*1088))
        ho = (hh % 3)*1088
        for j in range(4):
            a(f'buffer_load_dword v{192+8*hh+j}, v7, s[4:7], s46 offen offset:{ho + j*68} sc1')
            a(f'buffer_load_dword v{196+8*hh+j}, v6, s[4:7], s46 offen offset:{ho + j*68 + 64} sc1')
    a('v_lshlrev_b32 v8, 3, v1')
    a('s_lshl_b32 s46, s41, 14')
    a('s_lshl_b32 s47, s43, 12')
    a('s_add_u32 s46, s46, s47')
    a(f's_add_u32 s46, s46, {PQ}')
    a('s_add_u32 s46, s46, s88')
    for hh in range(8): a(f'buffer_load_dwordx2 v[{16+2*hh}:{17+2*hh}], v8, s[4:7], s46 offen offset:{hh*512} sc1')
    a('v_lshlrev_b32 v9, 10, v3')
    a('v_lshl_add_u32 v9, v4, 3, v9')
    a('s_lshl_b32 s46, s41, 14')
    a('s_lshl_b32 s47, s43, 8')
    a('s_add_u32 s48, s46, s47')
    a('s_lshl_b32 s47, s89, 22')
    a('s_add_u32 s46, s48, s47')
    a(f's_add_u32 s46, s46, {X1}')
    for dt in range(8): a(f'buffer_load_dwordx2 v[{32+2*dt}:{33+2*dt}], v9, s[4:7], s46 offen offset:{dt*32} sc1')
    a('s_lshl_b32 s46, s43, 17')
    a(f's_add_u32 s46, s46, {BWO}')
    for t in range(8):
        a(f'v_add_u32 v{48+t}, s46, v5')
        if t < 7: a('s_add_u32 s46, s46, 16384')
    a('s_waitcnt vmcnt(8)')
    for hh in range(8):
        b = 192 + 8*hh; o = 96 + 4*hh
        a(f'v_cvt_pk_bf16_f32 v{o}, v{b}, v{b+1}'); a(f'v_cvt_pk_bf16_f32 v{o+1}, v{b+2}, v{b+3}')
        a(f'v_cvt_pk_bf16_f32 v{o+2}, v{b+4}, v{b+5}'); a(f'v_cvt_pk_bf16_f32 v{o+3}, v{b+6}, v{b+7}')
    for hh in range(8):
        a(f'v_mfma_f32_16x16x16_bf16 v[{192+4*hh}:{192+4*hh+3}], v[{96+4*hh}:{97+4*hh}], v[{16+2*hh}:{17+2*hh}], 0')
        a(f'v_mfma_f32_16x16x16_bf16 v[{128+4*hh}:{128+4*hh+3}], v[{98+4*hh}:{99+4*hh}], v[{16+2*hh}:{17+2*hh}], 0')
    for i in range(8):
        dn = 128 + 4*i; nm = 192 + 4*i
        t = 10 + (i & 1)*3
        bf16_round(a, dn, t)
        a(f'v_add_f32 v{dn}, 0x358637bd, v{dn}')
        bf16_round(a, dn, t)
        a(f'v_rcp_f32 v{t+1}, v{dn}')
        bf16_round2(a, nm, nm+1, t); bf16_round2(a, nm+2, nm+3, t)
        for k in range(4):
            a(f'v_mul_f32 v{t}, v{nm+k}, v{t+1}')
            a(f'v_fma_f32 v{t+2}, -v{t}, v{dn}, v{nm+k}')
            a(f'v_fma_f32 v{nm+k}, v{t+2}, v{t+1}, v{t}')
    a('s_lshl_b32 s44, s43, 12')
    a('v_add_u32 v6, s44, v5')
    for bb in range(4):
        o = 16 + bb*4
        d0 = 192 + (2*bb)*4; d1 = 192 + (2*bb+1)*4
        a(f'v_cvt_pk_bf16_f32 v{o}, v{d0}, v{d0+1}'); a(f'v_cvt_pk_bf16_f32 v{o+1}, v{d0+2}, v{d0+3}')
        a(f'v_cvt_pk_bf16_f32 v{o+2}, v{d1}, v{d1+1}'); a(f'v_cvt_pk_bf16_f32 v{o+3}, v{d1+2}, v{d1+3}')
        a(f'ds_write_b128 v6, v[{o}:{o+3}] offset:{bb*1024}')
    a('s_waitcnt lgkmcnt(0)')
    a('s_barrier')
    for i in range(16): a(f'ds_read_b128 v[{192+4*i}:{192+4*i+3}], v5 offset:{i*1024}')
    for r in range(64, 96): a(f'v_mov_b32 v{r}, 0')
    BUF = [96, 128, 160]
    def ld(ks):
        f = BUF[ks % 3]
        a(f's_mov_b32 s98, {ks*1024}')
        for t in range(8): a(f'buffer_load_dwordx4 v[{f+4*t}:{f+4*t+3}], v{48+t}, s[4:7], s98 offen')
    ld(8); ld(9); ld(10)
    a('s_waitcnt lgkmcnt(0)')
    for ks in range(8):
        for dt in range(8):
            d = 64 + dt*4; r = (ks*8+dt)*4
            a(f'v_mfma_f32_16x16x32_bf16 v[{d}:{d+3}], a[{r}:{r+3}], v[{192+4*ks}:{192+4*ks+3}], v[{d}:{d+3}]')
    for ks in range(8, 16):
        a(f's_waitcnt vmcnt({16 if ks < 14 else (8 if ks == 14 else 0)})')
        f = BUF[ks % 3]
        for dt in range(8):
            d = 64 + dt*4
            a(f'v_mfma_f32_16x16x32_bf16 v[{d}:{d+3}], v[{f+4*dt}:{f+4*dt+3}], v[{192+4*ks}:{192+4*ks+3}], v[{d}:{d+3}]')
        if ks + 3 < 16: ld(ks+3)
    a('s_cmp_lg_u32 s89, 0')
    a(f's_cbranch_scc1 {L}_last')
    a(f's_add_u32 s62, s48, {X2}')
    for dt in range(8):
        resid_store(a, 64+4*dt, 32+2*dt, 10, 9, None, None, 's[4:7]', 's62', dt*32, 'sc1')
    if True:
        for dt in range(8):
            for h2 in range(2):
                a(f'v_lshlrev_b32 v{64+4*dt+2*h2}, 16, v{32+2*dt+h2}')
                a(f'v_and_b32 v{65+4*dt+2*h2}, 0xffff0000, v{32+2*dt+h2}')
        def xwave(v, slot):
            g_allreduce(a, v, 11, 'v_add_f32')
            a('s_lshl_b32 s44, s43, 8')
            a('v_lshlrev_b32 v12, 2, v1')
            a('v_add_u32 v13, s44, v12')
            a(f'ds_write_b32 v13, v{v} offset:{16384 + slot*1024}')
            a('s_waitcnt lgkmcnt(0)')
            a('s_barrier')
            for w2 in range(4): a(f'ds_read_b32 v{100+w2}, v12 offset:{16384 + slot*1024 + w2*256}')
            a('s_waitcnt lgkmcnt(0)')
            a('v_add_f32 v100, v100, v101'); a('v_add_f32 v102, v102, v103'); a(f'v_add_f32 v{v}, v100, v102')
        a('v_add_f32 v10, v64, v65')
        for r in range(66, 96): a(f'v_add_f32 v10, v10, v{r}')
        xwave(10, 0)
        a('v_mul_f32 v10, 0x3b000000, v10')
        a('v_mov_b32 v14, 0')
        for r in range(64, 96):
            a(f'v_sub_f32 v15, v{r}, v10')
            a('v_fmac_f32 v14, v15, v15')
        xwave(14, 1)
        a('v_mul_f32 v14, 0x3b000000, v14')
        bf16_round(a, 14, 15)
        a('v_add_f32 v14, 0x3727c5ac, v14')
        bf16_round(a, 14, 15)
        a('v_sqrt_f32 v14, v14')
        bf16_round(a, 14, 15)
        bf16_round(a, 10, 15)
        a('v_rcp_f32 v16, v14')
        a('v_lshrrev_b32 v17, 1, v4')
        a('v_lshlrev_b32 v17, 8, v17')
        a('v_lshl_add_u32 v17, v3, 4, v17')
        a('v_and_b32 v18, 1, v4')
        a('v_lshl_add_u32 v17, v18, 3, v17')
        a('s_lshl_b32 s46, s41, 14')
        a('s_lshl_b32 s47, s43, 12')
        a('s_add_u32 s46, s46, s47')
        a(f's_add_u32 s46, s46, {XN + LSTR}')
        for dt in range(8):
            for h2 in range(2):
                r = 64 + 4*dt + 2*h2
                a(f'v_sub_f32 v{r}, v{r}, v10'); a(f'v_sub_f32 v{r+1}, v{r+1}, v10')
                bf16_round2(a, r, r+1, 15)
                for k in (r, r+1):
                    a(f'v_mul_f32 v19, v{k}, v16')
                    a(f'v_fma_f32 v20, -v19, v14, v{k}')
                    a(f'v_fma_f32 v{k}, v20, v16, v19')
                a(f'v_cvt_pk_bf16_f32 v{104+2*dt+h2}, v{r}, v{r+1}')
            a(f'buffer_store_dwordx2 v[{104+2*dt}:{105+2*dt}], v17, s[4:7], s46 offen offset:{(dt>>1)*1024 + (dt&1)*512} sc1')
    a(f's_branch {L}_done')
    a.label(f'{L}_last')
    a('s_mov_b32 s62, s48')
    for dt in range(8):
        resid_store(a, 64+4*dt, 32+2*dt, 10, 9, None, None, 's[76:79]', 's62', dt*32, '')
    a.label(f'{L}_done')

def emit(path):
    hdr = open(os.path.join(os.path.dirname(__file__), '..', 'cdna_kernels', NAME + '.s.ref')).read().split('; Override')[0]
    s = hdr
    for (L, g, b, lds) in launches:
        s += f'; @launch kernel={L} grid=({g},1,1) block=({b},1,1) lds={lds}\n'
    s += '.amdgcn_target "amdgcn-amd-amdhsa--gfx950"\n.text\n'
    seen = set()
    for (L, t, k) in kernels:
        s += t
    s += '.section .rodata,"a"\n'
    for (L, t, k) in kernels:
        s += '.p2align 6\n' + k
    open(path, 'w').write(s)

if __name__ == '__main__':
    gen_prep()
    gen_mega('mega_kernel')
    emit(os.path.join(os.path.dirname(__file__), '..', 'cdna_kernels', NAME + '.s'))
```
